```python
import torch

def _softmax(x, axis=-1):
    return torch.softmax(x, dim=axis)
def _gelu(x):
    return torch.nn.functional.gelu(x, approximate="tanh")
def _silu(x):
    return torch.nn.functional.silu(x)
def _sigmoid(x):
    return torch.sigmoid(x)
def _layernorm(x, axis=-1, eps=1e-5):
    m = x.mean(dim=axis, keepdim=True)
    v = x.var(dim=axis, keepdim=True, unbiased=False)
    return (x - m) / torch.sqrt(v + eps)
def _scatter_add(tgt, idx, src, axis=0):
    return tgt.clone().index_add_(axis, idx, src)
def _segment_sum(src, seg, n):
    out = torch.zeros((n,) + src.shape[1:], dtype=src.dtype)
    return out.index_add_(0, seg, src)
def _pad(x, pw):
    flat = tuple(v for pair in reversed(pw) for v in pair)
    return torch.nn.functional.pad(x, flat)

kernel_name = 'gated_mix__mha_block__glu_gated_geglu__prompt'

def setup_inputs():

    _w = (lambda a: (lambda t: t.to(torch.bfloat16) if t.is_floating_point() else t)(torch.as_tensor(a)))
    def _A_setup():
        B, S, D, H = 1, 2048, 448, 16
        return {
            "x": _w((lambda *s: torch.randn(*s, dtype=torch.bfloat16) * 0.05)(B, S, D)),
            "wqkv": _w((lambda *s: torch.randn(*s, dtype=torch.bfloat16) * 0.8)(D, 3 * D)),
            "wo": _w((lambda *s: torch.randn(*s, dtype=torch.bfloat16) * 0.05)(D, D)),
        }
    _A_in = _A_setup()

    def _B_setup():
        B, S, Dm, Df = 1, 2048, 448, 1792
        return {
            "x": _w((lambda *s: torch.randn(*s, dtype=torch.bfloat16) * 0.05)(B, S, Dm)),
            "w_gate": _w((lambda *s: torch.randn(*s, dtype=torch.bfloat16) * 1.6)(Dm, Df) * (Dm ** -0.5)),
            "w_up": _w((lambda *s: torch.randn(*s, dtype=torch.bfloat16) * 1.6)(Dm, Df) * (Dm ** -0.5)),
            "w_down": _w((lambda *s: torch.randn(*s, dtype=torch.bfloat16) * 1.6)(Df, Dm) * (Df ** -0.5)),
        }
    _B_in = _B_setup()

    return {
        "A_x": _A_in["x"],
        "A_wqkv": _A_in["wqkv"],
        "A_wo": _A_in["wo"],
        "B_x": _B_in["x"],
        "B_w_gate": _B_in["w_gate"],
        "B_w_up": _B_in["w_up"],
        "B_w_down": _B_in["w_down"],
        "gate_w": _w((lambda *s: torch.randn(*s, dtype=torch.bfloat16) * 0.05)(448) * 16.0),
    }

def reference(A_x, A_wqkv, A_wo, B_x, B_w_gate, B_w_up, B_w_down, gate_w):
    def _A_ref(x, wqkv, wo):
        B, S, D = x.shape
        H = 16
        Dh = D // H
        qkv = (lambda x, *d: x.permute(*d))((x @ wqkv).reshape(B, S, 3, H, Dh), 2, 0, 3, 1, 4)
        q, k, v = qkv[0], qkv[1], qkv[2]
        scores = torch.einsum("bhqd,bhkd->bhqk", q, k) * (Dh ** -0.5)
        p = _softmax(scores, axis=-1)
        o = torch.einsum("bhqk,bhkd->bhqd", p, v)
        return (lambda x, *d: x.permute(*d))(o, 0, 2, 1, 3).reshape(B, S, D) @ wo

    def _B_ref(x, w_gate, w_up, w_down):
        g = torch.einsum("bsd,df->bsf", x, w_gate)
        u = torch.einsum("bsd,df->bsf", x, w_up)
        h = _gelu(g) * u
        return torch.einsum("bsf,fd->bsd", h, w_down)

    x = A_x
    g = _sigmoid((x * gate_w).sum(-1, keepdims=True))
    a = _A_ref(x, A_wqkv, A_wo)
    b = _B_ref(x, B_w_gate, B_w_up, B_w_down)
    return g * a + (1 - g) * b
```

```python
import re

TRANS = ("v_exp_f32", "v_log_f32", "v_rcp_f32", "v_rsq_f32", "v_sqrt_f32", "v_sin_f32", "v_cos_f32")


def v(a, n=1):
    return "v%d" % a if n == 1 else "v[%d:%d]" % (a, a + n - 1)


def s(a, n=1):
    return "s%d" % a if n == 1 else "s[%d:%d]" % (a, a + n - 1)


class Asm:
    def __init__(self):
        self.L = []

    def __call__(self, text):
        for line in text.strip("\n").split("\n"):
            line = line.strip()
            if line:
                self.L.append(line)

    def label(self, name):
        self.L.append(name + ":")

    def c(self, text):
        self.L.append("; " + text)

    def text(self):
        out = []
        for l in self.L:
            if l.endswith(":") or l.startswith(".") or l.startswith(";"):
                out.append(l)
            else:
                out.append("    " + l)
        return "\n".join(out) + "\n"


_REG = re.compile(r"^-?\|?([vsa])(?:(\d+)|\[(\d+):(\d+)\])\|?$")


def regs(op):
    op = op.strip()
    if op in ("vcc", "vcc_lo", "vcc_hi"):
        return {("s", "vcc")}
    if op == "exec":
        return {("s", "exec")}
    if op == "m0":
        return {("s", "m0")}
    m = _REG.match(op)
    if not m:
        return set()
    if m.group(2) is not None:
        return {(m.group(1), int(m.group(2)))}
    return {(m.group(1), i) for i in range(int(m.group(3)), int(m.group(4)) + 1)}


class Ins:
    def __init__(self, text, idx):
        self.text = text
        self.idx = idx
        t = text.split(";")[0].strip()
        parts = t.split(None, 1)
        self.op = parts[0]
        rest = parts[1] if len(parts) > 1 else ""
        ops, depth, cur = [], 0, ""
        for ch in rest:
            if ch == "[":
                depth += 1
            if ch == "]":
                depth -= 1
            if ch == "," and depth == 0:
                ops.append(cur.strip())
                cur = ""
            else:
                cur += ch
        if cur.strip():
            ops.append(cur.strip())
        self.mods = []
        if ops:
            w = ops[-1].split()
            ops[-1] = w[0]
            self.mods = w[1:]
        self.ops = ops
        op = self.op
        R = [regs(o) for o in ops]
        self.w, self.r = set(), set()
        self.A = self.B = self.C = set()
        self.kind = "other"
        self.states = 1
        self.store_data = set()
        if op == "s_nop":
            self.states = int(ops[0], 0) + 1
            self.kind = "nop"
        elif op.startswith("v_mfma") or op.startswith("v_smfmac"):
            self.kind = "mfma"
            self.passes = 8 if "32x32" in op else 4
            self.w = R[0]
            self.A, self.B = R[1], R[2]
            if op.startswith("v_smfmac"):
                self.C = R[0]
                self.A = self.A | R[3]
            else:
                self.C = R[3]
            self.r = self.A | self.B | self.C
        elif op.startswith("v_"):
            self.kind = "valu"
            base = op.replace("_e32", "").replace("_e64", "")
            if base.startswith("v_permlane"):
                self.w = R[0] | R[1]
                self.r = R[0] | R[1]
            elif base.startswith("v_cmp"):
                self.w = R[0]
                self.r = set().union(*R[1:])
            elif base in ("v_add_co_u32", "v_sub_co_u32", "v_addc_co_u32", "v_subb_co_u32"):
                self.w = R[0] | R[1]
                self.r = set().union(*R[2:])
            else:
                self.w = R[0]
                self.r = set().union(*R[1:]) if len(R) > 1 else set()
                if base.startswith("v_fmac") or base.startswith("v_writelane"):
                    self.r |= R[0]
            self.trans = base in TRANS
        elif op.startswith("ds_"):
            self.kind = "ds"
            if op.startswith("ds_read") or "_rtn" in op or op.startswith("ds_bpermute"):
                self.w = R[0]
                self.r = set().union(*R[1:])
            else:
                self.r = set().union(*R)
        elif op.startswith("buffer_") or op.startswith("global_"):
            self.kind = "vmem"
            if op in ("buffer_inv", "buffer_wbl2"):
                pass
            elif "lds" in self.mods:
                self.r = set().union(*R) | {("s", "m0")}
                self.lds = True
            elif "load" in op:
                self.w = R[0]
                self.r = set().union(*R[1:])
            else:
                self.r = set().union(*R)
                di = 0 if op.startswith("buffer_") else 1
                if "x3" in op or "x4" in op:
                    self.store_data = R[di]
        elif op.startswith("s_"):
            self.kind = "salu"
            if op.startswith("s_cmp") or op.startswith("s_cbranch") or op in (
                "s_branch", "s_waitcnt", "s_barrier", "s_endpgm", "s_sleep", "s_setprio", "s_setpc_b64"):
                self.r = set().union(*R) if R else set()
            else:
                self.w = R[0]
                self.r = set().union(*R[1:]) if len(R) > 1 else set()
                if "saveexec" in op:
                    self.w = self.w | {("s", "exec")}


def vonly(x):
    return {r for r in x if r[0] in "va"}


def sonly(x):
    return {r for r in x if r[0] == "s"}


def need(p, c):
    n = 0
    if p.kind == "valu":
        pv, ps = vonly(p.w), sonly(p.w)
        if c.kind == "mfma" and pv & c.r:
            n = max(n, 2)
        if c.kind == "valu":
            if p.trans and not c.trans and pv & c.r:
                n = max(n, 1)
            if c.op.startswith("v_permlane") and pv & c.r:
                n = max(n, 2)
            if (c.op.startswith("v_readfirstlane") or c.op.startswith("v_readlane")) and pv & c.r:
                n = max(n, 1)
            if any(m.startswith("row_") or m.startswith("quad_perm") for m in c.mods) and pv & c.r:
                n = max(n, 2)
            if ps & c.r:
                n = max(n, 2)
        if c.kind == "vmem" and ps & c.r:
            n = max(n, 5)
        if c.kind == "salu" and ps & c.r:
            n = max(n, 1)
        if ("s", "exec") in ps and c.kind == "mfma":
            n = max(n, 4)
    if p.kind == "mfma":
        big = {8: 12, 4: 8}[p.passes]
        if c.kind == "mfma":
            if p.w & (c.A | c.B):
                n = max(n, big)
            if p.w & c.C:
                if not (c.C == p.w and c.passes == p.passes):
                    n = max(n, {8: 10, 4: 6}[p.passes])
            elif p.w & c.w and c.w != p.w:
                n = max(n, big)
        elif c.kind in ("valu", "ds", "vmem"):
            if p.w & (c.r | c.w):
                n = max(n, big)
            if c.kind == "valu" and p.C & c.w:
                n = max(n, {8: 7, 4: 3}[p.passes])
    if p.kind == "salu" and ("s", "m0") in p.w and c.kind == "vmem" and getattr(c, "lds", False):
        n = max(n, 1)
    if p.store_data and p.store_data & c.w:
        n = max(n, 2 if c.kind in ("valu", "mfma") else 1)
    return n


def check(lines, verbose=True):
    ins, labels = [], {}
    for l in lines:
        if l.startswith(";") or l.startswith("."):
            continue
        if l.endswith(":"):
            labels[l[:-1]] = len(ins)
            continue
        ins.append(Ins(l, len(ins)))

    def succ(i):
        x = ins[i]
        if x.op == "s_endpgm":
            return []
        if x.op == "s_branch":
            return [labels[x.ops[0]]]
        out = [i + 1] if i + 1 < len(ins) else []
        if x.op.startswith("s_cbranch"):
            out.append(labels[x.ops[0]])
        return out

    bad = []
    for p in ins:
        if p.kind not in ("valu", "mfma", "salu", "vmem"):
            continue
        if p.kind == "vmem" and not p.store_data:
            continue
        if p.kind == "salu" and ("s", "m0") not in p.w:
            continue
        lim = 12 if p.kind == "mfma" else 5
        seen = {}
        stack = [(j, 0) for j in succ(p.idx)]
        while stack:
            j, d = stack.pop()
            if d >= lim or seen.get(j, 99) <= d:
                continue
            seen[j] = d
            c = ins[j]
            n = need(p, c)
            if n > d:
                bad.append((p.idx, j, n, d))
            for k in succ(j):
                stack.append((k, d + c.states))
    if verbose:
        for a, b, n, d in bad:
            print("HAZARD need %d have %d:\n   [%d] %s\n   [%d] %s" % (n, d, a, ins[a].text, b, ins[b].text))
    return bad
```

```python
import sys, struct, math
from asmlib import Asm, v, s, check

NAME = "gated_mix__mha_block__glu_gated_geglu__prompt"
PROF = "--prof" in sys.argv
FORCE_FB = "--force-fallback" in sys.argv
OUT = [a for a in sys.argv[1:] if not a.startswith("--")]
OUT = OUT[0] if OUT else "cdna_kernels/%s.s" % NAME


def f2u(x):
    return struct.unpack("<I", struct.pack("<f", x))[0]


KV_OFF, Q_OFF, H_OFF, O_OFF = 0, 0x400000, 0x600000, 0xD00000
FQ_OFF, FH_OFF, FO_OFF, E_OFF, PROF_OFF = 0xF00000, 0xF40000, 0xF80000, 0xFC0000, 0xFD0000
WS_BYTES = 0x1000000
XB, WB, TB, EX, CNT = 0, 49152, 155648, 159744, 160768
WSLOT = 20480
PB, DB, DREG = 0, 49152, 26624
LDS_BYTES = 163840
SPIN_MAX = 1 << 18

sB, sW, sM, sJ, sH, sMA, sR, sT, sNON = 2, 3, 4, 5, 6, 7, 8, 9, 10
t0, t1, t2, t3, t4 = 11, 12, 13, 14, 15
pX, pQKV, pWO, pWG, pWU, pWD, pGW, pOUT, pDBG, pWS = 16, 18, 20, 24, 26, 28, 30, 32, 34, 36
t5, t6 = 38, 39
rA, rB, rC, rWS, rWD, rWO, rOUT, rT = 40, 44, 48, 52, 56, 60, 64, 68
sIt, sOA, sOB, sOC, sSA, sSB, sSC = 72, 73, 74, 75, 76, 77, 78
sWr, sWd, sXs, sXp, sXo, sTr, sX0 = 79, 80, 81, 82, 83, 84, 85
sHalf, sCg, sFin, sSpin = 86, 87, 88, 89
mHI, mT, kG, kS = 90, 92, 94, 96
sP = 98
sStamp = 100
vL16, vLane, vZero = 250, 251, 252
vProf = 230

a = Asm()
nstamp = [0]


def stamp(k):
    if not PROF:
        return
    a("s_memtime %s" % s(sStamp, 2))
    a("s_waitcnt lgkmcnt(0)")
    a("v_writelane_b32 %s, %s, %d" % (v(vProf), s(sStamp), k))


def srd(r, p, nbytes):
    a("s_mov_b32 %s, %s" % (s(r), s(p)))
    a("s_mov_b32 %s, %s" % (s(r + 1), s(p + 1)))
    a("s_mov_b32 %s, 0x%x" % (s(r + 2), nbytes))
    a("s_mov_b32 %s, 0x20000" % s(r + 3))


def mfma(d, A, B, C=None):
    c = v(d, 16) if C is None else C
    a("v_mfma_f32_32x32x16_bf16 %s, %s, %s, %s" % (v(d, 16), v(A, 4), v(B, 4), c))


def dma(vo, r, so, m0src, m0add=0):
    if m0add:
        a("s_add_u32 m0, %s, %d" % (s(m0src), m0add))
    else:
        a("s_mov_b32 m0, %s" % s(m0src))
    a("s_nop 0")
    a("buffer_load_dwordx4 %s, %s, %s offen lds" % (v(vo), s(r, 4), s(so)))


uid = [0]


def L(p):
    uid[0] += 1
    return "L%s_%d" % (p, uid[0])


def poll(vaddr, vtmp):
    lp, done = L("poll"), L("pdone")
    a("s_mov_b32 %s, %d" % (s(sSpin), SPIN_MAX))
    a.label(lp)
    a("buffer_load_dword %s, %s, %s, 0 offen sc1" % (v(vtmp), v(vaddr), s(rWS, 4)))
    a("s_waitcnt vmcnt(0)")
    a("v_cmp_ne_u32 vcc, %s, %s" % (s(sNON), v(vtmp)))
    a("s_nop 1")
    a("s_cbranch_vccz %s" % done)
    a("s_sub_u32 %s, %s, 1" % (s(sSpin), s(sSpin)))
    a("s_cbranch_scc1 %s" % done)
    a("s_sleep 1")
    a("s_branch %s" % lp)
    a.label(done)


def get_nonce(vn, vtmp):
    lp, done = L("non"), L("ndone")
    a("s_mov_b32 %s, %d" % (s(sSpin), SPIN_MAX))
    a.label(lp)
    a("v_readfirstlane_b32 %s, %s" % (s(sNON), v(vn)))
    a("s_nop 1")
    a("s_cmp_lg_u32 %s, 0" % s(sNON))
    a("s_cbranch_scc1 %s" % done)
    a("s_sub_u32 %s, %s, 1" % (s(sSpin), s(sSpin)))
    a("s_cbranch_scc1 %s" % done)
    a("buffer_load_dword %s, %s, %s, 0 offen sc1" % (v(vn), v(vZero), s(rT, 4)))
    a("s_waitcnt vmcnt(0)")
    a("s_branch %s" % lp)
    a.label(done)


def flag_store(vaddr, vtmp, nlanes=1):
    a("v_mov_b32 %s, %s" % (v(vtmp), s(sNON)))
    a("s_mov_b64 exec, %d" % ((1 << nlanes) - 1))
    a("buffer_store_dword %s, %s, %s, 0 offen sc1" % (v(vtmp), v(vaddr), s(rWS, 4)))
    a("s_mov_b64 exec, -1")


a.label(NAME + "_kernel")
a("s_cmp_ge_u32 s2, 256")
a("s_cbranch_scc1 Lend")
a("s_load_dwordx16 s[16:31], s[0:1], 0")
a("s_load_dwordx4 s[32:35], s[0:1], 64")
a("s_load_dwordx2 s[36:37], s[0:1], 80")
if PROF:
    a("v_mov_b32 %s, 0" % v(vProf))
a("v_lshrrev_b32 v1, 6, v0")
a("v_and_b32 %s, 63, v0" % v(vLane))
a("v_readfirstlane_b32 %s, v1" % s(sW))
a("v_lshlrev_b32 %s, 4, %s" % (v(vL16), v(vLane)))
a("v_mov_b32 %s, 0" % v(vZero))
a("""
s_and_b32 s11, s2, 7
s_lshr_b32 s12, s2, 3
s_and_b32 s13, s11, 1
s_lshl_b32 s13, s13, 3
s_and_b32 s14, s12, 7
s_add_u32 s4, s13, s14
s_lshr_b32 s13, s11, 1
s_lshl_b32 s13, s13, 2
s_lshr_b32 s14, s12, 3
s_add_u32 s5, s13, s14
s_lshl_b32 s13, s11, 1
s_lshr_b32 s14, s12, 4
s_add_u32 s6, s13, s14
s_and_b32 s7, s12, 15
s_mul_i32 s13, s12, 37
s_lshr_b32 s13, s13, 8
s_mul_i32 s14, s13, 7
s_sub_u32 s9, s12, s14
s_lshl_b32 s14, s11, 2
s_add_u32 s8, s14, s13
s_cmp_lt_u32 s12, 28
""")
a("s_cselect_b32 %s, 1, 0" % s(sFin))
a("s_and_b32 %s, %s, 1" % (s(sHalf), s(sW)))
a("s_lshr_b32 %s, %s, 1" % (s(sCg), s(sW)))
a("s_mov_b32 %s, 0" % s(mHI))
a("s_mov_b32 %s, -1" % s(mHI + 1))
a("s_mov_b32 %s, 0x88880000" % s(mT))
a("s_mov_b32 %s, 0x88880000" % s(mT + 1))
K1 = -2.0 * math.sqrt(2.0 / math.pi) * math.log2(math.e)
a("s_mov_b32 %s, 0x%x" % (s(kG), f2u(K1 * 0.044715)))
a("s_mov_b32 %s, 0x%x" % (s(kG + 1), f2u(K1)))

vWb, vWa, vXb, vXa0, vXa1, vTb, vDA, vDB, vDC, vDC2 = 1, 4, 7, 8, 9, 10, 11, 12, 13, 14
a("""
v_lshrrev_b32 v16, 3, v251
v_and_b32 v17, 7, v251
v_bfe_u32 v18, v251, 2, 2
v_and_b32 v19, 3, v251
v_lshlrev_b32 v19, 3, v19
v_lshrrev_b32 v20, 5, v251
v_and_b32 v21, 31, v251
v_lshl_add_u32 v22, v20, 3, v18
v_lshlrev_b32 v22, 7, v22
v_lshrrev_b32 v23, 1, v18
v_lshlrev_b32 v23, 6, v23
""")
a("v_lshl_add_u32 %s, v20, 2, v18" % v(vTb))
a("v_lshlrev_b32 %s, 3, %s" % (v(vTb), v(vTb)))
a("v_bfe_u32 v24, v21, 1, 3")
a("v_xor_b32 v24, v24, v20")
a("v_lshlrev_b32 v24, 4, v24")
a("s_lshl_b32 s11, %s, 13" % s(sHalf))
a("v_lshl_add_u32 %s, v21, 7, v24" % v(vXb))
a("v_add_u32 %s, s11, %s" % (v(vXb), v(vXb)))
a("v_bfe_u32 v25, v16, 1, 1")
a("v_lshlrev_b32 v25, 2, v25")
a("v_xor_b32 v25, v25, v17")
a("v_lshlrev_b32 v25, 4, v25")
a("s_and_b32 s12, %s, 3" % s(sW))
a("s_lshl_b32 s13, s12, 3")
a("v_add_u32 v26, s13, v16")
a("s_mov_b32 %s, 0xffff0000" % s(sP))
a("s_mov_b32 %s, 0xffff0000" % s(sP + 1))


def tile_base(vd, sP0, sP1):
    a("v_mov_b32 v27, %s" % s(sP0))
    a("v_mov_b32 v28, %s" % s(sP1))
    a("v_cndmask_b32 v27, v27, v28, %s" % s(sP, 2))
    a("v_add_u32 v27, v27, v19")
    a("v_xor_b32 v27, v27, v23")
    a("v_add_u32 %s, v27, v22" % v(vd))


def gu_params(sTile):
    a("s_lshr_b32 s11, %s, 2" % s(sTile))
    a("s_lshl_b32 s11, s11, 12")
    a("s_and_b32 s12, %s, 3" % s(sTile))
    a("s_lshl_b32 s12, s12, 5")
    a("s_add_u32 s11, s11, s12")
    a("s_xor_b32 s12, s11, 32")
    a("s_add_u32 s12, s12, 8192")


def hp_params(sQ):
    a("s_lshr_b32 s11, %s, 1" % s(sQ))
    a("s_lshl_b32 s11, s11, 12")
    a("s_and_b32 s12, %s, 1" % s(sQ))
    a("s_mul_i32 s12, s12, 56")
    a("s_add_u32 s11, s11, s12")
    a("s_add_u32 s12, s11, 32")


def dma_voff(vd, sStride, sCol, u):
    a("v_mul_lo_u32 v27, v26, %s" % s(sStride))
    if u:
        a("v_xor_b32 v28, %d, v25" % (16 * u))
        a("v_add3_u32 %s, v27, v28, %s" % (v(vd), s(sCol)))
    else:
        a("v_add3_u32 %s, v27, v25, %s" % (v(vd), s(sCol)))


WG_BYTES, QKV_BYTES, X_BYTES = 448 * 3584, 448 * 2688, 2048 * 896

a("s_cmp_ge_u32 %s, 14" % s(sJ))
a("s_cbranch_scc1 Lsetup_qkv")
a("s_cmp_ge_u32 %s, 4" % s(sW))
a("s_cbranch_scc1 Lsetup_main_hi")
a("s_add_u32 s13, %s, 8" % s(sCg))
hp_params(13)
tile_base(vWb, 11, 12)
a("s_lshl_b32 s13, %s, 2" % s(sCg))
gu_params(13)
tile_base(vWb + 1, 11, 12)
a("s_mov_b32 s13, 3584")
a("s_lshl_b32 s14, %s, 8" % s(sJ))
a("s_add_u32 s14, s14, 128")
dma_voff(vDA, 13, 14, 2)
a("s_mov_b32 s13, 2688")
a("s_mul_i32 s14, %s, 112" % s(sJ))
dma_voff(vDB, 13, 14, 0)
a("s_mov_b32 %s, %d" % (s(sSA), 32 * 3584))
a("s_mov_b32 %s, %d" % (s(sSB), 32 * 2688))
a("s_waitcnt lgkmcnt(0)")
srd(rA, pWU, WG_BYTES)
srd(rB, pQKV, QKV_BYTES)
a("s_branch Lsetup_lo")
a.label("Lsetup_main_hi")
for c in range(3):
    a("s_lshl_b32 s13, %s, 2" % s(sCg))
    a("s_sub_u32 s13, s13, %d" % (7 - c))
    gu_params(13)
    tile_base(vWb + c, 11, 12)
a("s_mov_b32 s13, 3584")
a("s_lshl_b32 s14, %s, 8" % s(sJ))
dma_voff(vDA, 13, 14, 0)
dma_voff(vDC, 13, 14, 2)
a("v_add_u32 %s, 128, %s" % (v(vDB), v(vDA)))
for x in (sSA, sSB, sSC):
    a("s_mov_b32 %s, %d" % (s(x), 32 * 3584))
a("s_waitcnt lgkmcnt(0)")
srd(rA, pWG, WG_BYTES)
srd(rB, pWG, WG_BYTES)
srd(rC, pWU, WG_BYTES)
a("s_branch Lsetup_hi")
a.label("Lsetup_qkv")
a("s_sub_u32 s15, %s, 14" % s(sJ))
a("s_mul_i32 s15, s15, 560")
a("s_add_u32 s15, s15, %d" % (14 * 112))
a("s_mov_b32 s38, 2688")
a("s_cmp_ge_u32 %s, 4" % s(sW))
a("s_cbranch_scc1 Lsetup_qkv_hi")
for c in range(2):
    a("s_lshl_b32 s13, %s, 1" % s(sCg))
    a("s_add_u32 s13, s13, %d" % c)
    hp_params(13)
    tile_base(vWb + c, 11, 12)
a("s_add_u32 s14, s15, 336")
dma_voff(vDA, 38, 14, 0)
a("v_add_u32 %s, 112, %s" % (v(vDB), v(vDA)))
for x in (sSA, sSB):
    a("s_mov_b32 %s, %d" % (s(x), 32 * 2688))
a("s_waitcnt lgkmcnt(0)")
srd(rA, pQKV, QKV_BYTES)
srd(rB, pQKV, QKV_BYTES)
a("s_branch Lsetup_lo")
a.label("Lsetup_qkv_hi")
for c in range(3):
    a("s_mul_i32 s13, %s, 3" % s(sCg))
    a("s_sub_u32 s13, s13, %d" % (2 - c))
    hp_params(13)
    tile_base(vWb + c, 11, 12)
dma_voff(vDA, 38, 15, 0)
a("v_add_u32 %s, 112, %s" % (v(vDB), v(vDA)))
a("v_add_u32 %s, 224, %s" % (v(vDC), v(vDA)))
for x in (sSA, sSB, sSC):
    a("s_mov_b32 %s, %d" % (s(x), 32 * 2688))
a("s_waitcnt lgkmcnt(0)")
srd(rA, pQKV, QKV_BYTES)
srd(rB, pQKV, QKV_BYTES)
srd(rC, pQKV, QKV_BYTES)
a("s_branch Lsetup_hi")

ACC = 128
XS, WS_ = (64, 84), (72, 92)


def gate_load():
    srd(rT, pGW, 896)
    a("v_lshlrev_b32 v27, 1, v0")
    a("buffer_load_ushort v30, v27, %s, 0 offen" % s(rT, 4))


def common_setup():
    a("v_bfe_u32 v27, v0, 4, 1")
    a("v_lshlrev_b32 v28, 11, v27")
    a("v_lshrrev_b32 v27, 8, v0")
    a("v_lshl_add_u32 v28, v27, 10, v28")
    a("v_bfe_u32 v27, v0, 2, 1")
    a("v_lshl_add_u32 v28, v27, 9, v28")
    a("v_bfe_u32 v27, v0, 5, 3")
    a("v_lshl_add_u32 v28, v27, 6, v28")
    a("v_bfe_u32 v27, v0, 3, 1")
    a("v_lshl_add_u32 v28, v27, 5, v28")
    a("v_and_b32 v27, 3, v0")
    a("v_lshl_add_u32 v28, v27, 3, v28")
    a("v_add_u32 v28, %d, v28" % TB)
    a("v_mov_b32 v31, 0")
    srd(rWS, pWS, WS_BYTES)
    a("s_mov_b32 %s, %d" % (s(sWr), WB))
    a("s_mov_b32 %s, 0" % s(sXs))
    a("s_mov_b32 %s, 32768" % s(sXp))
    a("s_mov_b32 %s, 256" % s(sXo))
    a("s_mov_b32 %s, %d" % (s(sTr), TB))
    a("s_mov_b32 %s, 0" % s(sIt))


def addr_update(ncol, lo, par):
    a("s_or_b32 %s, %s, %d" % (s(sX0), s(sXs), 64 * par))
    for c in range(ncol):
        a("v_add_u32 %s, %s, %s" % (v(vWa + c), s(sWr), v(vWb + c)))
    a("v_xor_b32 %s, %s, %s" % (v(vXa0), s(sX0), v(vXb)))
    if lo:
        a("v_add_u32 v27, %s, %s" % (s(sTr), v(vTb)))
        a("v_cndmask_b32 %s, %s, v27, %s" % (v(vWa), v(vWa), s(mT, 2)))
    a("v_xor_b32 %s, 32, %s" % (v(vXa1), v(vXa0)))


def reads(ncol, st, ks):
    xa = vXa0 if ks == 0 else vXa1
    r = []
    rx = lambda rt: "ds_read_b128 %s, %s offset:%d" % (v(XS[st] + 4 * rt, 4), v(xa), 4096 * rt)
    rw = lambda c, jj: "ds_read_b64_tr_b16 %s, %s offset:%d" % (v(WS_[st] + 4 * c + 2 * jj, 2), v(vWa + c), 2048 * ks + 512 * jj)
    r += [rx(0), rw(0, 0), rw(0, 1), rx(1)]
    for c in range(1, ncol):
        r += [rw(c, 0), rw(c, 1)]
    return r


def mm(ncol, st, vor):
    out = []
    for c in range(ncol):
        for rt in range(2):
            d = ACC + 32 * c + 16 * rt
            W, X = WS_[st] + 4 * c, XS[st] + 4 * rt
            A, B = (X, W) if vor else (W, X)
            out.append("v_mfma_f32_32x32x16_bf16 %s, %s, %s, %s" % (v(d, 16), v(A, 4), v(B, 4), v(d, 16)))
    return out


def dma_lines(vo, r, so, m0src, m0add):
    return ["s_add_u32 m0, %s, %d" % (s(m0src), m0add), "s_nop 0",
            "buffer_load_dwordx4 %s, %s, %s offen lds" % (v(vo), s(r, 4), s(so))]


def step_dmas(lo, par):
    if lo:
        g = []
        pre = ["s_add_u32 s11, %s, %d" % (s(sXo), par * 57344)]
        g.append(pre + dma_lines(vDC, rC, 11, sOC, par * 8192))
        g.append(dma_lines(vDC2, rC, 11, sOC, par * 8192 + 1024))
        g.append(dma_lines(vDA, rA, sOA, sWd, 3 * 4096) + ["s_add_u32 %s, %s, %s" % (s(sOA), s(sOA), s(sSA))])
        g.append(dma_lines(vDB, rB, sOB, sWd, 4 * 4096) + ["s_add_u32 %s, %s, %s" % (s(sOB), s(sOB), s(sSB))])
        return g
    return [dma_lines(vd, r, sOA, sWd, 4096 * i) + (["s_add_u32 %s, %s, %s" % (s(sOA), s(sOA), s(sSA))] if i == 2 else [])
            for i, (vd, r) in enumerate(((vDA, rA), (vDB, rB), (vDC, rC)))]


def state_advance(lo, par):
    a("s_add_u32 %s, %s, s15" % (s(sWd), s(sWr)))
    a("s_add_u32 %s, %s, %d" % (s(sWr), s(sWr), WSLOT))
    a("s_cmp_eq_u32 %s, %d" % (s(sWr), WB + 5 * WSLOT))
    a("s_cselect_b32 %s, %d, %s" % (s(sWr), WB, s(sWr)))
    if lo:
        a("s_add_u32 %s, %s, 64" % (s(sTr), s(sTr)))
    if par == 1:
        if lo:
            a("s_add_u32 %s, %s, s14" % (s(sOC), s(sXs)))
            a("s_add_u32 %s, %s, 128" % (s(sXo), s(sXo)))
            a("s_cmp_ge_u32 %s, %d" % (s(sXo), 7 * 128))
            a("s_cselect_b32 %s, 0x40000000, %s" % (s(sXo), s(sXo)))
            a("s_cmp_eq_u32 %s, %d" % (s(sTr), TB + 512))
            a("s_cselect_b32 %s, %d, %s" % (s(sTr), TB + 1024, s(sTr)))
        a("s_add_u32 %s, %s, 16384" % (s(sXs), s(sXs)))
        a("s_cmp_eq_u32 %s, 49152" % s(sXs))
        a("s_cselect_b32 %s, 0, %s" % (s(sXs), s(sXs)))


def interleave(ms, fill):
    for i, m in enumerate(ms):
        a(m)
        if i < len(fill):
            for x in fill[i]:
                a(x)
    for g in fill[len(ms):]:
        for x in g:
            a(x)


def kloop(tag, lo, vor):
    ncol = 2 if lo else 3
    nvm = 10 if lo else 9
    top, mid = "Lk_%s" % tag, "Lkm_%s" % tag
    addr_update(ncol, lo, 0)
    a("s_waitcnt vmcnt(%d) lgkmcnt(0)" % nvm)
    a("s_barrier")
    stamp(2)
    for x in reads(ncol, 0, 0):
        a(x)
    d0 = step_dmas(lo, 0)
    for g in d0[:2]:
        for x in g:
            a(x)
    a("s_branch %s" % mid)
    a(".p2align 5")
    a.label(top)
    for par in range(2):
        d = step_dmas(lo, par)
        a("s_waitcnt vmcnt(%d) lgkmcnt(0)" % nvm)
        a("s_barrier")
        r = reads(ncol, 0, 0)
        fill = [r[2 * i:2 * i + 2] for i in range(len(r) // 2)] + d[:2]
        interleave(mm(ncol, 1, vor), fill)
        if par == 0:
            a.label(mid)
        a("s_waitcnt lgkmcnt(0)")
        r = reads(ncol, 1, 1)
        fill = [r[2 * i:2 * i + 2] for i in range(len(r) // 2)] + d[2:]
        interleave(mm(ncol, 0, vor), fill)
        state_advance(lo, par)
        addr_update(ncol, lo, 1 - par)
    a("s_add_u32 %s, %s, 1" % (s(sIt), s(sIt)))
    a("s_cmp_lt_u32 %s, 7" % s(sIt))
    a("s_cbranch_scc1 %s" % top)
    a("s_waitcnt lgkmcnt(0)")
    for m in mm(ncol, 1, vor):
        a(m)


a.label("Lsetup_lo")
srd(rC, pX, X_BYTES)
a("s_lshl_b32 s11, %s, 7" % s(sM))
a("s_lshl_b32 s12, %s, 4" % s(sW))
a("s_add_u32 s11, s11, s12")
a("v_add_u32 v27, s11, v16")
a("v_mul_u32_u24 v27, 896, v27")
a("v_lshrrev_b32 v28, 1, v16")
a("v_xor_b32 v28, v28, v17")
a("v_lshl_add_u32 %s, v28, 4, v27" % v(vDC))
a("v_xor_b32 v28, 4, v28")
a("v_lshl_add_u32 %s, v28, 4, v27" % v(vDC2))
a("v_add_u32 %s, %d, %s" % (v(vDC2), 8 * 896, v(vDC2)))
a("s_lshl_b32 s15, %s, 10" % s(sW))
a("s_lshl_b32 s14, %s, 11" % s(sW))
a("s_mov_b32 %s, 0" % s(sOA))
a("s_mov_b32 %s, 0" % s(sOB))
gate_load()
stamp(0)
for st in range(4):
    X, par = st >> 1, st & 1
    a("s_mov_b32 s11, %d" % (X * 128 + par * 57344))
    for x in dma_lines(vDC, rC, 11, 14, X * 16384 + par * 8192) + dma_lines(vDC2, rC, 11, 14, X * 16384 + par * 8192 + 1024):
        a(x)
    for x in dma_lines(vDA, rA, sOA, 15, WB + st * WSLOT + 3 * 4096) + dma_lines(vDB, rB, sOB, 15, WB + st * WSLOT + 4 * 4096):
        a(x)
    a("s_add_u32 %s, %s, %s" % (s(sOA), s(sOA), s(sSA)))
    a("s_add_u32 %s, %s, %s" % (s(sOB), s(sOB), s(sSB)))
common_setup()
a("s_add_u32 %s, s15, %d" % (s(sWd), WB + 4 * WSLOT))
a("s_add_u32 %s, s14, 32768" % s(sOC))
for i in range(64):
    a("v_mov_b32 %s, 0" % v(ACC + i))
a("v_mov_b32 v27, %d" % CNT)
a("ds_write_b32 v27, v31")
a("s_waitcnt vmcnt(16)")
a("ds_write_b64 v28, v[30:31]")
stamp(1)
a("s_cmp_eq_u32 %s, 15" % s(sJ))
a("s_cbranch_scc1 Lk_lo_v_entry")
kloop("lo_t", True, False)
a("s_branch Lepi_lo_t")
a.label("Lk_lo_v_entry")
kloop("lo_v", True, True)
a("s_branch Lepi_lo_v")

a.label("Lsetup_hi")
a("s_and_b32 s15, %s, 3" % s(sW))
a("s_lshl_b32 s15, s15, 10")
a("s_mov_b32 %s, 0" % s(sOA))
srd(rWS, pWS, WS_BYTES)
a("s_lshl_b32 s11, s2, 3")
a("s_add_u32 s11, s11, %s" % s(sW))
a("v_mov_b32 v32, %d" % E_OFF)
a("s_cmp_lg_u32 s11, 7")
a("s_cbranch_scc1 Lno_nonce1")
a("buffer_load_dword v33, v32, %s, 0 offen sc1" % s(rWS, 4))
a.label("Lno_nonce1")
gate_load()
stamp(0)
for st in range(4):
    for i, (vd, r) in enumerate(((vDA, rA), (vDB, rB), (vDC, rC))):
        for x in dma_lines(vd, r, sOA, 15, WB + st * WSLOT + i * 4096):
            a(x)
    a("s_add_u32 %s, %s, %s" % (s(sOA), s(sOA), s(sSA)))
common_setup()
a("s_add_u32 %s, s15, %d" % (s(sWd), WB + 4 * WSLOT))
for i in range(96):
    a("v_mov_b32 %s, 0" % v(ACC + i))
a("s_waitcnt vmcnt(12)")
a("ds_write_b64 v28, v[30:31]")
a("s_lshl_b32 s11, s2, 3")
a("s_add_u32 s11, s11, %s" % s(sW))
a("s_cmp_lg_u32 s11, 7")
a("s_cbranch_scc1 Lno_nonce2")
srd(rT, pDBG, 256)
a("v_add_u32 v33, 1, v33")
a("v_or_b32 v33, 0x80000000, v33")
a("s_mov_b64 exec, 1")
a("buffer_store_dword v33, v32, %s, 0 offen sc1" % s(rWS, 4))
a("buffer_store_dword v33, %s, %s, 0 offen sc1" % (v(vZero), s(rT, 4)))
a("s_mov_b64 exec, -1")
a.label("Lno_nonce2")
stamp(1)
a("s_cmp_ge_u32 %s, 14" % s(sJ))
a("s_cbranch_scc1 Lk_hi_v_entry")
kloop("hi_t", False, False)
a("s_branch Lepi_hi_t")
a.label("Lk_hi_v_entry")
kloop("hi_v", False, True)
a("s_branch Lepi_hi_v")

vNon, vFA, vFT = 240, 241, 242


def nonce_load():
    srd(rT, pDBG, 256)
    a("buffer_load_dword %s, %s, %s, 0 offen sc1" % (v(vNon), v(vZero), s(rT, 4)))


def gelu_tile(acc, vc, dst):
    T = 48
    for p in range(4):
        a("v_pk_mul_f32 %s, %s, %s" % (v(T + 2 * p, 2), v(acc + 2 * p, 2), v(acc + 2 * p, 2)))
    for p in range(4):
        a("v_pk_fma_f32 %s, %s, %s, %s op_sel:[0,0,1] op_sel_hi:[1,0,1]" % (v(T + 2 * p, 2), v(T + 2 * p, 2), s(kG, 2), s(kG, 2)))
    for p in range(4):
        a("v_pk_mul_f32 %s, %s, %s" % (v(T + 2 * p, 2), v(T + 2 * p, 2), v(acc + 2 * p, 2)))
    for i in range(8):
        a("v_exp_f32 %s, %s" % (v(T + i), v(T + i)))
    for p in range(4):
        a("v_pk_mul_f32 %s, %s, %s" % (v(acc + 8 + 2 * p, 2), v(acc + 8 + 2 * p, 2), v(acc + 2 * p, 2)))
    for p in range(4):
        a("v_pk_fma_f32 %s, %s, %s, %s op_sel_hi:[1,0,0]" % (v(T + 2 * p, 2), v(T + 2 * p, 2), v(vc, 2), v(vc, 2)))
    for i in range(8):
        a("v_rcp_f32 %s, %s" % (v(T + i), v(T + i)))
    a("s_nop 0")
    for p in range(4):
        a("v_pk_mul_f32 %s, %s, %s" % (v(acc + 8 + 2 * p, 2), v(acc + 8 + 2 * p, 2), v(T + 2 * p, 2)))
    for p in range(4):
        a("v_cvt_pk_bf16_f32 %s, %s, %s" % (v(dst + p), v(acc + 8 + 2 * p), v(acc + 9 + 2 * p)))


def qk_tile(acc, vpad, vaddr, so, dst):
    for p in range(8):
        a("v_pk_mul_f32 %s, %s, %s op_sel_hi:[1,0]" % (v(acc + 2 * p, 2), v(acc + 2 * p, 2), s(kS, 2)))
    for p in range(8):
        a("v_cvt_pk_bf16_f32 %s, %s, %s" % (v(dst + p), v(acc + 2 * p), v(acc + 2 * p + 1)))
    a("v_cndmask_b32 %s, %s, %s, %s" % (v(dst + 6), v(dst + 6), v(vpad), s(mHI, 2)))
    a("v_cndmask_b32 %s, %s, %s, %s" % (v(dst + 7), v(dst + 7), v(vZero), s(mHI, 2)))
    a("buffer_store_dwordx4 %s, %s, %s, %s offen sc1" % (v(dst, 4), v(vaddr), s(rWS, 4), s(so)))
    a("buffer_store_dwordx4 %s, %s, %s, %s offen offset:1024 sc1" % (v(dst + 4, 4), v(vaddr), s(rWS, 4), s(so)))


def v_tile(acc, so, dst):
    for p in range(8):
        a("v_cvt_pk_bf16_f32 %s, %s, %s" % (v(dst + p), v(acc + 2 * p), v(acc + 2 * p + 1)))
    for p in range(8):
        a("v_cndmask_b32 %s, %s, v29, %s" % (v(dst + p), v(dst + p), s(sP, 2)))
    a("buffer_store_dwordx4 %s, %s, %s, %s offen offset:2048 sc1" % (v(dst, 4), v(vL16), s(rWS, 4), s(so)))
    a("buffer_store_dwordx4 %s, %s, %s, %s offen offset:3072 sc1" % (v(dst + 4, 4), v(vL16), s(rWS, 4), s(so)))


def v_prep():
    a("s_mov_b32 %s, 0xf0000000" % s(sP))
    a("s_mov_b32 %s, 0xf0000000" % s(sP + 1))
    a("v_and_b32 v28, 31, %s" % v(vLane))
    a("v_cmp_eq_u32 vcc, 28, v28")
    a("v_mov_b32 v27, 0x3f803f80")
    a("s_nop 0")
    a("v_cndmask_b32 v29, %s, v27, vcc" % v(vZero))


def tile_index(sd):
    a("s_lshl_b32 %s, %s, 1" % (s(sd), s(sM)))
    a("s_add_u32 %s, %s, %s" % (s(sd), s(sd), s(sHalf)))
    a("s_lshl_b32 %s, %s, 1" % (s(sd), s(sd)))


def fq_addr(sHp):
    a("s_lshl_b32 s11, %s, 5" % s(sHp))
    a("s_lshl_b32 s12, %s, 1" % s(sM))
    a("s_add_u32 s11, s11, s12")
    a("s_add_u32 s11, s11, %s" % s(sHalf))
    a("s_lshl_b32 s11, s11, 7")
    a("s_add_u32 s11, s11, 0x%x" % FQ_OFF)
    a("v_lshl_add_u32 %s, %s, 12, s11" % (v(vFA), v(vLane)))


def fh_addr():
    a("s_lshl_b32 s11, %s, 1" % s(sM))
    a("s_add_u32 s11, s11, %s" % s(sHalf))
    a("s_lshl_b32 s11, s11, 4")
    a("s_add_u32 s11, s11, %s" % s(sJ))
    a("s_lshl_b32 s11, s11, 2")
    a("s_add_u32 s11, s11, %s" % s(sCg))
    a("s_lshl_b32 s11, s11, 7")
    a("s_add_u32 s11, s11, 0x%x" % FH_OFF)
    a("v_mov_b32 %s, s11" % v(vFA))


def h_base(sd, sTile):
    tile_index(sd)
    a("s_mul_i32 %s, %s, 114688" % (s(sd), s(sd)))
    a("s_lshl_b32 s11, %s, 3" % s(sJ))
    a("s_add_u32 s11, s11, %s" % s(sTile))
    a("s_lshl_b32 s11, s11, 10")
    a("s_add_u32 %s, %s, s11" % (s(sd), s(sd)))
    a("s_add_u32 %s, %s, 0x%x" % (s(sd), s(sd), H_OFF))


a.label("Lepi_lo_t")
stamp(3)
nonce_load()
a("s_lshl_b32 s13, %s, 1" % s(sJ))
a("s_add_u32 s13, s13, %s" % s(sCg))
a("s_lshl_b32 s14, %s, 1" % s(sCg))
a("s_add_u32 s14, s14, 28")
a("s_cmp_ge_u32 %s, 14" % s(sJ))
a("s_cselect_b32 s38, s14, s13")
tile_index(39)
a("s_cmp_lt_u32 s38, 16")
a("s_cselect_b32 %s, 0x%x, 0x3f800000" % (s(kS), f2u(math.log2(math.e) / math.sqrt(28.0))))
a("s_cselect_b32 s13, 0xffff, 0")
a("s_cselect_b32 s14, 0, 12")
a("s_cselect_b32 s15, 11, 12")
a("s_cselect_b32 s11, 0x%x, %d" % (Q_OFF, KV_OFF))
a("s_and_b32 s12, s38, 15")
a("s_lshl_b32 s12, s12, 6")
a("s_add_u32 s12, s12, s39")
a("s_lshl_b32 s12, s12, s15")
a("s_add_u32 %s, s11, s12" % s(sOA))
a("s_lshl_b32 s12, 1, s15")
a("s_add_u32 %s, %s, s12" % (s(sOB), s(sOA)))
a("v_lshrrev_b32 v27, 1, %s" % v(vLane))
a("v_xor_b32 v27, v27, %s" % v(vLane))
a("v_bfe_u32 v27, v27, 2, 1")
a("v_mul_u32_u24 v27, s14, v27")
a("v_xor_b32 v27, v27, %s" % v(vLane))
a("v_lshlrev_b32 v26, 4, v27")
a("v_mov_b32 v16, %s" % v(ACC + 12))
a("v_mov_b32 v17, %s" % v(ACC + 16 + 12))
a("s_nop 1")
a("v_permlane32_swap_b32 v16, v17")
a("s_nop 1")
a("v_cvt_pk_bf16_f32 v17, v17, v17")
a("v_and_b32 v17, 0xffff0000, v17")
a("v_mul_f32 v17, 0x%x, v17" % f2u(-math.log2(math.e)))
a("v_exp_f32 v17, v17")
a("s_nop 0")
a("v_add_f32 v17, 1.0, v17")
a("v_rcp_f32 v17, v17")
a("s_nop 0")
a("v_cvt_pk_bf16_f32 v18, v17, v17")
a("v_and_b32 v17, 0xffff0000, v18")
a("v_sub_f32 v17, 1.0, v17")
a("v_cvt_pk_bf16_f32 v17, v17, v17")
a("v_and_b32 v17, 0xffff0000, v17")
a("v_rcp_f32 v20, v17")
a("v_and_b32 v18, s13, v18")
a("v_min_f32 v20, 0x7f000000, v20")
a("s_lshl_b32 s11, %s, 8" % s(sHalf))
a("s_add_u32 s11, s11, %d" % EX)
a("v_lshl_add_u32 v27, %s, 2, s11" % v(vLane))
a("ds_write_b32 v27, v20")
a("v_mov_b32 v19, v18")
a("v_mov_b32 v22, v20")
a("s_nop 1")
a("v_permlane32_swap_b32 v18, v19")
a("v_permlane32_swap_b32 v20, v22")
qk_tile(ACC, 18, 26, sOA, 32)
qk_tile(ACC + 16, 19, 26, sOB, 40)
a("s_cmp_ge_u32 %s, 14" % s(sJ))
a("s_cbranch_scc1 Lepi_lo_k2")
a("s_waitcnt vmcnt(5) lgkmcnt(0)")
a("s_barrier")
gelu_tile(ACC + 32, 20, 32)
gelu_tile(ACC + 48, 22, 36)
fq_addr(38)
a("s_lshl_b32 s13, %s, 2" % s(sCg))
h_base(sOA, 13)
a("s_add_u32 %s, %s, 114688" % (s(sOB), s(sOA)))
a("s_waitcnt vmcnt(0)")
get_nonce(vNon, vFT)
flag_store(vFA, vFT)
stamp(4)
a("buffer_store_dwordx4 v[32:35], %s, %s, %s offen sc1" % (v(vL16), s(rWS, 4), s(sOA)))
a("buffer_store_dwordx4 v[36:39], %s, %s, %s offen sc1" % (v(vL16), s(rWS, 4), s(sOB)))
fh_addr()
a("s_waitcnt vmcnt(0)")
flag_store(vFA, vFT)
a("s_branch Lattn")
a.label("Lepi_lo_k2")
a("s_add_u32 %s, %s, 0x40000" % (s(sOA), s(sOA)))
a("s_add_u32 %s, %s, 0x40000" % (s(sOB), s(sOB)))
qk_tile(ACC + 32, vZero, 26, sOA, 48)
qk_tile(ACC + 48, vZero, 26, sOB, 56)
a("s_waitcnt vmcnt(9) lgkmcnt(0)")
a("s_barrier")
fq_addr(38)
a("s_waitcnt vmcnt(0)")
get_nonce(vNon, vFT)
flag_store(vFA, vFT, 2)
stamp(4)
a("s_branch Lattn")


def v_epilogue(ncol):
    tile_index(39)
    v_prep()
    a("s_sub_u32 s12, s38, 32")
    a("s_lshl_b32 s12, s12, 6")
    a("s_add_u32 s12, s12, s39")
    a("s_lshl_b32 %s, s12, 12" % s(sOA))
    a("s_add_u32 %s, %s, 4096" % (s(sOB), s(sOA)))
    a("s_nop 3")
    for c in range(ncol):
        v_tile(ACC + 32 * c, sOA, 32 + 16 * (c & 1))
        v_tile(ACC + 32 * c + 16, sOB, 40 + 16 * (c & 1))
        if c + 1 < ncol:
            a("s_add_u32 %s, %s, 0x40000" % (s(sOA), s(sOA)))
            a("s_add_u32 %s, %s, 0x40000" % (s(sOB), s(sOB)))
    a("s_waitcnt vmcnt(%d)" % (4 * ncol + 1))
    a("s_barrier")
    fq_addr(38)
    a("s_waitcnt vmcnt(0)")
    get_nonce(vNon, vFT)
    flag_store(vFA, vFT, ncol)
    stamp(4)


a.label("Lepi_lo_v")
stamp(3)
nonce_load()
a("s_lshl_b32 s38, %s, 1" % s(sCg))
a("s_add_u32 s38, s38, 38")
v_epilogue(2)
a("s_branch Lattn")

vDd, vDr, vH1 = 226, 227, 229


def d_prefetch():
    skip = L("nopf")
    a("s_cmp_eq_u32 %s, 0" % s(sFin))
    a("s_cbranch_scc1 %s" % skip)
    srd(rWD, pWD, 1792 * 896)
    srd(rWO, pWO, 448 * 896)
    a("v_lshrrev_b32 v16, 3, %s" % v(vLane))
    a("v_and_b32 v17, 7, %s" % v(vLane))
    a("v_bfe_u32 v18, v16, 1, 1")
    a("v_lshlrev_b32 v18, 2, v18")
    a("v_xor_b32 v18, v18, v17")
    a("v_lshlrev_b32 v18, 4, v18")
    a("v_mul_u32_u24 v16, 896, v16")
    a("s_lshl_b32 s11, %s, 7" % s(sT))
    a("v_add3_u32 %s, v16, v18, s11" % v(vDd))
    a("s_and_b32 s12, %s, 3" % s(sW))
    a("s_mul_i32 %s, s12, %d" % (s(sOC), 448 * 896))
    a("s_mul_i32 %s, s12, %d" % (s(sWd), DREG))
    a("s_add_u32 %s, %s, %d" % (s(sWd), s(sWd), DB))
    for n in range(26):
        for x in dma_lines(vDd, rWD, sOC, sWd, 1024 * n):
            a(x)
        a("s_add_u32 %s, %s, 7168" % (s(sOC), s(sOC)))
    a.label(skip)


a.label("Lepi_hi_v")
stamp(3)
nonce_load()
a("s_mul_i32 s38, %s, 10" % s(sJ))
a("s_mul_i32 s11, %s, 3" % s(sCg))
a("s_add_u32 s38, s38, s11")
a("s_sub_u32 s38, s38, %d" % (140 + 6 - 32))
v_epilogue(3)
d_prefetch()
a("s_branch Ldown")

a.label("Lepi_hi_t")
stamp(3)
nonce_load()
a("s_lshl_b32 s11, %s, 8" % s(sHalf))
a("s_add_u32 s11, s11, %d" % EX)
a("v_and_b32 v27, 31, %s" % v(vLane))
a("v_lshl_add_u32 v27, v27, 2, s11")
a("s_lshl_b32 s13, %s, 2" % s(sCg))
a("s_sub_u32 s13, s13, 7")
h_base(sOA, 13)
a("s_add_u32 %s, %s, 114688" % (s(sOB), s(sOA)))
a("s_waitcnt vmcnt(0)")
a("s_barrier")
a("ds_read_b32 v20, v27")
a("ds_read_b32 v22, v27 offset:128")
d_prefetch()
a("s_waitcnt lgkmcnt(0)")
for c in range(3):
    for rt in range(2):
        d = 32 + 4 * rt + 8 * (c & 1)
        gelu_tile(ACC + 32 * c + 16 * rt, 20 + 2 * rt, d)
        a("buffer_store_dwordx4 %s, %s, %s, %s offen offset:%d sc1" % (v(d, 4), v(vL16), s(rWS, 4), s((sOA, sOB)[rt]), 1024 * c))
fh_addr()
a("s_waitcnt vmcnt(0)")
get_nonce(vNon, vFT)
flag_store(vFA, vFT)
stamp(4)
a("s_branch Ldown")

Q, O, S_, KV, vIdx = 0, 32, 96, 160, 224
sKV, sQb = sOA, sOB


def kvload(b, part, so=None):
    so = sKV if so is None else so
    for i in range(2):
        a("buffer_load_dwordx4 %s, %s, %s, %s offen offset:%d sc1" % (
            v(KV + 16 * b + 8 * part + 4 * i, 4), v(vL16), s(rWS, 4), s(so), 2048 * part + 1024 * i))


def qk(n, half):
    kt, u = n >> 2, n & 3
    K = KV + 16 * (kt & 3) + 4 * half
    d = S_ + 16 * u
    return "v_mfma_f32_32x32x16_bf16 %s, %s, %s, %s" % (v(d, 16), v(K, 4), v(Q + 8 * u + 4 * half, 4), v(d, 16) if half else "0")


def pv(n, half):
    kt, u = n >> 2, n & 3
    V = KV + 16 * (kt & 3) + 8 + 4 * half
    return "v_smfmac_f32_32x32x32_bf16 %s, %s, %s, %s" % (v(O + 16 * u, 16), v(V, 4), v(S_ + 16 * u + 8 * half, 8), v(vIdx))


def slot(n, last=False, extra=None):
    u = n & 3
    extra = extra or {}
    e = ["v_exp_f32 %s, %s" % (v(S_ + 16 * u + i), v(S_ + 16 * u + i)) for i in range(16)]
    if not last:
        seq = [qk(n + 1, 0)] + e[0:3] + [qk(n + 1, 1)] + e[3:6]
    else:
        seq = e[0:6]
    seq += [pv(n - 1, 0)] + e[6:9] + [pv(n - 1, 1)] + e[9:16]
    for i, x in enumerate(seq):
        for y in extra.get(i, []):
            a(y)
        a(x)


a.label("Lattn")
a("s_setprio 2")
a("s_lshl_b32 s11, %s, 3" % s(sW))
a("v_and_b32 v16, 7, %s" % v(vLane))
a("v_add_u32 v16, s11, v16")
a("v_bfe_u32 v17, %s, 3, 1" % v(vLane))
a("v_lshlrev_b32 v17, 4, v17")
a("s_add_u32 s12, %s, 16" % s(sH))
a("v_add_u32 v17, s12, v17")
a("v_lshl_add_u32 v16, v17, 5, v16")
a("s_lshl_b32 s11, %s, 5" % s(sH))
a("s_lshl_b32 s12, %s, 1" % s(sMA))
a("s_add_u32 s11, s11, s12")
a("v_and_b32 v17, 1, %s" % v(vLane))
a("v_add_u32 v17, s11, v17")
a("v_cmp_gt_u32 vcc, 16, %s" % v(vLane))
a("s_mov_b32 s11, 0x%x" % FQ_OFF)
a("s_nop 0")
a("v_cndmask_b32 v16, v17, v16, vcc")
a("v_lshl_add_u32 %s, v16, 7, s11" % v(vFA))
for i in range(64):
    a("v_mov_b32 %s, 0" % v(O + i))
for i in range(16):
    a("v_mov_b32 %s, 0" % v(S_ + 48 + i))
for i in range(8):
    a("v_mov_b32 %s, 0" % v(KV + 48 + 8 + i))
a("v_mov_b32 %s, 0xdddd" % v(vIdx))
a("s_lshl_b32 s11, %s, 6" % s(sH))
a("s_lshl_b32 s12, %s, 4" % s(sW))
a("s_add_u32 s12, s12, s11")
a("s_lshl_b32 %s, s12, 12" % s(sKV))
a("s_lshl_b32 s12, %s, 2" % s(sMA))
a("s_add_u32 s11, s11, s12")
a("s_lshl_b32 s11, s11, 11")
a("s_add_u32 %s, s11, 0x%x" % (s(sQb), Q_OFF))
poll(vFA, vFT)
stamp(5)
kvload(0, 0)
for u in range(4):
    a("s_add_u32 s11, %s, %d" % (s(sW), u + 1))
    a("s_and_b32 s11, s11, 3")
    a("s_lshl_b32 s11, s11, 11")
    a("s_add_u32 s11, s11, %s" % s(sQb))
    for i in range(2):
        a("buffer_load_dwordx4 %s, %s, %s, s11 offen offset:%d sc1" % (v(Q + 8 * u + 4 * i, 4), v(vL16), s(rWS, 4), 1024 * i))
kvload(0, 1)
for b in (1, 2):
    a("s_add_u32 %s, %s, 4096" % (s(sKV), s(sKV)))
    kvload(b, 0)
    kvload(b, 1)
for u in range(3):
    a("s_add_u32 s11, %s, %d" % (s(sW), u + 1))
    a("s_and_b32 s11, s11, 3")
    a("s_mul_i32 s11, s11, 12288")
    a("s_add_u32 s11, s11, %d" % (PB + 4096 * u))
    a("v_add_u32 %s, s11, %s" % (v(225 + u), v(vL16)))
a("s_mov_b32 %s, 0" % s(sIt))
a("s_waitcnt vmcnt(8)")
stamp(6)
a(qk(0, 0))
a(qk(0, 1))
a("s_nop 10")
a(".p2align 5")
a.label("Lattn_loop")


def kv_extra(kt, loads=True, wait=8):
    b = (kt + 3) & 3
    ex = [{}, {}, {}, {}]
    if loads:
        ld = lambda part, i: "buffer_load_dwordx4 %s, %s, %s, %s offen offset:%d sc1" % (
            v(KV + 16 * b + 8 * part + 4 * i, 4), v(vL16), s(rWS, 4), s(sKV), 2048 * part + 1024 * i)
        ex[0] = {16: ["s_add_u32 %s, %s, 4096" % (s(sKV), s(sKV))]}
        ex[1] = {15: [ld(0, 0)], 17: [ld(0, 1)]}
        ex[2] = {15: [ld(1, 0)], 17: [ld(1, 1)]}
    if wait is not None:
        ex[3] = {0: ["s_waitcnt vmcnt(%d)" % wait]}
    return ex


for kt in range(4):
    ex = kv_extra(kt)
    for u in range(4):
        slot(4 * kt + u, extra=ex[u])
a("s_add_u32 %s, %s, 1" % (s(sIt), s(sIt)))
a("s_cmp_lt_u32 %s, 3" % s(sIt))
a("s_cbranch_scc1 Lattn_loop")
for kt in range(4):
    ex = kv_extra(kt, loads=(kt == 0), wait=(8, 4, 0, None)[kt])
    for u in range(4):
        n = 4 * kt + u
        e = dict(ex[u])
        if kt == 3 and u >= 2:
            for qd in range(4):
                e.setdefault(5 + 2 * qd, []).append(
                    "ds_write_b128 %s, %s offset:%d" % (v(225 + u - 2), v(O + 16 * (u - 2) + 4 * qd, 4), 1024 * qd))
        slot(n, last=(n == 15), extra=e)
a(pv(15, 0))
a("v_mov_b32 v225, %d" % CNT)
a("v_mov_b32 v226, 1")
a("s_mul_i32 s11, %s, 12288" % s(sW))
a(pv(15, 1))
for qd in range(4):
    a("ds_write_b128 %s, %s offset:%d" % (v(227), v(O + 32 + 4 * qd, 4), 1024 * qd))
stamp(7)
a("v_add_u32 v227, s11, %s" % v(vL16))
a("s_waitcnt lgkmcnt(0)")
a("ds_add_u32 v225, v226")
a("s_mov_b32 %s, %d" % (s(sSpin), SPIN_MAX))
a.label("Lasync")
a("ds_read_b32 v226, v225")
a("s_waitcnt lgkmcnt(0)")
a("v_readfirstlane_b32 s11, v226")
a("s_sub_u32 %s, %s, 1" % (s(sSpin), s(sSpin)))
a("s_cbranch_scc1 Lasync_done")
a("s_cmp_lt_u32 s11, 256")
a("s_cbranch_scc1 Lasync")
a.label("Lasync_done")
OW = O + 48
for u in range(3):
    for qd in range(4):
        a("ds_read_b128 %s, v227 offset:%d" % (v(S_ + 16 * u + 4 * qd, 4), PB + 4096 * u + 1024 * qd))
a("s_lshl_b32 s11, %s, 2" % s(sMA))
a("s_add_u32 s11, s11, %s" % s(sW))
a("s_lshl_b32 s12, s11, 4")
a("s_add_u32 s12, s12, %s" % s(sH))
a("s_lshl_b32 s13, s12, 11")
a("s_add_u32 %s, s13, 0x%x" % (s(sOC), O_OFF))
a("s_lshl_b32 s12, s12, 7")
a("s_add_u32 s12, s12, 0x%x" % FO_OFF)
a("v_mov_b32 %s, s12" % v(vFA))
for u in range(3):
    a("s_waitcnt lgkmcnt(%d)" % (8 - 4 * u))
    for p in range(8):
        a("v_pk_add_f32 %s, %s, %s" % (v(OW + 2 * p, 2), v(OW + 2 * p, 2), v(S_ + 16 * u + 2 * p, 2)))
a("v_pk_mul_f32 v[228:229], %s, 0 op_sel_hi:[1,0]" % v(OW, 2))
a("v_pk_mul_f32 v[232:233], %s, 0 op_sel_hi:[1,0]" % v(OW + 2, 2))
for p in range(2, 8):
    t = 228 if p % 2 == 0 else 232
    a("v_pk_fma_f32 %s, %s, 0, %s op_sel_hi:[1,0,1]" % (v(t, 2), v(OW + 2 * p, 2), v(t, 2)))
a("v_subrev_u32 v226, 0x%x, %s" % (f2u(2.0 ** -40), v(OW + 12)))
a("v_pk_add_f32 v[228:229], v[228:229], v[232:233]")
a("v_cmp_lt_u32 vcc, 0x%x, v226" % (f2u(2.0 ** 40) - f2u(2.0 ** -40)))
a("v_cmp_u_f32 %s, v228, v229" % s(sP, 2))
a("s_and_b64 vcc, vcc, %s" % s(mHI, 2))
a("s_or_b64 vcc, vcc, %s" % s(sP, 2))
if FORCE_FB:
    a("s_mov_b64 vcc, -1")
a("s_cbranch_vccnz Lfallback")
a.label("Lnormalize")
a("v_rcp_f32 v225, %s" % v(OW + 12))
a("v_lshlrev_b32 v226, 16, %s" % v(Q + 24 + 6))
a("v_mul_f32 v226, v225, v226")
a("v_mov_b32 v228, v226")
a("s_nop 1")
a("v_permlane32_swap_b32 v226, v228")
a("s_nop 1")
for p in range(8):
    a("v_pk_mul_f32 %s, %s, v[228:229] op_sel_hi:[1,0]" % (v(OW + 2 * p, 2), v(OW + 2 * p, 2)))
for p in range(8):
    a("v_cvt_pk_bf16_f32 %s, %s, %s" % (v(S_ + p), v(OW + 2 * p), v(OW + 2 * p + 1)))
a("v_cndmask_b32 %s, %s, %s, %s" % (v(S_ + 6), v(S_ + 6), v(vZero), s(mHI, 2)))
a("v_cndmask_b32 %s, %s, %s, %s" % (v(S_ + 7), v(S_ + 7), v(vZero), s(mHI, 2)))
a("buffer_store_dwordx4 %s, %s, %s, %s offen sc1" % (v(S_, 4), v(vL16), s(rWS, 4), s(sOC)))
a("buffer_store_dwordx4 %s, %s, %s, %s offen offset:1024 sc1" % (v(S_ + 4, 4), v(vL16), s(rWS, 4), s(sOC)))
for i in range(32):
    a("v_mov_b32 %s, 0" % v(i))
a("s_waitcnt vmcnt(0)")
flag_store(vFA, vFT)
stamp(8)
a("s_cmp_eq_u32 %s, 0" % s(sFin))
a("s_cbranch_scc1 Lexit")
a("s_mov_b32 %s, 1" % s(sHalf))
a("s_branch Ltail")

a.label("Lfallback")
a("s_lshl_b32 %s, %s, 18" % (s(sKV), s(sH)))
a("v_mov_b32 v225, 0xff800000")
a("s_mov_b32 %s, 0" % s(sIt))
a.label("Lfb1")
kvload(0, 0)
a("s_waitcnt vmcnt(0)")
a(qk(3, 0))
a(qk(3, 1))
a("s_nop 11")
for i in range(0, 16, 2):
    a("v_max3_f32 v225, %s, %s, v225" % (v(S_ + 48 + i), v(S_ + 49 + i)))
a("s_add_u32 %s, %s, 4096" % (s(sKV), s(sKV)))
a("s_add_u32 %s, %s, 1" % (s(sIt), s(sIt)))
a("s_cmp_lt_u32 %s, 64" % s(sIt))
a("s_cbranch_scc1 Lfb1")
a("v_mov_b32 v226, v225")
a("s_nop 1")
a("v_permlane32_swap_b32 v225, v226")
a("s_nop 1")
a("v_max_f32 v225, v225, v226")
for i in range(16):
    a("v_mov_b32 %s, 0" % v(OW + i))
a("s_lshl_b32 %s, %s, 18" % (s(sKV), s(sH)))
a("s_mov_b32 %s, 0" % s(sIt))
a.label("Lfb2")
kvload(0, 0)
kvload(0, 1)
a("s_waitcnt vmcnt(0)")
a(qk(3, 0))
a(qk(3, 1))
a("s_nop 11")
for i in range(16):
    a("v_sub_f32 %s, %s, v225" % (v(S_ + 48 + i), v(S_ + 48 + i)))
for i in range(16):
    a("v_exp_f32 %s, %s" % (v(S_ + 48 + i), v(S_ + 48 + i)))
a("s_nop 1")
a(pv(3, 0))
a(pv(3, 1))
a("s_add_u32 %s, %s, 4096" % (s(sKV), s(sKV)))
a("s_add_u32 %s, %s, 1" % (s(sIt), s(sIt)))
a("s_cmp_lt_u32 %s, 64" % s(sIt))
a("s_cbranch_scc1 Lfb2")
a("s_nop 11")
a("s_branch Lnormalize")

DA, HB, WF = 0, 64, 128


def dr_setup():
    a("s_and_b32 s12, %s, 3" % s(sW))
    a("s_mul_i32 s13, s12, %d" % DREG)
    a("s_add_u32 s13, s13, %d" % DB)
    a("v_bfe_u32 v240, %s, 2, 2" % v(vLane))
    a("v_lshrrev_b32 v243, 5, %s" % v(vLane))
    a("v_lshl_add_u32 v243, v243, 2, v240")
    a("v_lshl_add_u32 v243, v243, 7, s13")
    a("v_lshrrev_b32 v240, 1, v240")
    a("v_lshlrev_b32 v240, 6, v240")
    a("v_bfe_u32 v244, %s, 4, 1" % v(vLane))
    a("v_add_u32 v244, s12, v244")
    a("v_and_b32 v245, 3, %s" % v(vLane))
    a("v_lshlrev_b32 v245, 3, v245")
    for ct in range(2):
        a("v_add_u32 v246, %d, v244" % (2 * ct))
        a("v_and_b32 v246, 3, v246")
        a("v_lshl_add_u32 v246, v246, 5, v245")
        a("v_xor_b32 v246, v246, v240")
        a("v_add_u32 %s, v246, v243" % v(vDr + ct))


a.label("Ldown")
a("s_cmp_eq_u32 %s, 0" % s(sFin))
a("s_cbranch_scc1 Lexit")
dr_setup()
a("s_mul_i32 s11, s12, 7")
a("s_lshr_b32 s11, s11, 1")
a("s_lshl_b32 s13, %s, 4" % s(sR))
a("s_add_u32 s11, s11, s13")
a("s_lshl_b32 s11, s11, 9")
a("s_add_u32 s11, s11, 0x%x" % FH_OFF)
a("v_and_b32 v240, 15, %s" % v(vLane))
a("v_lshl_add_u32 %s, v240, 7, s11" % v(vFA))
a("s_mul_i32 s11, %s, 229376" % s(sR))
a("s_mul_i32 s13, s12, 28672")
a("s_add_u32 s11, s11, s13")
a("s_add_u32 %s, s11, 0x%x" % (s(sOA), H_OFF))
a("s_mul_i32 %s, s12, %d" % (s(sOB), 112 * 896))
a("v_add_u32 %s, 114688, %s" % (v(vH1), v(vL16)))
for i in range(64):
    a("v_mov_b32 %s, 0" % v(DA + i))
poll(vFA, vFT)
stamp(5)
vmq = []


def hload(i):
    if i and i % 4 == 0:
        a("s_add_u32 %s, %s, 4096" % (s(sOA), s(sOA)))
    for rt in range(2):
        a("buffer_load_dwordx4 %s, %s, %s, %s offen offset:%d sc1" % (
            v(HB + 8 * (i & 7) + 4 * rt, 4), v((vL16, vH1)[rt]), s(rWS, 4), s(sOA), 1024 * (i & 3)))
        vmq.append(("h", i))


def vm_wait(tags):
    idx = [k for k, t in enumerate(vmq) if t in tags]
    return None if not idx else len(vmq) - 1 - max(idx)


def wreads(dst, off):
    for ct in range(2):
        for jj in range(2):
            a("ds_read_b64_tr_b16 %s, %s offset:%d" % (v(dst + 4 * ct + 2 * jj, 2), v(vDr + ct), off + 1024 * jj))


for i in range(8):
    hload(i)
wreads(WF, 0)
for i in range(28):
    n = vm_wait({("h", i), ("w", i + 1)})
    a("s_waitcnt vmcnt(%d) lgkmcnt(0)" % n)
    if i + 1 < 28:
        wreads(WF + 8 * ((i + 1) & 1), ((i + 1) % 13) * 2048)
    for rt in range(2):
        for ct in range(2):
            mfma(DA + 32 * rt + 16 * ct, WF + 8 * (i & 1) + 4 * ct, HB + 8 * (i & 7) + 4 * rt)
    if i <= 14:
        for e in range(2):
            for x in dma_lines(vDd, rWD, sOC, sWd, (i % 13) * 2048 + 1024 * e):
                a(x)
            a("s_add_u32 %s, %s, 7168" % (s(sOC), s(sOC)))
            vmq.append(("w", i + 13))
    elif i <= 22:
        for e in range(2):
            for x in dma_lines(vDd, rWO, sOB, sWd, (i % 13) * 2048 + 1024 * e):
                a(x)
            a("s_add_u32 %s, %s, 7168" % (s(sOB), s(sOB)))
            vmq.append(("o", i))
    if i + 8 < 28:
        hload(i + 8)
stamp(7)
a("v_add_u32 v240, %s, %s" % (s(sWd), v(vL16)))
a("s_nop 10")
for o in range(4):
    for q in range(2):
        a("ds_write_b128 v240, %s offset:%d" % (v(DA + 32 + 8 * o + 4 * q, 4), (o >> 1) * 20480 + (o & 1) * 2048 + 1024 * q))
a("s_mov_b32 %s, 0" % s(sHalf))
stamp(8)
a("s_branch Ltail2")

OF, WOF, RR = 64, 128, 96
a.label("Ltail")
dr_setup()
a.label("Ltail2")
a("s_and_b32 s12, %s, 3" % s(sW))
a("s_lshl_b32 s11, %s, 1" % s(sR))
a("s_add_u32 s14, s11, %s" % s(sHalf))
a("s_lshl_b32 s11, s14, 2")
a("s_add_u32 s11, s11, s12")
a("s_lshl_b32 s13, s11, 13")
a("s_add_u32 %s, s13, 0x%x" % (s(sOA), O_OFF))
a("s_add_u32 %s, %s, 4096" % (s(sOB), s(sOA)))
a("s_lshl_b32 s11, s11, 9")
a("s_add_u32 s11, s11, 0x%x" % FO_OFF)
a("v_and_b32 v240, 3, %s" % v(vLane))
a("v_lshl_add_u32 %s, v240, 7, s11" % v(vFA))
srd(rOUT, pOUT, 2048 * 896)
a("v_and_b32 v240, 31, %s" % v(vLane))
a("s_lshl_b32 s14, s14, 5")
a("v_add_u32 v240, s14, v240")
a("v_mul_u32_u24 v240, 896, v240")
a("v_lshrrev_b32 v243, 5, %s" % v(vLane))
a("v_lshlrev_b32 v243, 4, v243")
a("s_lshl_b32 s13, %s, 7" % s(sT))
a("s_lshl_b32 s14, s12, 5")
a("s_add_u32 s13, s13, s14")
a("v_add3_u32 v247, v240, v243, s13")
a("s_mul_i32 s15, %s, 24576" % s(sHalf))
for o in range(1, 4):
    a("s_add_u32 s11, s12, %d" % o)
    a("s_and_b32 s11, s11, 3")
    a("s_mul_i32 s11, s11, 6144")
    a("s_add_u32 s11, s11, s15")
    a("s_add_u32 s11, s11, %d" % (PB + 2048 * (o - 1)))
    a("v_add_u32 %s, s11, %s" % (v(232 + o), v(vL16)))
a("s_mul_i32 s11, s12, 6144")
a("s_add_u32 s11, s11, s15")
a("v_add_u32 v232, s11, %s" % v(vL16))
for k in range(4):
    a("s_sub_u32 s11, s12, %d" % k)
    a("s_and_b32 s11, s11, 3")
    a("s_lshr_b32 s13, s11, 1")
    a("s_mul_i32 s13, s13, 20480")
    a("s_and_b32 s11, s11, 1")
    a("s_lshl_b32 s11, s11, 11")
    a("s_add_u32 s11, s11, s13")
    a("s_add_u32 s11, s11, %d" % (DB + k * DREG))
    a("v_add_u32 %s, s11, %s" % (v(236 + k), v(vL16)))
poll(vFA, vFT)
stamp(9)
for k in range(8):
    a("buffer_load_dwordx4 %s, %s, %s, %s offen offset:%d sc1" % (v(OF + 4 * k, 4), v(vL16), s(rWS, 4), s((sOA, sOB)[k >> 2]), 1024 * (k & 3)))
a("s_waitcnt lgkmcnt(0)")
a("s_barrier")
for k in range(8):
    wreads(WOF + 8 * k, 4096 + (28 * (k >> 1) + 16 * (k & 1)) * 128)
    if k in (2, 4, 6):
        a("s_waitcnt lgkmcnt(4)")
for k in range(8):
    a("s_waitcnt vmcnt(%d) lgkmcnt(0)" % (7 - k))
    for ct in range(2):
        mfma(16 * ct, WOF + 8 * k + 4 * ct, OF + 4 * k)
stamp(10)
a("s_nop 11")
for o in range(1, 4):
    for q in range(2):
        a("ds_write_b128 %s, %s offset:%d" % (v(232 + o), v(8 * o + 4 * q, 4), 1024 * q))
a("s_waitcnt lgkmcnt(0)")
a("s_barrier")
for u in range(3):
    for q in range(2):
        a("ds_read_b128 %s, v232 offset:%d" % (v(RR + 8 * u + 4 * q, 4), PB + 2048 * u + 1024 * q))
a("s_cmp_eq_u32 %s, 0" % s(sHalf))
a("s_cbranch_scc1 Lfin_sum")
for k in range(4):
    for q in range(2):
        a("ds_read_b128 %s, %s offset:%d" % (v(WOF + 8 * k + 4 * q, 4), v(236 + k), 1024 * q))
a("s_waitcnt lgkmcnt(0)")
for k in range(4):
    for p in range(4):
        a("v_pk_add_f32 %s, %s, %s" % (v(2 * p, 2), v(2 * p, 2), v(WOF + 8 * k + 2 * p, 2)))
a.label("Lfin_sum")
a("s_waitcnt lgkmcnt(0)")
for u in range(3):
    for p in range(4):
        a("v_pk_add_f32 %s, %s, %s" % (v(2 * p, 2), v(2 * p, 2), v(RR + 8 * u + 2 * p, 2)))
for p in range(4):
    a("v_cvt_pk_bf16_f32 %s, %s, %s" % (v(8 + p), v(2 * p), v(2 * p + 1)))
a("s_nop 1")
a("v_permlane32_swap_b32 v8, v10")
a("v_permlane32_swap_b32 v9, v11")
a("buffer_store_dwordx4 v[8:11], v247, %s, 0 offen" % s(rOUT, 4))
a.label("Lexit")
if PROF:
    stamp(11)
    a("s_lshl_b32 s11, s2, 3")
    a("s_add_u32 s11, s11, %s" % s(sW))
    a("s_lshl_b32 s11, s11, 6")
    a("s_add_u32 s11, s11, 0x%x" % PROF_OFF)
    a("v_lshl_add_u32 v240, %s, 2, s11" % v(vLane))
    a("s_mov_b64 exec, 0xffff")
    a("buffer_store_dword %s, v240, %s, 0 offen" % (v(vProf), s(rWS, 4)))
a.label("Lend")
a("s_endpgm")

bad = check(a.L)
if bad:
    print("%d hazards" % len(bad))

head = open("cdna_kernels/%s.s.ref" % NAME).read().split("; Override launch")[0]
txt = head + "; @launch grid=(256,1,1) block=(512,1,1) lds=%d\n" % LDS_BYTES
txt += '.amdgcn_target "amdgcn-amd-amdhsa--gfx950"\n.text\n.globl %s_kernel\n.p2align 8\n.type %s_kernel,@function\n' % (NAME, NAME)
txt += a.text()
txt += """.section .rodata,"a"
.p2align 6
.amdhsa_kernel %s_kernel
  .amdhsa_next_free_vgpr 256
  .amdhsa_next_free_sgpr 102
  .amdhsa_accum_offset 256
  .amdhsa_group_segment_fixed_size 0
  .amdhsa_kernarg_size 88
  .amdhsa_user_sgpr_count 2
  .amdhsa_user_sgpr_kernarg_segment_ptr 1
  .amdhsa_system_sgpr_workgroup_id_x 1
.end_amdhsa_kernel
""" % NAME
open(OUT, "w").write(txt)
print("wrote", OUT, len(a.L), "lines")
```

```python
import sys, struct, math
from asmlib import Asm, v, s, check

NAME = "gated_mix__mha_block__glu_gated_geglu__prompt"
PROF = "--prof" in sys.argv
FORCE_FB = "--force-fallback" in sys.argv
def opt(name, default):
    for x in sys.argv:
        if x.startswith("--%s=" % name):
            return type(default)(x.split("=")[1])
    return default
SLEEP = opt("sleep", 1)
STF = opt("stf", "sc1")
NOPF = opt("nopf", 0)
DBGT = "--dbgt" in sys.argv
OUT = [a for a in sys.argv[1:] if not a.startswith("--")]
OUT = OUT[0] if OUT else "cdna_kernels/%s.s" % NAME


def f2u(x):
    return struct.unpack("<I", struct.pack("<f", x))[0]


KV_OFF, Q_OFF, H_OFF, O_OFF = 0, 0x400000, 0x600000, 0xD00000
FQ_OFF, FH_OFF, FO_OFF, E_OFF, PROF_OFF = 0xF00000, 0xF40000, 0xF80000, 0xFC0000, 0xFD0000
WS_BYTES = 0x1000000
XB, WB, TB, EX, CNT = 0, 49152, 155648, 159744, 160768
WSLOT = 20480
PB, DB, DREG = 0, 49152, 26624
LDS_BYTES = 163840
SPIN_MAX = 1 << 18

sB, sW, sM, sJ, sH, sMA, sR, sT, sNON = 2, 3, 4, 5, 6, 7, 8, 9, 10
t0, t1, t2, t3, t4 = 11, 12, 13, 14, 15
pX, pQKV, pWO, pWG, pWU, pWD, pGW, pOUT, pDBG, pWS = 16, 18, 20, 24, 26, 28, 30, 32, 34, 36
t5, t6 = 38, 39
rA, rB, rC, rWS, rWD, rWO, rOUT, rT = 40, 44, 48, 52, 56, 60, 64, 68
sIt, sOA, sOB, sOC, sSA, sSB, sSC = 72, 73, 74, 75, 76, 77, 78
sWr, sWd, sXs, sXp, sXo, sTr, sX0 = 79, 80, 81, 82, 83, 84, 85
sHalf, sCg, sFin, sSpin = 86, 87, 88, 89
mHI, mT, kG, kS = 90, 92, 94, 96
sP = 98
sStamp = 100
vL16, vLane, vZero = 250, 251, 252
vProf = 230

a = Asm()
nstamp = [0]


def stamp(k):
    if not PROF:
        return
    a("s_memtime %s" % s(sStamp, 2))
    a("s_waitcnt lgkmcnt(0)")
    a("v_writelane_b32 %s, %s, %d" % (v(vProf), s(sStamp), k))


def srd(r, p, nbytes):
    a("s_mov_b32 %s, %s" % (s(r), s(p)))
    a("s_mov_b32 %s, %s" % (s(r + 1), s(p + 1)))
    a("s_mov_b32 %s, 0x%x" % (s(r + 2), nbytes))
    a("s_mov_b32 %s, 0x20000" % s(r + 3))


def mfma(d, A, B, C=None):
    c = v(d, 16) if C is None else C
    a("v_mfma_f32_32x32x16_bf16 %s, %s, %s, %s" % (v(d, 16), v(A, 4), v(B, 4), c))


def dma(vo, r, so, m0src, m0add=0):
    if m0add:
        a("s_add_u32 m0, %s, %d" % (s(m0src), m0add))
    else:
        a("s_mov_b32 m0, %s" % s(m0src))
    a("s_nop 0")
    a("buffer_load_dwordx4 %s, %s, %s offen lds" % (v(vo), s(r, 4), s(so)))


uid = [0]


def L(p):
    uid[0] += 1
    return "L%s_%d" % (p, uid[0])


def poll(vaddr, vtmp):
    lp, done = L("poll"), L("pdone")
    a("s_mov_b32 %s, %d" % (s(sSpin), SPIN_MAX))
    a.label(lp)
    a("buffer_load_dword %s, %s, %s, 0 offen sc1" % (v(vtmp), v(vaddr), s(rWS, 4)))
    a("s_waitcnt vmcnt(0)")
    a("v_cmp_ne_u32 vcc, %s, %s" % (s(sNON), v(vtmp)))
    a("s_nop 1")
    a("s_cbranch_vccz %s" % done)
    a("s_sub_u32 %s, %s, 1" % (s(sSpin), s(sSpin)))
    a("s_cbranch_scc1 %s" % done)
    a("s_sleep %d" % SLEEP)
    a("s_branch %s" % lp)
    a.label(done)


def get_nonce(vn, vtmp):
    lp, done = L("non"), L("ndone")
    a("s_mov_b32 %s, %d" % (s(sSpin), SPIN_MAX))
    a.label(lp)
    a("v_readfirstlane_b32 %s, %s" % (s(sNON), v(vn)))
    a("s_nop 1")
    a("s_cmp_lg_u32 %s, 0" % s(sNON))
    a("s_cbranch_scc1 %s" % done)
    a("s_sub_u32 %s, %s, 1" % (s(sSpin), s(sSpin)))
    a("s_cbranch_scc1 %s" % done)
    a("buffer_load_dword %s, %s, %s, 0 offen sc1" % (v(vn), v(vZero), s(rT, 4)))
    a("s_waitcnt vmcnt(0)")
    a("s_branch %s" % lp)
    a.label(done)


def flag_store(vaddr, vtmp, nlanes=1):
    a("v_mov_b32 %s, %s" % (v(vtmp), s(sNON)))
    a("s_mov_b64 exec, %d" % ((1 << nlanes) - 1))
    a("buffer_store_dword %s, %s, %s, 0 offen sc1" % (v(vtmp), v(vaddr), s(rWS, 4)))
    a("s_mov_b64 exec, -1")


a.label(NAME + "_kernel")
a("s_cmp_ge_u32 s2, 256")
a("s_cbranch_scc1 Lend")
a("s_load_dwordx16 s[16:31], s[0:1], 0")
a("s_load_dwordx4 s[32:35], s[0:1], 64")
a("s_load_dwordx2 s[36:37], s[0:1], 80")
if PROF:
    a("v_mov_b32 %s, 0" % v(vProf))
    stamp(14)
if DBGT:
    a("s_memrealtime s[100:101]")
    a("s_memtime s[98:99]")
    a("s_waitcnt lgkmcnt(0)")
    a("v_mov_b32 v253, s100")
    a("v_mov_b32 v254, s98")
a("v_lshrrev_b32 v1, 6, v0")
a("v_and_b32 %s, 63, v0" % v(vLane))
a("v_readfirstlane_b32 %s, v1" % s(sW))
a("v_lshlrev_b32 %s, 4, %s" % (v(vL16), v(vLane)))
a("v_mov_b32 %s, 0" % v(vZero))
a("""
s_and_b32 s11, s2, 7
s_lshr_b32 s12, s2, 3
s_and_b32 s13, s11, 1
s_lshl_b32 s13, s13, 3
s_and_b32 s14, s12, 7
s_add_u32 s4, s13, s14
s_lshr_b32 s13, s11, 1
s_lshl_b32 s13, s13, 2
s_lshr_b32 s14, s12, 3
s_add_u32 s5, s13, s14
s_lshl_b32 s13, s11, 1
s_lshr_b32 s14, s12, 4
s_add_u32 s6, s13, s14
s_and_b32 s7, s12, 15
s_mul_i32 s13, s12, 37
s_lshr_b32 s13, s13, 8
s_mul_i32 s14, s13, 7
s_sub_u32 s9, s12, s14
s_lshl_b32 s14, s11, 2
s_add_u32 s8, s14, s13
s_cmp_lt_u32 s12, 28
""")
a("s_cselect_b32 %s, 1, 0" % s(sFin))
a("s_and_b32 %s, %s, 1" % (s(sHalf), s(sW)))
a("s_lshr_b32 %s, %s, 1" % (s(sCg), s(sW)))
a("s_mov_b32 %s, 0" % s(mHI))
a("s_mov_b32 %s, -1" % s(mHI + 1))
a("s_mov_b32 %s, 0x88880000" % s(mT))
a("s_mov_b32 %s, 0x88880000" % s(mT + 1))
K1 = -2.0 * math.sqrt(2.0 / math.pi) * math.log2(math.e)
a("s_mov_b32 %s, 0x%x" % (s(kG), f2u(K1 * 0.044715)))
a("s_mov_b32 %s, 0x%x" % (s(kG + 1), f2u(K1)))

vWb, vWa, vXb, vXa0, vXa1, vTb, vDA, vDB, vDC, vDC2 = 1, 4, 7, 8, 9, 10, 11, 12, 13, 14
a("""
v_lshrrev_b32 v16, 3, v251
v_and_b32 v17, 7, v251
v_bfe_u32 v18, v251, 2, 2
v_and_b32 v19, 3, v251
v_lshlrev_b32 v19, 3, v19
v_lshrrev_b32 v20, 5, v251
v_and_b32 v21, 31, v251
v_lshl_add_u32 v22, v20, 3, v18
v_lshlrev_b32 v22, 7, v22
v_lshrrev_b32 v23, 1, v18
v_lshlrev_b32 v23, 6, v23
""")
a("v_lshl_add_u32 %s, v20, 2, v18" % v(vTb))
a("v_lshlrev_b32 %s, 3, %s" % (v(vTb), v(vTb)))
a("v_bfe_u32 v24, v21, 1, 3")
a("v_xor_b32 v24, v24, v20")
a("v_lshlrev_b32 v24, 4, v24")
a("s_lshl_b32 s11, %s, 13" % s(sHalf))
a("v_lshl_add_u32 %s, v21, 7, v24" % v(vXb))
a("v_add_u32 %s, s11, %s" % (v(vXb), v(vXb)))
a("v_bfe_u32 v25, v16, 1, 1")
a("v_lshlrev_b32 v25, 2, v25")
a("v_xor_b32 v25, v25, v17")
a("v_lshlrev_b32 v25, 4, v25")
a("s_and_b32 s12, %s, 3" % s(sW))
a("s_lshl_b32 s13, s12, 3")
a("v_add_u32 v26, s13, v16")
a("s_mov_b32 %s, 0xffff0000" % s(sP))
a("s_mov_b32 %s, 0xffff0000" % s(sP + 1))


def tile_base(vd, sP0, sP1):
    a("v_mov_b32 v27, %s" % s(sP0))
    a("v_mov_b32 v28, %s" % s(sP1))
    a("v_cndmask_b32 v27, v27, v28, %s" % s(sP, 2))
    a("v_add_u32 v27, v27, v19")
    a("v_xor_b32 v27, v27, v23")
    a("v_add_u32 %s, v27, v22" % v(vd))


def gu_params(sTile):
    a("s_lshr_b32 s11, %s, 2" % s(sTile))
    a("s_lshl_b32 s11, s11, 12")
    a("s_and_b32 s12, %s, 3" % s(sTile))
    a("s_lshl_b32 s12, s12, 5")
    a("s_add_u32 s11, s11, s12")
    a("s_xor_b32 s12, s11, 32")
    a("s_add_u32 s12, s12, 8192")


def hp_params(sQ):
    a("s_lshr_b32 s11, %s, 1" % s(sQ))
    a("s_lshl_b32 s11, s11, 12")
    a("s_and_b32 s12, %s, 1" % s(sQ))
    a("s_mul_i32 s12, s12, 56")
    a("s_add_u32 s11, s11, s12")
    a("s_add_u32 s12, s11, 32")


def dma_voff(vd, sStride, sCol, u):
    a("v_mul_lo_u32 v27, v26, %s" % s(sStride))
    if u:
        a("v_xor_b32 v28, %d, v25" % (16 * u))
        a("v_add3_u32 %s, v27, v28, %s" % (v(vd), s(sCol)))
    else:
        a("v_add3_u32 %s, v27, v25, %s" % (v(vd), s(sCol)))


WG_BYTES, QKV_BYTES, X_BYTES = 448 * 3584, 448 * 2688, 2048 * 896

a("s_cmp_ge_u32 %s, 14" % s(sJ))
a("s_cbranch_scc1 Lsetup_qkv")
a("s_cmp_ge_u32 %s, 4" % s(sW))
a("s_cbranch_scc1 Lsetup_main_hi")
a("s_add_u32 s13, %s, 8" % s(sCg))
hp_params(13)
tile_base(vWb, 11, 12)
a("s_lshl_b32 s13, %s, 2" % s(sCg))
gu_params(13)
tile_base(vWb + 1, 11, 12)
a("s_mov_b32 s13, 3584")
a("s_lshl_b32 s14, %s, 8" % s(sJ))
a("s_add_u32 s14, s14, 128")
dma_voff(vDA, 13, 14, 2)
a("s_mov_b32 s13, 2688")
a("s_mul_i32 s14, %s, 112" % s(sJ))
dma_voff(vDB, 13, 14, 0)
a("s_mov_b32 %s, %d" % (s(sSA), 32 * 3584))
a("s_mov_b32 %s, %d" % (s(sSB), 32 * 2688))
a("s_waitcnt lgkmcnt(0)")
srd(rA, pWU, WG_BYTES)
srd(rB, pQKV, QKV_BYTES)
a("s_branch Lsetup_lo")
a.label("Lsetup_main_hi")
for c in range(3):
    a("s_lshl_b32 s13, %s, 2" % s(sCg))
    a("s_sub_u32 s13, s13, %d" % (7 - c))
    gu_params(13)
    tile_base(vWb + c, 11, 12)
a("s_mov_b32 s13, 3584")
a("s_lshl_b32 s14, %s, 8" % s(sJ))
dma_voff(vDA, 13, 14, 0)
dma_voff(vDC, 13, 14, 2)
a("v_add_u32 %s, 128, %s" % (v(vDB), v(vDA)))
for x in (sSA, sSB, sSC):
    a("s_mov_b32 %s, %d" % (s(x), 32 * 3584))
a("s_waitcnt lgkmcnt(0)")
srd(rA, pWG, WG_BYTES)
srd(rB, pWG, WG_BYTES)
srd(rC, pWU, WG_BYTES)
a("s_branch Lsetup_hi")
a.label("Lsetup_qkv")
a("s_sub_u32 s15, %s, 14" % s(sJ))
a("s_mul_i32 s15, s15, 560")
a("s_add_u32 s15, s15, %d" % (14 * 112))
a("s_mov_b32 s38, 2688")
a("s_cmp_ge_u32 %s, 4" % s(sW))
a("s_cbranch_scc1 Lsetup_qkv_hi")
for c in range(2):
    a("s_lshl_b32 s13, %s, 1" % s(sCg))
    a("s_add_u32 s13, s13, %d" % c)
    hp_params(13)
    tile_base(vWb + c, 11, 12)
a("s_add_u32 s14, s15, 336")
dma_voff(vDA, 38, 14, 0)
a("v_add_u32 %s, 112, %s" % (v(vDB), v(vDA)))
for x in (sSA, sSB):
    a("s_mov_b32 %s, %d" % (s(x), 32 * 2688))
a("s_waitcnt lgkmcnt(0)")
srd(rA, pQKV, QKV_BYTES)
srd(rB, pQKV, QKV_BYTES)
a("s_branch Lsetup_lo")
a.label("Lsetup_qkv_hi")
for c in range(3):
    a("s_mul_i32 s13, %s, 3" % s(sCg))
    a("s_sub_u32 s13, s13, %d" % (2 - c))
    hp_params(13)
    tile_base(vWb + c, 11, 12)
dma_voff(vDA, 38, 15, 0)
a("v_add_u32 %s, 112, %s" % (v(vDB), v(vDA)))
a("v_add_u32 %s, 224, %s" % (v(vDC), v(vDA)))
for x in (sSA, sSB, sSC):
    a("s_mov_b32 %s, %d" % (s(x), 32 * 2688))
a("s_waitcnt lgkmcnt(0)")
srd(rA, pQKV, QKV_BYTES)
srd(rB, pQKV, QKV_BYTES)
srd(rC, pQKV, QKV_BYTES)
a("s_branch Lsetup_hi")

ACC = 128
XS, WS_ = (64, 84), (72, 92)


def gate_load():
    srd(rT, pGW, 896)
    a("v_lshlrev_b32 v27, 1, v0")
    a("buffer_load_ushort v30, v27, %s, 0 offen" % s(rT, 4))


def common_setup():
    a("v_bfe_u32 v27, v0, 4, 1")
    a("v_lshlrev_b32 v28, 11, v27")
    a("v_lshrrev_b32 v27, 8, v0")
    a("v_lshl_add_u32 v28, v27, 10, v28")
    a("v_bfe_u32 v27, v0, 2, 1")
    a("v_lshl_add_u32 v28, v27, 9, v28")
    a("v_bfe_u32 v27, v0, 5, 3")
    a("v_lshl_add_u32 v28, v27, 6, v28")
    a("v_bfe_u32 v27, v0, 3, 1")
    a("v_lshl_add_u32 v28, v27, 5, v28")
    a("v_and_b32 v27, 3, v0")
    a("v_lshl_add_u32 v28, v27, 3, v28")
    a("v_add_u32 v28, %d, v28" % TB)
    a("v_mov_b32 v31, 0")
    srd(rWS, pWS, WS_BYTES)
    a("s_mov_b32 %s, %d" % (s(sWr), WB))
    a("s_mov_b32 %s, 0" % s(sXs))
    a("s_mov_b32 %s, 32768" % s(sXp))
    a("s_mov_b32 %s, 256" % s(sXo))
    a("s_mov_b32 %s, %d" % (s(sTr), TB))
    a("s_mov_b32 %s, 0" % s(sIt))


def addr_update(ncol, lo, par):
    a("s_or_b32 %s, %s, %d" % (s(sX0), s(sXs), 64 * par))
    for c in range(ncol):
        a("v_add_u32 %s, %s, %s" % (v(vWa + c), s(sWr), v(vWb + c)))
    a("v_xor_b32 %s, %s, %s" % (v(vXa0), s(sX0), v(vXb)))
    if lo:
        a("v_add_u32 v27, %s, %s" % (s(sTr), v(vTb)))
        a("v_cndmask_b32 %s, %s, v27, %s" % (v(vWa), v(vWa), s(mT, 2)))
    a("v_xor_b32 %s, 32, %s" % (v(vXa1), v(vXa0)))


def reads(ncol, st, ks):
    xa = vXa0 if ks == 0 else vXa1
    r = []
    rx = lambda rt: "ds_read_b128 %s, %s offset:%d" % (v(XS[st] + 4 * rt, 4), v(xa), 4096 * rt)
    rw = lambda c, jj: "ds_read_b64_tr_b16 %s, %s offset:%d" % (v(WS_[st] + 4 * c + 2 * jj, 2), v(vWa + c), 2048 * ks + 512 * jj)
    r += [rx(0), rw(0, 0), rw(0, 1), rx(1)]
    for c in range(1, ncol):
        r += [rw(c, 0), rw(c, 1)]
    return r


def mm(ncol, st, vor):
    out = []
    for c in range(ncol):
        for rt in range(2):
            d = ACC + 32 * c + 16 * rt
            W, X = WS_[st] + 4 * c, XS[st] + 4 * rt
            A, B = (X, W) if vor else (W, X)
            out.append("v_mfma_f32_32x32x16_bf16 %s, %s, %s, %s" % (v(d, 16), v(A, 4), v(B, 4), v(d, 16)))
    return out


def dma_lines(vo, r, so, m0src, m0add):
    return ["s_add_u32 m0, %s, %d" % (s(m0src), m0add), "s_nop 0",
            "buffer_load_dwordx4 %s, %s, %s offen lds" % (v(vo), s(r, 4), s(so))]


def step_dmas(lo, par):
    if lo:
        g = []
        pre = ["s_add_u32 s11, %s, %d" % (s(sXo), par * 57344)]
        g.append(pre + dma_lines(vDC, rC, 11, sOC, par * 8192))
        g.append(dma_lines(vDC2, rC, 11, sOC, par * 8192 + 1024))
        g.append(dma_lines(vDA, rA, sOA, sWd, 3 * 4096) + ["s_add_u32 %s, %s, %s" % (s(sOA), s(sOA), s(sSA))])
        g.append(dma_lines(vDB, rB, sOB, sWd, 4 * 4096) + ["s_add_u32 %s, %s, %s" % (s(sOB), s(sOB), s(sSB))])
        return g
    return [dma_lines(vd, r, sOA, sWd, 4096 * i) + (["s_add_u32 %s, %s, %s" % (s(sOA), s(sOA), s(sSA))] if i == 2 else [])
            for i, (vd, r) in enumerate(((vDA, rA), (vDB, rB), (vDC, rC)))]


def state_advance(lo, par):
    a("s_add_u32 %s, %s, s15" % (s(sWd), s(sWr)))
    a("s_add_u32 %s, %s, %d" % (s(sWr), s(sWr), WSLOT))
    a("s_cmp_eq_u32 %s, %d" % (s(sWr), WB + 5 * WSLOT))
    a("s_cselect_b32 %s, %d, %s" % (s(sWr), WB, s(sWr)))
    if lo:
        a("s_add_u32 %s, %s, 64" % (s(sTr), s(sTr)))
    if par == 1:
        if lo:
            a("s_add_u32 %s, %s, s14" % (s(sOC), s(sXs)))
            a("s_add_u32 %s, %s, 128" % (s(sXo), s(sXo)))
            a("s_cmp_ge_u32 %s, %d" % (s(sXo), 7 * 128))
            a("s_cselect_b32 %s, 0x40000000, %s" % (s(sXo), s(sXo)))
            a("s_cmp_eq_u32 %s, %d" % (s(sTr), TB + 512))
            a("s_cselect_b32 %s, %d, %s" % (s(sTr), TB + 1024, s(sTr)))
        a("s_add_u32 %s, %s, 16384" % (s(sXs), s(sXs)))
        a("s_cmp_eq_u32 %s, 49152" % s(sXs))
        a("s_cselect_b32 %s, 0, %s" % (s(sXs), s(sXs)))


def interleave(ms, fill):
    for i, m in enumerate(ms):
        a(m)
        if i < len(fill):
            for x in fill[i]:
                a(x)
    for g in fill[len(ms):]:
        for x in g:
            a(x)


def kloop(tag, lo, vor):
    ncol = 2 if lo else 3
    nvm = 10 if lo else 9
    top, mid = "Lk_%s" % tag, "Lkm_%s" % tag
    addr_update(ncol, lo, 0)
    a("s_waitcnt vmcnt(%d) lgkmcnt(0)" % nvm)
    a("s_barrier")
    stamp(2)
    for x in reads(ncol, 0, 0):
        a(x)
    d0 = step_dmas(lo, 0)
    for g in d0[:2]:
        for x in g:
            a(x)
    a("s_branch %s" % mid)
    a(".p2align 5")
    a.label(top)
    for par in range(2):
        d = step_dmas(lo, par)
        a("s_waitcnt vmcnt(%d) lgkmcnt(0)" % nvm)
        a("s_barrier")
        r = reads(ncol, 0, 0)
        fill = [r[2 * i:2 * i + 2] for i in range(len(r) // 2)] + d[:2]
        interleave(mm(ncol, 1, vor), fill)
        if par == 0:
            a.label(mid)
        a("s_waitcnt lgkmcnt(0)")
        r = reads(ncol, 1, 1)
        fill = [r[2 * i:2 * i + 2] for i in range(len(r) // 2)] + d[2:]
        interleave(mm(ncol, 0, vor), fill)
        state_advance(lo, par)
        addr_update(ncol, lo, 1 - par)
    a("s_add_u32 %s, %s, 1" % (s(sIt), s(sIt)))
    a("s_cmp_lt_u32 %s, 7" % s(sIt))
    a("s_cbranch_scc1 %s" % top)
    a("s_waitcnt lgkmcnt(0)")
    for m in mm(ncol, 1, vor):
        a(m)


a.label("Lsetup_lo")
srd(rC, pX, X_BYTES)
a("s_lshl_b32 s11, %s, 7" % s(sM))
a("s_lshl_b32 s12, %s, 4" % s(sW))
a("s_add_u32 s11, s11, s12")
a("v_add_u32 v27, s11, v16")
a("v_mul_u32_u24 v27, 896, v27")
a("v_lshrrev_b32 v28, 1, v16")
a("v_xor_b32 v28, v28, v17")
a("v_lshl_add_u32 %s, v28, 4, v27" % v(vDC))
a("v_xor_b32 v28, 4, v28")
a("v_lshl_add_u32 %s, v28, 4, v27" % v(vDC2))
a("v_add_u32 %s, %d, %s" % (v(vDC2), 8 * 896, v(vDC2)))
a("s_lshl_b32 s15, %s, 10" % s(sW))
a("s_lshl_b32 s14, %s, 11" % s(sW))
a("s_mov_b32 %s, 0" % s(sOA))
a("s_mov_b32 %s, 0" % s(sOB))
gate_load()
stamp(0)
for st in range(4):
    X, par = st >> 1, st & 1
    a("s_mov_b32 s11, %d" % (X * 128 + par * 57344))
    for x in dma_lines(vDC, rC, 11, 14, X * 16384 + par * 8192) + dma_lines(vDC2, rC, 11, 14, X * 16384 + par * 8192 + 1024):
        a(x)
    for x in dma_lines(vDA, rA, sOA, 15, WB + st * WSLOT + 3 * 4096) + dma_lines(vDB, rB, sOB, 15, WB + st * WSLOT + 4 * 4096):
        a(x)
    a("s_add_u32 %s, %s, %s" % (s(sOA), s(sOA), s(sSA)))
    a("s_add_u32 %s, %s, %s" % (s(sOB), s(sOB), s(sSB)))
common_setup()
a("s_add_u32 %s, s15, %d" % (s(sWd), WB + 4 * WSLOT))
a("s_add_u32 %s, s14, 32768" % s(sOC))
for i in range(64):
    a("v_mov_b32 %s, 0" % v(ACC + i))
a("v_mov_b32 v27, %d" % CNT)
a("ds_write_b32 v27, v31")
a("s_waitcnt vmcnt(16)")
a("ds_write_b64 v28, v[30:31]")
stamp(1)
a("s_cmp_eq_u32 %s, 15" % s(sJ))
a("s_cbranch_scc1 Lk_lo_v_entry")
kloop("lo_t", True, False)
a("s_branch Lepi_lo_t")
a.label("Lk_lo_v_entry")
kloop("lo_v", True, True)
a("s_branch Lepi_lo_v")

a.label("Lsetup_hi")
a("s_and_b32 s15, %s, 3" % s(sW))
a("s_lshl_b32 s15, s15, 10")
a("s_mov_b32 %s, 0" % s(sOA))
srd(rWS, pWS, WS_BYTES)
a("s_lshl_b32 s11, s2, 3")
a("s_add_u32 s11, s11, %s" % s(sW))
a("v_mov_b32 v32, %d" % E_OFF)
a("s_cmp_lg_u32 s11, 7")
a("s_cbranch_scc1 Lno_nonce1")
a("buffer_load_dword v33, v32, %s, 0 offen sc1" % s(rWS, 4))
a.label("Lno_nonce1")
gate_load()
stamp(0)
for st in range(4):
    for i, (vd, r) in enumerate(((vDA, rA), (vDB, rB), (vDC, rC))):
        for x in dma_lines(vd, r, sOA, 15, WB + st * WSLOT + i * 4096):
            a(x)
    a("s_add_u32 %s, %s, %s" % (s(sOA), s(sOA), s(sSA)))
common_setup()
a("s_add_u32 %s, s15, %d" % (s(sWd), WB + 4 * WSLOT))
for i in range(96):
    a("v_mov_b32 %s, 0" % v(ACC + i))
a("s_waitcnt vmcnt(12)")
a("ds_write_b64 v28, v[30:31]")
a("s_lshl_b32 s11, s2, 3")
a("s_add_u32 s11, s11, %s" % s(sW))
a("s_cmp_lg_u32 s11, 7")
a("s_cbranch_scc1 Lno_nonce2")
srd(rT, pDBG, 256)
a("v_add_u32 v33, 1, v33")
a("v_or_b32 v33, 0x80000000, v33")
a("s_mov_b64 exec, 1")
a("buffer_store_dword v33, v32, %s, 0 offen sc1" % s(rWS, 4))
a("buffer_store_dword v33, %s, %s, 0 offen sc1" % (v(vZero), s(rT, 4)))
a("s_mov_b64 exec, -1")
a.label("Lno_nonce2")
stamp(1)
a("s_cmp_ge_u32 %s, 14" % s(sJ))
a("s_cbranch_scc1 Lk_hi_v_entry")
kloop("hi_t", False, False)
a("s_branch Lepi_hi_t")
a.label("Lk_hi_v_entry")
kloop("hi_v", False, True)
a("s_branch Lepi_hi_v")

vNon, vFA, vFT = 240, 241, 242


def nonce_load():
    srd(rT, pDBG, 256)
    a("buffer_load_dword %s, %s, %s, 0 offen sc1" % (v(vNon), v(vZero), s(rT, 4)))


def gelu_tile(acc, vc, dst):
    T = 48
    for p in range(4):
        a("v_pk_mul_f32 %s, %s, %s" % (v(T + 2 * p, 2), v(acc + 2 * p, 2), v(acc + 2 * p, 2)))
    for p in range(4):
        a("v_pk_fma_f32 %s, %s, %s, %s op_sel:[0,0,1] op_sel_hi:[1,0,1]" % (v(T + 2 * p, 2), v(T + 2 * p, 2), s(kG, 2), s(kG, 2)))
    for p in range(4):
        a("v_pk_mul_f32 %s, %s, %s" % (v(T + 2 * p, 2), v(T + 2 * p, 2), v(acc + 2 * p, 2)))
    for i in range(8):
        a("v_exp_f32 %s, %s" % (v(T + i), v(T + i)))
    for p in range(4):
        a("v_pk_mul_f32 %s, %s, %s" % (v(acc + 8 + 2 * p, 2), v(acc + 8 + 2 * p, 2), v(acc + 2 * p, 2)))
    for p in range(4):
        a("v_pk_fma_f32 %s, %s, %s, %s op_sel_hi:[1,0,0]" % (v(T + 2 * p, 2), v(T + 2 * p, 2), v(vc, 2), v(vc, 2)))
    for i in range(8):
        a("v_rcp_f32 %s, %s" % (v(T + i), v(T + i)))
    a("s_nop 0")
    for p in range(4):
        a("v_pk_mul_f32 %s, %s, %s" % (v(acc + 8 + 2 * p, 2), v(acc + 8 + 2 * p, 2), v(T + 2 * p, 2)))
    for p in range(4):
        a("v_cvt_pk_bf16_f32 %s, %s, %s" % (v(dst + p), v(acc + 8 + 2 * p), v(acc + 9 + 2 * p)))


def qk_tile(acc, vpad, vaddr, so, dst):
    for p in range(8):
        a("v_pk_mul_f32 %s, %s, %s op_sel_hi:[1,0]" % (v(acc + 2 * p, 2), v(acc + 2 * p, 2), s(kS, 2)))
    for p in range(8):
        a("v_cvt_pk_bf16_f32 %s, %s, %s" % (v(dst + p), v(acc + 2 * p), v(acc + 2 * p + 1)))
    a("v_cndmask_b32 %s, %s, %s, %s" % (v(dst + 6), v(dst + 6), v(vpad), s(mHI, 2)))
    a("v_cndmask_b32 %s, %s, %s, %s" % (v(dst + 7), v(dst + 7), v(vZero), s(mHI, 2)))
    a("buffer_store_dwordx4 %s, %s, %s, %s offen sc1" % (v(dst, 4), v(vaddr), s(rWS, 4), s(so)))
    a("buffer_store_dwordx4 %s, %s, %s, %s offen offset:1024 sc1" % (v(dst + 4, 4), v(vaddr), s(rWS, 4), s(so)))


def v_tile(acc, so, dst):
    for p in range(8):
        a("v_cvt_pk_bf16_f32 %s, %s, %s" % (v(dst + p), v(acc + 2 * p), v(acc + 2 * p + 1)))
    for p in range(8):
        a("v_cndmask_b32 %s, %s, v29, %s" % (v(dst + p), v(dst + p), s(sP, 2)))
    a("buffer_store_dwordx4 %s, %s, %s, %s offen offset:2048 sc1" % (v(dst, 4), v(vL16), s(rWS, 4), s(so)))
    a("buffer_store_dwordx4 %s, %s, %s, %s offen offset:3072 sc1" % (v(dst + 4, 4), v(vL16), s(rWS, 4), s(so)))


def v_prep():
    a("s_mov_b32 %s, 0xf0000000" % s(sP))
    a("s_mov_b32 %s, 0xf0000000" % s(sP + 1))
    a("v_and_b32 v28, 31, %s" % v(vLane))
    a("v_cmp_eq_u32 vcc, 28, v28")
    a("v_mov_b32 v27, 0x3f803f80")
    a("s_nop 0")
    a("v_cndmask_b32 v29, %s, v27, vcc" % v(vZero))


def tile_index(sd):
    a("s_lshl_b32 %s, %s, 1" % (s(sd), s(sM)))
    a("s_add_u32 %s, %s, %s" % (s(sd), s(sd), s(sHalf)))
    a("s_lshl_b32 %s, %s, 1" % (s(sd), s(sd)))


def fq_addr(sHp):
    a("s_lshl_b32 s11, %s, 5" % s(sHp))
    a("s_lshl_b32 s12, %s, 1" % s(sM))
    a("s_add_u32 s11, s11, s12")
    a("s_add_u32 s11, s11, %s" % s(sHalf))
    a("s_lshl_b32 s11, s11, 7")
    a("s_add_u32 s11, s11, 0x%x" % FQ_OFF)
    a("v_lshl_add_u32 %s, %s, 12, s11" % (v(vFA), v(vLane)))


def fh_addr():
    a("s_lshl_b32 s11, %s, 1" % s(sM))
    a("s_add_u32 s11, s11, %s" % s(sHalf))
    a("s_lshl_b32 s11, s11, 4")
    a("s_add_u32 s11, s11, %s" % s(sJ))
    a("s_lshl_b32 s11, s11, 2")
    a("s_add_u32 s11, s11, %s" % s(sCg))
    a("s_lshl_b32 s11, s11, 7")
    a("s_add_u32 s11, s11, 0x%x" % FH_OFF)
    a("v_mov_b32 %s, s11" % v(vFA))


def h_base(sd, sTile):
    tile_index(sd)
    a("s_mul_i32 %s, %s, 114688" % (s(sd), s(sd)))
    a("s_lshl_b32 s11, %s, 3" % s(sJ))
    a("s_add_u32 s11, s11, %s" % s(sTile))
    a("s_lshl_b32 s11, s11, 10")
    a("s_add_u32 %s, %s, s11" % (s(sd), s(sd)))
    a("s_add_u32 %s, %s, 0x%x" % (s(sd), s(sd), H_OFF))


a.label("Lepi_lo_t")
stamp(3)
nonce_load()
a("s_lshl_b32 s13, %s, 1" % s(sJ))
a("s_add_u32 s13, s13, %s" % s(sCg))
a("s_lshl_b32 s14, %s, 1" % s(sCg))
a("s_add_u32 s14, s14, 28")
a("s_cmp_ge_u32 %s, 14" % s(sJ))
a("s_cselect_b32 s38, s14, s13")
tile_index(39)
a("s_cmp_lt_u32 s38, 16")
a("s_cselect_b32 %s, 0x%x, 0x3f800000" % (s(kS), f2u(math.log2(math.e) / math.sqrt(28.0))))
a("s_cselect_b32 s13, 0xffff, 0")
a("s_cselect_b32 s14, 0, 12")
a("s_cselect_b32 s15, 11, 12")
a("s_cselect_b32 s11, 0x%x, %d" % (Q_OFF, KV_OFF))
a("s_and_b32 s12, s38, 15")
a("s_lshl_b32 s12, s12, 6")
a("s_add_u32 s12, s12, s39")
a("s_lshl_b32 s12, s12, s15")
a("s_add_u32 %s, s11, s12" % s(sOA))
a("s_lshl_b32 s12, 1, s15")
a("s_add_u32 %s, %s, s12" % (s(sOB), s(sOA)))
a("v_lshrrev_b32 v27, 1, %s" % v(vLane))
a("v_xor_b32 v27, v27, %s" % v(vLane))
a("v_bfe_u32 v27, v27, 2, 1")
a("v_mul_u32_u24 v27, s14, v27")
a("v_xor_b32 v27, v27, %s" % v(vLane))
a("v_lshlrev_b32 v26, 4, v27")
a("v_mov_b32 v16, %s" % v(ACC + 12))
a("v_mov_b32 v17, %s" % v(ACC + 16 + 12))
a("s_nop 1")
a("v_permlane32_swap_b32 v16, v17")
a("s_nop 1")
a("v_cvt_pk_bf16_f32 v17, v17, v17")
a("v_and_b32 v17, 0xffff0000, v17")
a("v_mul_f32 v17, 0x%x, v17" % f2u(-math.log2(math.e)))
a("v_exp_f32 v17, v17")
a("s_nop 0")
a("v_add_f32 v17, 1.0, v17")
a("v_rcp_f32 v17, v17")
a("s_nop 0")
a("v_cvt_pk_bf16_f32 v18, v17, v17")
a("v_and_b32 v17, 0xffff0000, v18")
a("v_sub_f32 v17, 1.0, v17")
a("v_cvt_pk_bf16_f32 v17, v17, v17")
a("v_and_b32 v17, 0xffff0000, v17")
a("v_rcp_f32 v20, v17")
a("v_and_b32 v18, s13, v18")
a("v_min_f32 v20, 0x7f000000, v20")
a("s_lshl_b32 s11, %s, 8" % s(sHalf))
a("s_add_u32 s11, s11, %d" % EX)
a("v_lshl_add_u32 v27, %s, 2, s11" % v(vLane))
a("ds_write_b32 v27, v20")
a("v_mov_b32 v19, v18")
a("v_mov_b32 v22, v20")
a("s_nop 1")
a("v_permlane32_swap_b32 v18, v19")
a("v_permlane32_swap_b32 v20, v22")
qk_tile(ACC, 18, 26, sOA, 32)
qk_tile(ACC + 16, 19, 26, sOB, 40)
a("s_cmp_ge_u32 %s, 14" % s(sJ))
a("s_cbranch_scc1 Lepi_lo_k2")
a("s_waitcnt vmcnt(5) lgkmcnt(0)")
a("s_barrier")
gelu_tile(ACC + 32, 20, 32)
gelu_tile(ACC + 48, 22, 36)
fq_addr(38)
a("s_lshl_b32 s13, %s, 2" % s(sCg))
h_base(sOA, 13)
a("s_add_u32 %s, %s, 114688" % (s(sOB), s(sOA)))
stamp(12)
a("s_waitcnt vmcnt(0)")
get_nonce(vNon, vFT)
flag_store(vFA, vFT)
stamp(4)
a("buffer_store_dwordx4 v[32:35], %s, %s, %s offen sc1" % (v(vL16), s(rWS, 4), s(sOA)))
a("buffer_store_dwordx4 v[36:39], %s, %s, %s offen sc1" % (v(vL16), s(rWS, 4), s(sOB)))
fh_addr()
a("s_waitcnt vmcnt(0)")
flag_store(vFA, vFT)
stamp(13)
a("s_branch Lattn")
a.label("Lepi_lo_k2")
a("s_add_u32 %s, %s, 0x40000" % (s(sOA), s(sOA)))
a("s_add_u32 %s, %s, 0x40000" % (s(sOB), s(sOB)))
qk_tile(ACC + 32, vZero, 26, sOA, 48)
qk_tile(ACC + 48, vZero, 26, sOB, 56)
a("s_waitcnt vmcnt(9) lgkmcnt(0)")
a("s_barrier")
fq_addr(38)
a("s_waitcnt vmcnt(0)")
get_nonce(vNon, vFT)
flag_store(vFA, vFT, 2)
stamp(4)
a("s_branch Lattn")


def v_epilogue(ncol):
    tile_index(39)
    v_prep()
    a("s_sub_u32 s12, s38, 32")
    a("s_lshl_b32 s12, s12, 6")
    a("s_add_u32 s12, s12, s39")
    a("s_lshl_b32 %s, s12, 12" % s(sOA))
    a("s_add_u32 %s, %s, 4096" % (s(sOB), s(sOA)))
    a("s_nop 3")
    for c in range(ncol):
        v_tile(ACC + 32 * c, sOA, 32 + 16 * (c & 1))
        v_tile(ACC + 32 * c + 16, sOB, 40 + 16 * (c & 1))
        if c + 1 < ncol:
            a("s_add_u32 %s, %s, 0x40000" % (s(sOA), s(sOA)))
            a("s_add_u32 %s, %s, 0x40000" % (s(sOB), s(sOB)))
    a("s_waitcnt vmcnt(%d)" % (4 * ncol + 1))
    a("s_barrier")
    fq_addr(38)
    a("s_waitcnt vmcnt(0)")
    get_nonce(vNon, vFT)
    flag_store(vFA, vFT, ncol)
    stamp(4)


a.label("Lepi_lo_v")
stamp(3)
nonce_load()
a("s_lshl_b32 s38, %s, 1" % s(sCg))
a("s_add_u32 s38, s38, 38")
v_epilogue(2)
a("s_branch Lattn")

vDd, vDr, vH1 = 226, 227, 229


def d_prefetch():
    skip = L("nopf")
    a("s_cmp_eq_u32 %s, 0" % s(sFin))
    a("s_cbranch_scc1 %s" % skip)
    srd(rWD, pWD, 1792 * 896)
    srd(rWO, pWO, 448 * 896)
    a("v_lshrrev_b32 v16, 3, %s" % v(vLane))
    a("v_and_b32 v17, 7, %s" % v(vLane))
    a("v_bfe_u32 v18, v16, 1, 1")
    a("v_lshlrev_b32 v18, 2, v18")
    a("v_xor_b32 v18, v18, v17")
    a("v_lshlrev_b32 v18, 4, v18")
    a("v_mul_u32_u24 v16, 896, v16")
    a("s_lshl_b32 s11, %s, 7" % s(sT))
    a("v_add3_u32 %s, v16, v18, s11" % v(vDd))
    a("s_and_b32 s12, %s, 3" % s(sW))
    a("s_mul_i32 %s, s12, %d" % (s(sOC), 448 * 896))
    a("s_mul_i32 %s, s12, %d" % (s(sWd), DREG))
    a("s_add_u32 %s, %s, %d" % (s(sWd), s(sWd), DB))
    for n in range(26):
        for x in dma_lines(vDd, rWD, sOC, sWd, 1024 * n):
            a(x)
        a("s_add_u32 %s, %s, 7168" % (s(sOC), s(sOC)))
    a.label(skip)


a.label("Lepi_hi_v")
stamp(3)
nonce_load()
a("s_mul_i32 s38, %s, 10" % s(sJ))
a("s_mul_i32 s11, %s, 3" % s(sCg))
a("s_add_u32 s38, s38, s11")
a("s_sub_u32 s38, s38, %d" % (140 + 6 - 32))
v_epilogue(3)
d_prefetch()
a("s_branch Ldown")

a.label("Lepi_hi_t")
stamp(3)
nonce_load()
a("s_lshl_b32 s11, %s, 8" % s(sHalf))
a("s_add_u32 s11, s11, %d" % EX)
a("v_and_b32 v27, 31, %s" % v(vLane))
a("v_lshl_add_u32 v27, v27, 2, s11")
a("s_lshl_b32 s13, %s, 2" % s(sCg))
a("s_sub_u32 s13, s13, 7")
h_base(sOA, 13)
a("s_add_u32 %s, %s, 114688" % (s(sOB), s(sOA)))
a("s_waitcnt vmcnt(0)")
a("s_barrier")
a("ds_read_b32 v20, v27")
a("ds_read_b32 v22, v27 offset:128")
d_prefetch()
a("s_waitcnt lgkmcnt(0)")
for c in range(3):
    for rt in range(2):
        d = 32 + 4 * rt + 8 * (c & 1)
        gelu_tile(ACC + 32 * c + 16 * rt, 20 + 2 * rt, d)
        a("buffer_store_dwordx4 %s, %s, %s, %s offen offset:%d sc1" % (v(d, 4), v(vL16), s(rWS, 4), s((sOA, sOB)[rt]), 1024 * c))
fh_addr()
stamp(12)
a("s_waitcnt vmcnt(0)")
get_nonce(vNon, vFT)
flag_store(vFA, vFT)
stamp(4)
a("s_branch Ldown")

Q, O, S_, KV, vIdx = 0, 32, 96, 160, 224
sKV, sQb = sOA, sOB


def kvload(b, part, so=None):
    so = sKV if so is None else so
    for i in range(2):
        a("buffer_load_dwordx4 %s, %s, %s, %s offen offset:%d sc1" % (
            v(KV + 16 * b + 8 * part + 4 * i, 4), v(vL16), s(rWS, 4), s(so), 2048 * part + 1024 * i))


def qk(n, half):
    kt, u = n >> 2, n & 3
    K = KV + 16 * (kt & 3) + 4 * half
    d = S_ + 16 * u
    return "v_mfma_f32_32x32x16_bf16 %s, %s, %s, %s" % (v(d, 16), v(K, 4), v(Q + 8 * u + 4 * half, 4), v(d, 16) if half else "0")


def pv(n, half):
    kt, u = n >> 2, n & 3
    V = KV + 16 * (kt & 3) + 8 + 4 * half
    return "v_smfmac_f32_32x32x32_bf16 %s, %s, %s, %s" % (v(O + 16 * u, 16), v(V, 4), v(S_ + 16 * u + 8 * half, 8), v(vIdx))


def slot(n, last=False, extra=None):
    u = n & 3
    extra = extra or {}
    e = ["v_exp_f32 %s, %s" % (v(S_ + 16 * u + i), v(S_ + 16 * u + i)) for i in range(16)]
    if not last:
        seq = [qk(n + 1, 0)] + e[0:3] + [qk(n + 1, 1)] + e[3:6]
    else:
        seq = e[0:6]
    seq += [pv(n - 1, 0)] + e[6:9] + [pv(n - 1, 1)] + e[9:16]
    for i, x in enumerate(seq):
        for y in extra.get(i, []):
            a(y)
        a(x)


a.label("Lattn")
a("s_setprio 2")
a("s_lshl_b32 s11, %s, 3" % s(sW))
a("v_and_b32 v16, 7, %s" % v(vLane))
a("v_add_u32 v16, s11, v16")
a("v_bfe_u32 v17, %s, 3, 1" % v(vLane))
a("v_lshlrev_b32 v17, 4, v17")
a("s_add_u32 s12, %s, 16" % s(sH))
a("v_add_u32 v17, s12, v17")
a("v_lshl_add_u32 v16, v17, 5, v16")
a("s_lshl_b32 s11, %s, 5" % s(sH))
a("s_lshl_b32 s12, %s, 1" % s(sMA))
a("s_add_u32 s11, s11, s12")
a("v_and_b32 v17, 1, %s" % v(vLane))
a("v_add_u32 v17, s11, v17")
a("v_cmp_gt_u32 vcc, 16, %s" % v(vLane))
a("s_mov_b32 s11, 0x%x" % FQ_OFF)
a("s_nop 0")
a("v_cndmask_b32 v16, v17, v16, vcc")
a("v_lshl_add_u32 %s, v16, 7, s11" % v(vFA))
for i in range(64):
    a("v_mov_b32 %s, 0" % v(O + i))
for i in range(16):
    a("v_mov_b32 %s, 0" % v(S_ + 48 + i))
for i in range(8):
    a("v_mov_b32 %s, 0" % v(KV + 48 + 8 + i))
a("v_mov_b32 %s, 0xdddd" % v(vIdx))
a("s_lshl_b32 s11, %s, 6" % s(sH))
a("s_lshl_b32 s12, %s, 4" % s(sW))
a("s_add_u32 s12, s12, s11")
a("s_lshl_b32 %s, s12, 12" % s(sKV))
a("s_lshl_b32 s12, %s, 2" % s(sMA))
a("s_add_u32 s11, s11, s12")
a("s_lshl_b32 s11, s11, 11")
a("s_add_u32 %s, s11, 0x%x" % (s(sQb), Q_OFF))
poll(vFA, vFT)
stamp(5)
kvload(0, 0)
for u in range(4):
    a("s_add_u32 s11, %s, %d" % (s(sW), u + 1))
    a("s_and_b32 s11, s11, 3")
    a("s_lshl_b32 s11, s11, 11")
    a("s_add_u32 s11, s11, %s" % s(sQb))
    for i in range(2):
        a("buffer_load_dwordx4 %s, %s, %s, s11 offen offset:%d sc1" % (v(Q + 8 * u + 4 * i, 4), v(vL16), s(rWS, 4), 1024 * i))
kvload(0, 1)
for b in (1, 2):
    a("s_add_u32 %s, %s, 4096" % (s(sKV), s(sKV)))
    kvload(b, 0)
    kvload(b, 1)
for u in range(3):
    a("s_add_u32 s11, %s, %d" % (s(sW), u + 1))
    a("s_and_b32 s11, s11, 3")
    a("s_mul_i32 s11, s11, 12288")
    a("s_add_u32 s11, s11, %d" % (PB + 4096 * u))
    a("v_add_u32 %s, s11, %s" % (v(225 + u), v(vL16)))
a("s_mov_b32 %s, 0" % s(sIt))
a("s_waitcnt vmcnt(8)")
stamp(6)
a(qk(0, 0))
a(qk(0, 1))
a("s_nop 10")
a(".p2align 5")
a.label("Lattn_loop")


def kv_extra(kt, loads=True, wait=8):
    b = (kt + 3) & 3
    ex = [{}, {}, {}, {}]
    if loads:
        ld = lambda part, i: "buffer_load_dwordx4 %s, %s, %s, %s offen offset:%d sc1" % (
            v(KV + 16 * b + 8 * part + 4 * i, 4), v(vL16), s(rWS, 4), s(sKV), 2048 * part + 1024 * i)
        ex[0] = {16: ["s_add_u32 %s, %s, 4096" % (s(sKV), s(sKV))]}
        ex[1] = {15: [ld(0, 0)], 17: [ld(0, 1)]}
        ex[2] = {15: [ld(1, 0)], 17: [ld(1, 1)]}
    if wait is not None:
        ex[3] = {0: ["s_waitcnt vmcnt(%d)" % wait]}
    return ex


for kt in range(4):
    ex = kv_extra(kt)
    for u in range(4):
        slot(4 * kt + u, extra=ex[u])
a("s_add_u32 %s, %s, 1" % (s(sIt), s(sIt)))
a("s_cmp_lt_u32 %s, 3" % s(sIt))
a("s_cbranch_scc1 Lattn_loop")
for kt in range(4):
    ex = kv_extra(kt, loads=(kt == 0), wait=(8, 4, 0, None)[kt])
    for u in range(4):
        n = 4 * kt + u
        e = dict(ex[u])
        if kt == 3 and u >= 2:
            for qd in range(4):
                e.setdefault(5 + 2 * qd, []).append(
                    "ds_write_b128 %s, %s offset:%d" % (v(225 + u - 2), v(O + 16 * (u - 2) + 4 * qd, 4), 1024 * qd))
        slot(n, last=(n == 15), extra=e)
a(pv(15, 0))
a("v_mov_b32 v225, %d" % CNT)
a("v_mov_b32 v226, 1")
a("s_mul_i32 s11, %s, 12288" % s(sW))
a(pv(15, 1))
for qd in range(4):
    a("ds_write_b128 %s, %s offset:%d" % (v(227), v(O + 32 + 4 * qd, 4), 1024 * qd))
stamp(7)
a("v_add_u32 v227, s11, %s" % v(vL16))
a("s_waitcnt lgkmcnt(0)")
a("ds_add_u32 v225, v226")
a("s_mov_b32 %s, %d" % (s(sSpin), SPIN_MAX))
a.label("Lasync")
a("ds_read_b32 v226, v225")
a("s_waitcnt lgkmcnt(0)")
a("v_readfirstlane_b32 s11, v226")
a("s_sub_u32 %s, %s, 1" % (s(sSpin), s(sSpin)))
a("s_cbranch_scc1 Lasync_done")
a("s_cmp_lt_u32 s11, 256")
a("s_cbranch_scc1 Lasync")
a.label("Lasync_done")
OW = O + 48
for u in range(3):
    for qd in range(4):
        a("ds_read_b128 %s, v227 offset:%d" % (v(S_ + 16 * u + 4 * qd, 4), PB + 4096 * u + 1024 * qd))
a("s_lshl_b32 s11, %s, 2" % s(sMA))
a("s_add_u32 s11, s11, %s" % s(sW))
a("s_lshl_b32 s12, s11, 4")
a("s_add_u32 s12, s12, %s" % s(sH))
a("s_lshl_b32 s13, s12, 11")
a("s_add_u32 %s, s13, 0x%x" % (s(sOC), O_OFF))
a("s_lshl_b32 s12, s12, 7")
a("s_add_u32 s12, s12, 0x%x" % FO_OFF)
a("v_mov_b32 %s, s12" % v(vFA))
for u in range(3):
    a("s_waitcnt lgkmcnt(%d)" % (8 - 4 * u))
    for p in range(8):
        a("v_pk_add_f32 %s, %s, %s" % (v(OW + 2 * p, 2), v(OW + 2 * p, 2), v(S_ + 16 * u + 2 * p, 2)))
a("v_pk_mul_f32 v[228:229], %s, 0 op_sel_hi:[1,0]" % v(OW, 2))
a("v_pk_mul_f32 v[232:233], %s, 0 op_sel_hi:[1,0]" % v(OW + 2, 2))
for p in range(2, 8):
    t = 228 if p % 2 == 0 else 232
    a("v_pk_fma_f32 %s, %s, 0, %s op_sel_hi:[1,0,1]" % (v(t, 2), v(OW + 2 * p, 2), v(t, 2)))
a("v_subrev_u32 v226, 0x%x, %s" % (f2u(2.0 ** -40), v(OW + 12)))
a("v_pk_add_f32 v[228:229], v[228:229], v[232:233]")
a("v_cmp_lt_u32 vcc, 0x%x, v226" % (f2u(2.0 ** 40) - f2u(2.0 ** -40)))
a("v_cmp_u_f32 %s, v228, v229" % s(sP, 2))
a("s_and_b64 vcc, vcc, %s" % s(mHI, 2))
a("s_or_b64 vcc, vcc, %s" % s(sP, 2))
if FORCE_FB:
    a("s_mov_b64 vcc, -1")
a("s_cbranch_vccnz Lfallback")
a.label("Lnormalize")
a("v_rcp_f32 v225, %s" % v(OW + 12))
a("v_lshlrev_b32 v226, 16, %s" % v(Q + 24 + 6))
a("v_mul_f32 v226, v225, v226")
a("v_mov_b32 v228, v226")
a("s_nop 1")
a("v_permlane32_swap_b32 v226, v228")
a("s_nop 1")
for p in range(8):
    a("v_pk_mul_f32 %s, %s, v[228:229] op_sel_hi:[1,0]" % (v(OW + 2 * p, 2), v(OW + 2 * p, 2)))
for p in range(8):
    a("v_cvt_pk_bf16_f32 %s, %s, %s" % (v(S_ + p), v(OW + 2 * p), v(OW + 2 * p + 1)))
a("v_cndmask_b32 %s, %s, %s, %s" % (v(S_ + 6), v(S_ + 6), v(vZero), s(mHI, 2)))
a("v_cndmask_b32 %s, %s, %s, %s" % (v(S_ + 7), v(S_ + 7), v(vZero), s(mHI, 2)))
a("buffer_store_dwordx4 %s, %s, %s, %s offen sc1" % (v(S_, 4), v(vL16), s(rWS, 4), s(sOC)))
a("buffer_store_dwordx4 %s, %s, %s, %s offen offset:1024 sc1" % (v(S_ + 4, 4), v(vL16), s(rWS, 4), s(sOC)))
for i in range(32):
    a("v_mov_b32 %s, 0" % v(i))
a("s_waitcnt vmcnt(0)")
flag_store(vFA, vFT)
stamp(8)
a("s_cmp_eq_u32 %s, 0" % s(sFin))
a("s_cbranch_scc1 Lexit")
a("s_mov_b32 %s, 1" % s(sHalf))
a("s_branch Ltail")

a.label("Lfallback")
a("s_lshl_b32 %s, %s, 18" % (s(sKV), s(sH)))
a("v_mov_b32 v225, 0xff800000")
a("s_mov_b32 %s, 0" % s(sIt))
a.label("Lfb1")
kvload(0, 0)
a("s_waitcnt vmcnt(0)")
a(qk(3, 0))
a(qk(3, 1))
a("s_nop 11")
for i in range(0, 16, 2):
    a("v_max3_f32 v225, %s, %s, v225" % (v(S_ + 48 + i), v(S_ + 49 + i)))
a("s_add_u32 %s, %s, 4096" % (s(sKV), s(sKV)))
a("s_add_u32 %s, %s, 1" % (s(sIt), s(sIt)))
a("s_cmp_lt_u32 %s, 64" % s(sIt))
a("s_cbranch_scc1 Lfb1")
a("v_mov_b32 v226, v225")
a("s_nop 1")
a("v_permlane32_swap_b32 v225, v226")
a("s_nop 1")
a("v_max_f32 v225, v225, v226")
for i in range(16):
    a("v_mov_b32 %s, 0" % v(OW + i))
a("s_lshl_b32 %s, %s, 18" % (s(sKV), s(sH)))
a("s_mov_b32 %s, 0" % s(sIt))
a.label("Lfb2")
kvload(0, 0)
kvload(0, 1)
a("s_waitcnt vmcnt(0)")
a(qk(3, 0))
a(qk(3, 1))
a("s_nop 11")
for i in range(16):
    a("v_sub_f32 %s, %s, v225" % (v(S_ + 48 + i), v(S_ + 48 + i)))
for i in range(16):
    a("v_exp_f32 %s, %s" % (v(S_ + 48 + i), v(S_ + 48 + i)))
a("s_nop 1")
a(pv(3, 0))
a(pv(3, 1))
a("s_add_u32 %s, %s, 4096" % (s(sKV), s(sKV)))
a("s_add_u32 %s, %s, 1" % (s(sIt), s(sIt)))
a("s_cmp_lt_u32 %s, 64" % s(sIt))
a("s_cbranch_scc1 Lfb2")
a("s_nop 11")
a("s_branch Lnormalize")

DA, HB, WF = 0, 64, 128


def dr_setup():
    a("s_and_b32 s12, %s, 3" % s(sW))
    a("s_mul_i32 s13, s12, %d" % DREG)
    a("s_add_u32 s13, s13, %d" % DB)
    a("v_bfe_u32 v240, %s, 2, 2" % v(vLane))
    a("v_lshrrev_b32 v243, 5, %s" % v(vLane))
    a("v_lshl_add_u32 v243, v243, 2, v240")
    a("v_lshl_add_u32 v243, v243, 7, s13")
    a("v_lshrrev_b32 v240, 1, v240")
    a("v_lshlrev_b32 v240, 6, v240")
    a("v_bfe_u32 v244, %s, 4, 1" % v(vLane))
    a("v_add_u32 v244, s12, v244")
    a("v_and_b32 v245, 3, %s" % v(vLane))
    a("v_lshlrev_b32 v245, 3, v245")
    for ct in range(2):
        a("v_add_u32 v246, %d, v244" % (2 * ct))
        a("v_and_b32 v246, 3, v246")
        a("v_lshl_add_u32 v246, v246, 5, v245")
        a("v_xor_b32 v246, v246, v240")
        a("v_add_u32 %s, v246, v243" % v(vDr + ct))


a.label("Ldown")
a("s_cmp_eq_u32 %s, 0" % s(sFin))
a("s_cbranch_scc1 Lexit")
dr_setup()
a("s_mul_i32 s11, s12, 7")
a("s_lshr_b32 s11, s11, 1")
a("s_lshl_b32 s13, %s, 4" % s(sR))
a("s_add_u32 s11, s11, s13")
a("s_lshl_b32 s11, s11, 9")
a("s_add_u32 s11, s11, 0x%x" % FH_OFF)
a("v_and_b32 v240, 15, %s" % v(vLane))
a("v_lshl_add_u32 %s, v240, 7, s11" % v(vFA))
a("s_mul_i32 s11, %s, 229376" % s(sR))
a("s_mul_i32 s13, s12, 28672")
a("s_add_u32 s11, s11, s13")
a("s_add_u32 %s, s11, 0x%x" % (s(sOA), H_OFF))
a("s_mul_i32 %s, s12, %d" % (s(sOB), 112 * 896))
a("v_add_u32 %s, 114688, %s" % (v(vH1), v(vL16)))
for i in range(64):
    a("v_mov_b32 %s, 0" % v(DA + i))
poll(vFA, vFT)
stamp(5)
vmq = []


def hload(i):
    if i and i % 4 == 0:
        a("s_add_u32 %s, %s, 4096" % (s(sOA), s(sOA)))
    for rt in range(2):
        a("buffer_load_dwordx4 %s, %s, %s, %s offen offset:%d sc1" % (
            v(HB + 8 * (i & 7) + 4 * rt, 4), v((vL16, vH1)[rt]), s(rWS, 4), s(sOA), 1024 * (i & 3)))
        vmq.append(("h", i))


def vm_wait(tags):
    idx = [k for k, t in enumerate(vmq) if t in tags]
    return None if not idx else len(vmq) - 1 - max(idx)


def wreads(dst, off):
    for ct in range(2):
        for jj in range(2):
            a("ds_read_b64_tr_b16 %s, %s offset:%d" % (v(dst + 4 * ct + 2 * jj, 2), v(vDr + ct), off + 1024 * jj))


for i in range(8):
    hload(i)
wreads(WF, 0)
for i in range(28):
    n = vm_wait({("h", i), ("w", i + 1)})
    a("s_waitcnt vmcnt(%d) lgkmcnt(0)" % n)
    if i + 1 < 28:
        wreads(WF + 8 * ((i + 1) & 1), ((i + 1) % 13) * 2048)
    for rt in range(2):
        for ct in range(2):
            mfma(DA + 32 * rt + 16 * ct, WF + 8 * (i & 1) + 4 * ct, HB + 8 * (i & 7) + 4 * rt)
    if i <= 14:
        for e in range(2):
            for x in dma_lines(vDd, rWD, sOC, sWd, (i % 13) * 2048 + 1024 * e):
                a(x)
            a("s_add_u32 %s, %s, 7168" % (s(sOC), s(sOC)))
            vmq.append(("w", i + 13))
    elif i <= 22:
        for e in range(2):
            for x in dma_lines(vDd, rWO, sOB, sWd, (i % 13) * 2048 + 1024 * e):
                a(x)
            a("s_add_u32 %s, %s, 7168" % (s(sOB), s(sOB)))
            vmq.append(("o", i))
    if i + 8 < 28:
        hload(i + 8)
stamp(7)
a("v_add_u32 v240, %s, %s" % (s(sWd), v(vL16)))
a("s_nop 10")
for o in range(4):
    for q in range(2):
        a("ds_write_b128 v240, %s offset:%d" % (v(DA + 32 + 8 * o + 4 * q, 4), (o >> 1) * 20480 + (o & 1) * 2048 + 1024 * q))
a("s_mov_b32 %s, 0" % s(sHalf))
stamp(8)
a("s_branch Ltail2")

OF, WOF, RR = 64, 128, 96
a.label("Ltail")
dr_setup()
a.label("Ltail2")
a("s_and_b32 s12, %s, 3" % s(sW))
a("s_lshl_b32 s11, %s, 1" % s(sR))
a("s_add_u32 s14, s11, %s" % s(sHalf))
a("s_lshl_b32 s11, s14, 2")
a("s_add_u32 s11, s11, s12")
a("s_lshl_b32 s13, s11, 13")
a("s_add_u32 %s, s13, 0x%x" % (s(sOA), O_OFF))
a("s_add_u32 %s, %s, 4096" % (s(sOB), s(sOA)))
a("s_lshl_b32 s11, s11, 9")
a("s_add_u32 s11, s11, 0x%x" % FO_OFF)
a("v_and_b32 v240, 3, %s" % v(vLane))
a("v_lshl_add_u32 %s, v240, 7, s11" % v(vFA))
srd(rOUT, pOUT, 2048 * 896)
a("v_and_b32 v240, 31, %s" % v(vLane))
a("s_lshl_b32 s14, s14, 5")
a("v_add_u32 v240, s14, v240")
a("v_mul_u32_u24 v240, 896, v240")
a("v_lshrrev_b32 v243, 5, %s" % v(vLane))
a("v_lshlrev_b32 v243, 4, v243")
a("s_lshl_b32 s13, %s, 7" % s(sT))
a("s_lshl_b32 s14, s12, 5")
a("s_add_u32 s13, s13, s14")
a("v_add3_u32 v247, v240, v243, s13")
a("s_mul_i32 s15, %s, 24576" % s(sHalf))
for o in range(1, 4):
    a("s_add_u32 s11, s12, %d" % o)
    a("s_and_b32 s11, s11, 3")
    a("s_mul_i32 s11, s11, 6144")
    a("s_add_u32 s11, s11, s15")
    a("s_add_u32 s11, s11, %d" % (PB + 2048 * (o - 1)))
    a("v_add_u32 %s, s11, %s" % (v(232 + o), v(vL16)))
a("s_mul_i32 s11, s12, 6144")
a("s_add_u32 s11, s11, s15")
a("v_add_u32 v232, s11, %s" % v(vL16))
for k in range(4):
    a("s_sub_u32 s11, s12, %d" % k)
    a("s_and_b32 s11, s11, 3")
    a("s_lshr_b32 s13, s11, 1")
    a("s_mul_i32 s13, s13, 20480")
    a("s_and_b32 s11, s11, 1")
    a("s_lshl_b32 s11, s11, 11")
    a("s_add_u32 s11, s11, s13")
    a("s_add_u32 s11, s11, %d" % (DB + k * DREG))
    a("v_add_u32 %s, s11, %s" % (v(236 + k), v(vL16)))
poll(vFA, vFT)
stamp(9)
for k in range(8):
    a("buffer_load_dwordx4 %s, %s, %s, %s offen offset:%d sc1" % (v(OF + 4 * k, 4), v(vL16), s(rWS, 4), s((sOA, sOB)[k >> 2]), 1024 * (k & 3)))
a("s_waitcnt lgkmcnt(0)")
a("s_barrier")
for k in range(8):
    wreads(WOF + 8 * k, 4096 + (28 * (k >> 1) + 16 * (k & 1)) * 128)
    if k in (2, 4, 6):
        a("s_waitcnt lgkmcnt(4)")
for k in range(8):
    a("s_waitcnt vmcnt(%d) lgkmcnt(0)" % (7 - k))
    for ct in range(2):
        mfma(16 * ct, WOF + 8 * k + 4 * ct, OF + 4 * k)
stamp(10)
a("s_nop 11")
for o in range(1, 4):
    for q in range(2):
        a("ds_write_b128 %s, %s offset:%d" % (v(232 + o), v(8 * o + 4 * q, 4), 1024 * q))
a("s_waitcnt lgkmcnt(0)")
a("s_barrier")
for u in range(3):
    for q in range(2):
        a("ds_read_b128 %s, v232 offset:%d" % (v(RR + 8 * u + 4 * q, 4), PB + 2048 * u + 1024 * q))
a("s_cmp_eq_u32 %s, 0" % s(sHalf))
a("s_cbranch_scc1 Lfin_sum")
for k in range(4):
    for q in range(2):
        a("ds_read_b128 %s, %s offset:%d" % (v(WOF + 8 * k + 4 * q, 4), v(236 + k), 1024 * q))
a("s_waitcnt lgkmcnt(0)")
for k in range(4):
    for p in range(4):
        a("v_pk_add_f32 %s, %s, %s" % (v(2 * p, 2), v(2 * p, 2), v(WOF + 8 * k + 2 * p, 2)))
a.label("Lfin_sum")
a("s_waitcnt lgkmcnt(0)")
for u in range(3):
    for p in range(4):
        a("v_pk_add_f32 %s, %s, %s" % (v(2 * p, 2), v(2 * p, 2), v(RR + 8 * u + 2 * p, 2)))
for p in range(4):
    a("v_cvt_pk_bf16_f32 %s, %s, %s" % (v(8 + p), v(2 * p), v(2 * p + 1)))
a("s_nop 1")
a("v_permlane32_swap_b32 v8, v10")
a("v_permlane32_swap_b32 v9, v11")
a("buffer_store_dwordx4 v[8:11], v247, %s, 0 offen" % s(rOUT, 4))
a.label("Lexit")
if PROF:
    stamp(11)
    a("s_lshl_b32 s11, s2, 3")
    a("s_add_u32 s11, s11, %s" % s(sW))
    a("s_lshl_b32 s11, s11, 6")
    a("s_add_u32 s11, s11, 0x%x" % PROF_OFF)
    a("v_lshl_add_u32 v240, %s, 2, s11" % v(vLane))
    a("s_mov_b64 exec, 0xffff")
    a("buffer_store_dword %s, v240, %s, 0 offen" % (v(vProf), s(rWS, 4)))
if DBGT:
    a("s_waitcnt vmcnt(0)")
    a("s_memrealtime s[100:101]")
    a("s_memtime s[98:99]")
    srd(rT, pDBG, 256)
    a("s_waitcnt lgkmcnt(0)")
    a("v_not_b32 v240, v253")
    a("v_mov_b32 v241, s100")
    a("v_sub_u32 v242, s98, v254")
    a("v_sub_u32 v243, s100, v253")
    a("s_mov_b64 exec, 1")
    a("buffer_atomic_umax v240, %s, %s, 0 offen offset:8" % (v(vZero), s(rT, 4)))
    a("buffer_atomic_umax v241, %s, %s, 0 offen offset:12" % (v(vZero), s(rT, 4)))
    a("buffer_atomic_umax v242, %s, %s, 0 offen offset:16" % (v(vZero), s(rT, 4)))
    a("buffer_atomic_umax v243, %s, %s, 0 offen offset:20" % (v(vZero), s(rT, 4)))
    a("buffer_atomic_umax v253, %s, %s, 0 offen offset:24" % (v(vZero), s(rT, 4)))
a.label("Lend")
a("s_endpgm")

if STF != "sc1":
    a.L = [(l[:-4] + (" " + STF.replace("+", " ") if STF != "none" else "")) if l.startswith("buffer_store_dwordx4") and l.endswith(" sc1") else l for l in a.L]
bad = check(a.L)
if bad:
    print("%d hazards" % len(bad))

head = open("cdna_kernels/%s.s.ref" % NAME).read().split("; Override launch")[0]
txt = head + "; @launch grid=(256,1,1) block=(512,1,1) lds=%d\n" % LDS_BYTES
txt += '.amdgcn_target "amdgcn-amd-amdhsa--gfx950"\n.text\n.globl %s_kernel\n.p2align 8\n.type %s_kernel,@function\n' % (NAME, NAME)
txt += a.text()
txt += """.section .rodata,"a"
.p2align 6
.amdhsa_kernel %s_kernel
  .amdhsa_next_free_vgpr 256
  .amdhsa_next_free_sgpr 102
  .amdhsa_accum_offset 256
  .amdhsa_group_segment_fixed_size 0
  .amdhsa_kernarg_size 88
  .amdhsa_user_sgpr_count 2
  .amdhsa_user_sgpr_kernarg_segment_ptr 1
  .amdhsa_system_sgpr_workgroup_id_x 1
.end_amdhsa_kernel
""" % NAME
open(OUT, "w").write(txt)
print("wrote", OUT, len(a.L), "lines")
```

```python
import sys, struct, math
from asmlib import Asm, v, s, check

NAME = "gated_mix__mha_block__glu_gated_geglu__prompt"
PROF = "--prof" in sys.argv
FORCE_FB = "--force-fallback" in sys.argv
def opt(name, default):
    for x in sys.argv:
        if x.startswith("--%s=" % name):
            return type(default)(x.split("=")[1])
    return default
SLEEP = opt("sleep", 1)
STF = opt("stf", "sc1")
NOPF = opt("nopf", 0)
DBGT = "--dbgt" in sys.argv
OUT = [a for a in sys.argv[1:] if not a.startswith("--")]
OUT = OUT[0] if OUT else "cdna_kernels/%s.s" % NAME


def f2u(x):
    return struct.unpack("<I", struct.pack("<f", x))[0]


KV_OFF, Q_OFF, H_OFF, O_OFF = 0, 0x400000, 0x600000, 0xD00000
FQ_OFF, FH_OFF, FO_OFF, E_OFF, PROF_OFF = 0xF00000, 0xF40000, 0xF80000, 0xFC0000, 0xFD0000
WS_BYTES = 0x1000000
XB, WB, TB, EX, CNT = 0, 49152, 155648, 159744, 160768
WSLOT = 20480
PB, DB, DREG = 0, 49152, 26624
LDS_BYTES = 163840
SPIN_MAX = 1 << 18

sB, sW, sM, sJ, sH, sMA, sR, sT, sNON = 2, 3, 4, 5, 6, 7, 8, 9, 10
t0, t1, t2, t3, t4 = 11, 12, 13, 14, 15
pX, pQKV, pWO, pWG, pWU, pWD, pGW, pOUT, pDBG, pWS = 16, 18, 20, 24, 26, 28, 30, 32, 34, 36
t5, t6 = 38, 39
rA, rB, rC, rWS, rWD, rWO, rOUT, rT = 40, 44, 48, 52, 56, 60, 64, 68
sIt, sOA, sOB, sOC, sSA, sSB, sSC = 72, 73, 74, 75, 76, 77, 78
sWr, sWd, sXs, sXp, sXo, sTr, sX0 = 79, 80, 81, 82, 83, 84, 85
sHalf, sCg, sFin, sSpin = 86, 87, 88, 89
mHI, mT, kG, kS = 90, 92, 94, 96
sP = 98
sStamp = 100
vL16, vLane, vZero = 250, 251, 252
vProf = 230

a = Asm()
nstamp = [0]


def stamp(k):
    if not PROF:
        return
    a("s_memtime %s" % s(sStamp, 2))
    a("s_waitcnt lgkmcnt(0)")
    a("v_writelane_b32 %s, %s, %d" % (v(vProf), s(sStamp), k))


def srd(r, p, nbytes):
    a("s_mov_b32 %s, %s" % (s(r), s(p)))
    a("s_mov_b32 %s, %s" % (s(r + 1), s(p + 1)))
    a("s_mov_b32 %s, 0x%x" % (s(r + 2), nbytes))
    a("s_mov_b32 %s, 0x20000" % s(r + 3))


def mfma(d, A, B, C=None):
    c = v(d, 16) if C is None else C
    a("v_mfma_f32_32x32x16_bf16 %s, %s, %s, %s" % (v(d, 16), v(A, 4), v(B, 4), c))


def dma(vo, r, so, m0src, m0add=0):
    if m0add:
        a("s_add_u32 m0, %s, %d" % (s(m0src), m0add))
    else:
        a("s_mov_b32 m0, %s" % s(m0src))
    a("s_nop 0")
    a("buffer_load_dwordx4 %s, %s, %s offen lds" % (v(vo), s(r, 4), s(so)))


uid = [0]


def L(p):
    uid[0] += 1
    return "L%s_%d" % (p, uid[0])


def poll(vaddr, vtmp):
    lp, done = L("poll"), L("pdone")
    a("s_mov_b32 %s, %d" % (s(sSpin), SPIN_MAX))
    a.label(lp)
    a("buffer_load_dword %s, %s, %s, 0 offen sc1" % (v(vtmp), v(vaddr), s(rWS, 4)))
    a("s_waitcnt vmcnt(0)")
    a("v_cmp_ne_u32 vcc, %s, %s" % (s(sNON), v(vtmp)))
    a("s_nop 1")
    a("s_cbranch_vccz %s" % done)
    a("s_sub_u32 %s, %s, 1" % (s(sSpin), s(sSpin)))
    a("s_cbranch_scc1 %s" % done)
    a("s_sleep %d" % SLEEP)
    a("s_branch %s" % lp)
    a.label(done)


def get_nonce(vn, vtmp):
    lp, done = L("non"), L("ndone")
    a("s_mov_b32 %s, %d" % (s(sSpin), SPIN_MAX))
    a.label(lp)
    a("v_readfirstlane_b32 %s, %s" % (s(sNON), v(vn)))
    a("s_nop 1")
    a("s_cmp_lg_u32 %s, 0" % s(sNON))
    a("s_cbranch_scc1 %s" % done)
    a("s_sub_u32 %s, %s, 1" % (s(sSpin), s(sSpin)))
    a("s_cbranch_scc1 %s" % done)
    a("buffer_load_dword %s, %s, %s, 0 offen sc1" % (v(vn), v(vZero), s(rT, 4)))
    a("s_waitcnt vmcnt(0)")
    a("s_branch %s" % lp)
    a.label(done)


def flag_store(vaddr, vtmp, nlanes=1):
    a("v_mov_b32 %s, %s" % (v(vtmp), s(sNON)))
    a("s_mov_b64 exec, %d" % ((1 << nlanes) - 1))
    a("buffer_store_dword %s, %s, %s, 0 offen sc1" % (v(vtmp), v(vaddr), s(rWS, 4)))
    a("s_mov_b64 exec, -1")


a.label(NAME + "_kernel")
a("s_cmp_ge_u32 s2, 256")
a("s_cbranch_scc1 Lend")
a("s_load_dwordx16 s[16:31], s[0:1], 0")
a("s_load_dwordx4 s[32:35], s[0:1], 64")
a("s_load_dwordx2 s[36:37], s[0:1], 80")
if PROF:
    a("v_mov_b32 %s, 0" % v(vProf))
    stamp(14)
if DBGT:
    a("s_memrealtime s[100:101]")
    a("s_memtime s[98:99]")
    a("s_waitcnt lgkmcnt(0)")
    a("v_mov_b32 v253, s100")
    a("v_mov_b32 v254, s98")
a("v_lshrrev_b32 v1, 6, v0")
a("v_and_b32 %s, 63, v0" % v(vLane))
a("v_readfirstlane_b32 %s, v1" % s(sW))
a("v_lshlrev_b32 %s, 4, %s" % (v(vL16), v(vLane)))
a("v_mov_b32 %s, 0" % v(vZero))
a("""
s_and_b32 s11, s2, 7
s_lshr_b32 s12, s2, 3
s_and_b32 s13, s11, 1
s_lshl_b32 s13, s13, 3
s_and_b32 s14, s12, 7
s_add_u32 s4, s13, s14
s_lshr_b32 s13, s11, 1
s_lshl_b32 s13, s13, 2
s_lshr_b32 s14, s12, 3
s_add_u32 s5, s13, s14
s_lshl_b32 s13, s11, 1
s_lshr_b32 s14, s12, 4
s_add_u32 s6, s13, s14
s_and_b32 s7, s12, 15
s_mul_i32 s13, s12, 37
s_lshr_b32 s13, s13, 8
s_mul_i32 s14, s13, 7
s_sub_u32 s9, s12, s14
s_lshl_b32 s14, s11, 2
s_add_u32 s8, s14, s13
s_cmp_lt_u32 s12, 28
""")
a("s_cselect_b32 %s, 1, 0" % s(sFin))
a("s_and_b32 %s, %s, 1" % (s(sHalf), s(sW)))
a("s_lshr_b32 %s, %s, 1" % (s(sCg), s(sW)))
a("s_mov_b32 %s, 0" % s(mHI))
a("s_mov_b32 %s, -1" % s(mHI + 1))
a("s_mov_b32 %s, 0x88880000" % s(mT))
a("s_mov_b32 %s, 0x88880000" % s(mT + 1))
K1 = -2.0 * math.sqrt(2.0 / math.pi) * math.log2(math.e)
a("s_mov_b32 %s, 0x%x" % (s(kG), f2u(K1 * 0.044715)))
a("s_mov_b32 %s, 0x%x" % (s(kG + 1), f2u(K1)))

vWb, vWa, vXb, vXa0, vXa1, vTb, vDA, vDB, vDC, vDC2 = 1, 4, 7, 8, 9, 10, 11, 12, 13, 14
a("""
v_lshrrev_b32 v16, 3, v251
v_and_b32 v17, 7, v251
v_bfe_u32 v18, v251, 2, 2
v_and_b32 v19, 3, v251
v_lshlrev_b32 v19, 3, v19
v_lshrrev_b32 v20, 5, v251
v_and_b32 v21, 31, v251
v_lshl_add_u32 v22, v20, 3, v18
v_lshlrev_b32 v22, 7, v22
v_lshrrev_b32 v23, 1, v18
v_lshlrev_b32 v23, 6, v23
""")
a("v_lshl_add_u32 %s, v20, 2, v18" % v(vTb))
a("v_lshlrev_b32 %s, 3, %s" % (v(vTb), v(vTb)))
a("v_bfe_u32 v24, v21, 1, 3")
a("v_xor_b32 v24, v24, v20")
a("v_lshlrev_b32 v24, 4, v24")
a("s_lshl_b32 s11, %s, 13" % s(sHalf))
a("v_lshl_add_u32 %s, v21, 7, v24" % v(vXb))
a("v_add_u32 %s, s11, %s" % (v(vXb), v(vXb)))
a("v_bfe_u32 v25, v16, 1, 1")
a("v_lshlrev_b32 v25, 2, v25")
a("v_xor_b32 v25, v25, v17")
a("v_lshlrev_b32 v25, 4, v25")
a("s_and_b32 s12, %s, 3" % s(sW))
a("s_lshl_b32 s13, s12, 3")
a("v_add_u32 v26, s13, v16")
a("s_mov_b32 %s, 0xffff0000" % s(sP))
a("s_mov_b32 %s, 0xffff0000" % s(sP + 1))


def tile_base(vd, sP0, sP1):
    a("v_mov_b32 v27, %s" % s(sP0))
    a("v_mov_b32 v28, %s" % s(sP1))
    a("v_cndmask_b32 v27, v27, v28, %s" % s(sP, 2))
    a("v_add_u32 v27, v27, v19")
    a("v_xor_b32 v27, v27, v23")
    a("v_add_u32 %s, v27, v22" % v(vd))


def gu_params(sTile):
    a("s_lshr_b32 s11, %s, 2" % s(sTile))
    a("s_lshl_b32 s11, s11, 12")
    a("s_and_b32 s12, %s, 3" % s(sTile))
    a("s_lshl_b32 s12, s12, 5")
    a("s_add_u32 s11, s11, s12")
    a("s_xor_b32 s12, s11, 32")
    a("s_add_u32 s12, s12, 8192")


def hp_params(sQ):
    a("s_lshr_b32 s11, %s, 1" % s(sQ))
    a("s_lshl_b32 s11, s11, 12")
    a("s_and_b32 s12, %s, 1" % s(sQ))
    a("s_mul_i32 s12, s12, 56")
    a("s_add_u32 s11, s11, s12")
    a("s_add_u32 s12, s11, 32")


def dma_voff(vd, sStride, sCol, u):
    a("v_mul_lo_u32 v27, v26, %s" % s(sStride))
    if u:
        a("v_xor_b32 v28, %d, v25" % (16 * u))
        a("v_add3_u32 %s, v27, v28, %s" % (v(vd), s(sCol)))
    else:
        a("v_add3_u32 %s, v27, v25, %s" % (v(vd), s(sCol)))


WG_BYTES, QKV_BYTES, X_BYTES = 448 * 3584, 448 * 2688, 2048 * 896

a("s_cmp_ge_u32 %s, 14" % s(sJ))
a("s_cbranch_scc1 Lsetup_qkv")
a("s_cmp_ge_u32 %s, 4" % s(sW))
a("s_cbranch_scc1 Lsetup_main_hi")
a("s_add_u32 s13, %s, 8" % s(sCg))
hp_params(13)
tile_base(vWb, 11, 12)
a("s_lshl_b32 s13, %s, 2" % s(sCg))
gu_params(13)
tile_base(vWb + 1, 11, 12)
a("s_mov_b32 s13, 3584")
a("s_lshl_b32 s14, %s, 8" % s(sJ))
a("s_add_u32 s14, s14, 128")
dma_voff(vDA, 13, 14, 2)
a("s_mov_b32 s13, 2688")
a("s_mul_i32 s14, %s, 112" % s(sJ))
dma_voff(vDB, 13, 14, 0)
a("s_mov_b32 %s, %d" % (s(sSA), 32 * 3584))
a("s_mov_b32 %s, %d" % (s(sSB), 32 * 2688))
a("s_waitcnt lgkmcnt(0)")
srd(rA, pWU, WG_BYTES)
srd(rB, pQKV, QKV_BYTES)
a("s_branch Lsetup_lo")
a.label("Lsetup_main_hi")
for c in range(3):
    a("s_lshl_b32 s13, %s, 2" % s(sCg))
    a("s_sub_u32 s13, s13, %d" % (7 - c))
    gu_params(13)
    tile_base(vWb + c, 11, 12)
a("s_mov_b32 s13, 3584")
a("s_lshl_b32 s14, %s, 8" % s(sJ))
dma_voff(vDA, 13, 14, 0)
dma_voff(vDC, 13, 14, 2)
a("v_add_u32 %s, 128, %s" % (v(vDB), v(vDA)))
for x in (sSA, sSB, sSC):
    a("s_mov_b32 %s, %d" % (s(x), 32 * 3584))
a("s_waitcnt lgkmcnt(0)")
srd(rA, pWG, WG_BYTES)
srd(rB, pWG, WG_BYTES)
srd(rC, pWU, WG_BYTES)
a("s_branch Lsetup_hi")
a.label("Lsetup_qkv")
a("s_sub_u32 s15, %s, 14" % s(sJ))
a("s_mul_i32 s15, s15, 560")
a("s_add_u32 s15, s15, %d" % (14 * 112))
a("s_mov_b32 s38, 2688")
a("s_cmp_ge_u32 %s, 4" % s(sW))
a("s_cbranch_scc1 Lsetup_qkv_hi")
for c in range(2):
    a("s_lshl_b32 s13, %s, 1" % s(sCg))
    a("s_add_u32 s13, s13, %d" % c)
    hp_params(13)
    tile_base(vWb + c, 11, 12)
a("s_add_u32 s14, s15, 336")
dma_voff(vDA, 38, 14, 0)
a("v_add_u32 %s, 112, %s" % (v(vDB), v(vDA)))
for x in (sSA, sSB):
    a("s_mov_b32 %s, %d" % (s(x), 32 * 2688))
a("s_waitcnt lgkmcnt(0)")
srd(rA, pQKV, QKV_BYTES)
srd(rB, pQKV, QKV_BYTES)
a("s_branch Lsetup_lo")
a.label("Lsetup_qkv_hi")
for c in range(3):
    a("s_mul_i32 s13, %s, 3" % s(sCg))
    a("s_sub_u32 s13, s13, %d" % (2 - c))
    hp_params(13)
    tile_base(vWb + c, 11, 12)
dma_voff(vDA, 38, 15, 0)
a("v_add_u32 %s, 112, %s" % (v(vDB), v(vDA)))
a("v_add_u32 %s, 224, %s" % (v(vDC), v(vDA)))
for x in (sSA, sSB, sSC):
    a("s_mov_b32 %s, %d" % (s(x), 32 * 2688))
a("s_waitcnt lgkmcnt(0)")
srd(rA, pQKV, QKV_BYTES)
srd(rB, pQKV, QKV_BYTES)
srd(rC, pQKV, QKV_BYTES)
a("s_branch Lsetup_hi")

ACC = 128
XS, WS_ = (64, 84), (72, 92)


def gate_load():
    srd(rT, pGW, 896)
    a("v_lshlrev_b32 v27, 1, v0")
    a("buffer_load_ushort v30, v27, %s, 0 offen" % s(rT, 4))


def common_setup():
    a("v_bfe_u32 v27, v0, 4, 1")
    a("v_lshlrev_b32 v28, 11, v27")
    a("v_lshrrev_b32 v27, 8, v0")
    a("v_lshl_add_u32 v28, v27, 10, v28")
    a("v_bfe_u32 v27, v0, 2, 1")
    a("v_lshl_add_u32 v28, v27, 9, v28")
    a("v_bfe_u32 v27, v0, 5, 3")
    a("v_lshl_add_u32 v28, v27, 6, v28")
    a("v_bfe_u32 v27, v0, 3, 1")
    a("v_lshl_add_u32 v28, v27, 5, v28")
    a("v_and_b32 v27, 3, v0")
    a("v_lshl_add_u32 v28, v27, 3, v28")
    a("v_add_u32 v28, %d, v28" % TB)
    a("v_mov_b32 v31, 0")
    srd(rWS, pWS, WS_BYTES)
    a("s_mov_b32 %s, %d" % (s(sWr), WB))
    a("s_mov_b32 %s, 0" % s(sXs))
    a("s_mov_b32 %s, 32768" % s(sXp))
    a("s_mov_b32 %s, 256" % s(sXo))
    a("s_mov_b32 %s, %d" % (s(sTr), TB))
    a("s_mov_b32 %s, 0" % s(sIt))


def addr_update(ncol, lo, par):
    a("s_or_b32 %s, %s, %d" % (s(sX0), s(sXs), 64 * par))
    for c in range(ncol):
        a("v_add_u32 %s, %s, %s" % (v(vWa + c), s(sWr), v(vWb + c)))
    a("v_xor_b32 %s, %s, %s" % (v(vXa0), s(sX0), v(vXb)))
    if lo:
        a("v_add_u32 v27, %s, %s" % (s(sTr), v(vTb)))
        a("v_cndmask_b32 %s, %s, v27, %s" % (v(vWa), v(vWa), s(mT, 2)))
    a("v_xor_b32 %s, 32, %s" % (v(vXa1), v(vXa0)))


def reads(ncol, st, ks):
    xa = vXa0 if ks == 0 else vXa1
    r = []
    rx = lambda rt: "ds_read_b128 %s, %s offset:%d" % (v(XS[st] + 4 * rt, 4), v(xa), 4096 * rt)
    rw = lambda c, jj: "ds_read_b64_tr_b16 %s, %s offset:%d" % (v(WS_[st] + 4 * c + 2 * jj, 2), v(vWa + c), 2048 * ks + 512 * jj)
    r += [rx(0), rw(0, 0), rw(0, 1), rx(1)]
    for c in range(1, ncol):
        r += [rw(c, 0), rw(c, 1)]
    return r


def mm(ncol, st, vor):
    out = []
    for c in range(ncol):
        for rt in range(2):
            d = ACC + 32 * c + 16 * rt
            W, X = WS_[st] + 4 * c, XS[st] + 4 * rt
            A, B = (X, W) if vor else (W, X)
            out.append("v_mfma_f32_32x32x16_bf16 %s, %s, %s, %s" % (v(d, 16), v(A, 4), v(B, 4), v(d, 16)))
    return out


def dma_lines(vo, r, so, m0src, m0add):
    return ["s_add_u32 m0, %s, %d" % (s(m0src), m0add), "s_nop 0",
            "buffer_load_dwordx4 %s, %s, %s offen lds" % (v(vo), s(r, 4), s(so))]


def step_dmas(lo, par):
    if lo:
        g = []
        pre = ["s_add_u32 s11, %s, %d" % (s(sXo), par * 57344)]
        g.append(pre + dma_lines(vDC, rC, 11, sOC, par * 8192))
        g.append(dma_lines(vDC2, rC, 11, sOC, par * 8192 + 1024))
        g.append(dma_lines(vDA, rA, sOA, sWd, 3 * 4096) + ["s_add_u32 %s, %s, %s" % (s(sOA), s(sOA), s(sSA))])
        g.append(dma_lines(vDB, rB, sOB, sWd, 4 * 4096) + ["s_add_u32 %s, %s, %s" % (s(sOB), s(sOB), s(sSB))])
        return g
    return [dma_lines(vd, r, sOA, sWd, 4096 * i) + (["s_add_u32 %s, %s, %s" % (s(sOA), s(sOA), s(sSA))] if i == 2 else [])
            for i, (vd, r) in enumerate(((vDA, rA), (vDB, rB), (vDC, rC)))]


def state_advance(lo, par):
    a("s_add_u32 %s, %s, s15" % (s(sWd), s(sWr)))
    a("s_add_u32 %s, %s, %d" % (s(sWr), s(sWr), WSLOT))
    a("s_cmp_eq_u32 %s, %d" % (s(sWr), WB + 5 * WSLOT))
    a("s_cselect_b32 %s, %d, %s" % (s(sWr), WB, s(sWr)))
    if lo:
        a("s_add_u32 %s, %s, 64" % (s(sTr), s(sTr)))
    if par == 1:
        if lo:
            a("s_add_u32 %s, %s, s14" % (s(sOC), s(sXs)))
            a("s_add_u32 %s, %s, 128" % (s(sXo), s(sXo)))
            a("s_cmp_ge_u32 %s, %d" % (s(sXo), 7 * 128))
            a("s_cselect_b32 %s, 0x40000000, %s" % (s(sXo), s(sXo)))
            a("s_cmp_eq_u32 %s, %d" % (s(sTr), TB + 512))
            a("s_cselect_b32 %s, %d, %s" % (s(sTr), TB + 1024, s(sTr)))
        a("s_add_u32 %s, %s, 16384" % (s(sXs), s(sXs)))
        a("s_cmp_eq_u32 %s, 49152" % s(sXs))
        a("s_cselect_b32 %s, 0, %s" % (s(sXs), s(sXs)))


def interleave(ms, fill):
    for i, m in enumerate(ms):
        a(m)
        if i < len(fill):
            for x in fill[i]:
                a(x)
    for g in fill[len(ms):]:
        for x in g:
            a(x)


def kloop(tag, lo, vor):
    ncol = 2 if lo else 3
    nvm = 10 if lo else 9
    top, mid = "Lk_%s" % tag, "Lkm_%s" % tag
    addr_update(ncol, lo, 0)
    a("s_waitcnt vmcnt(%d) lgkmcnt(0)" % nvm)
    a("s_barrier")
    stamp(2)
    for x in reads(ncol, 0, 0):
        a(x)
    d0 = step_dmas(lo, 0)
    for g in d0[:2]:
        for x in g:
            a(x)
    a("s_branch %s" % mid)
    a(".p2align 5")
    a.label(top)
    for par in range(2):
        d = step_dmas(lo, par)
        a("s_waitcnt vmcnt(%d) lgkmcnt(0)" % nvm)
        a("s_barrier")
        r = reads(ncol, 0, 0)
        fill = [r[2 * i:2 * i + 2] for i in range(len(r) // 2)] + d[:2]
        interleave(mm(ncol, 1, vor), fill)
        if par == 0:
            a.label(mid)
        a("s_waitcnt lgkmcnt(0)")
        r = reads(ncol, 1, 1)
        fill = [r[2 * i:2 * i + 2] for i in range(len(r) // 2)] + d[2:]
        interleave(mm(ncol, 0, vor), fill)
        state_advance(lo, par)
        addr_update(ncol, lo, 1 - par)
    a("s_add_u32 %s, %s, 1" % (s(sIt), s(sIt)))
    a("s_cmp_lt_u32 %s, 7" % s(sIt))
    a("s_cbranch_scc1 %s" % top)
    a("s_waitcnt lgkmcnt(0)")
    for m in mm(ncol, 1, vor):
        a(m)


a.label("Lsetup_lo")
srd(rC, pX, X_BYTES)
a("s_lshl_b32 s11, %s, 7" % s(sM))
a("s_lshl_b32 s12, %s, 4" % s(sW))
a("s_add_u32 s11, s11, s12")
a("v_add_u32 v27, s11, v16")
a("v_mul_u32_u24 v27, 896, v27")
a("v_lshrrev_b32 v28, 1, v16")
a("v_xor_b32 v28, v28, v17")
a("v_lshl_add_u32 %s, v28, 4, v27" % v(vDC))
a("v_xor_b32 v28, 4, v28")
a("v_lshl_add_u32 %s, v28, 4, v27" % v(vDC2))
a("v_add_u32 %s, %d, %s" % (v(vDC2), 8 * 896, v(vDC2)))
a("s_lshl_b32 s15, %s, 10" % s(sW))
a("s_lshl_b32 s14, %s, 11" % s(sW))
a("s_mov_b32 %s, 0" % s(sOA))
a("s_mov_b32 %s, 0" % s(sOB))
gate_load()
stamp(0)
for st in range(4):
    X, par = st >> 1, st & 1
    a("s_mov_b32 s11, %d" % (X * 128 + par * 57344))
    for x in dma_lines(vDC, rC, 11, 14, X * 16384 + par * 8192) + dma_lines(vDC2, rC, 11, 14, X * 16384 + par * 8192 + 1024):
        a(x)
    for x in dma_lines(vDA, rA, sOA, 15, WB + st * WSLOT + 3 * 4096) + dma_lines(vDB, rB, sOB, 15, WB + st * WSLOT + 4 * 4096):
        a(x)
    a("s_add_u32 %s, %s, %s" % (s(sOA), s(sOA), s(sSA)))
    a("s_add_u32 %s, %s, %s" % (s(sOB), s(sOB), s(sSB)))
common_setup()
a("s_add_u32 %s, s15, %d" % (s(sWd), WB + 4 * WSLOT))
a("s_add_u32 %s, s14, 32768" % s(sOC))
for i in range(64):
    a("v_mov_b32 %s, 0" % v(ACC + i))
a("v_mov_b32 v27, %d" % CNT)
a("ds_write_b32 v27, v31")
a("s_waitcnt vmcnt(16)")
a("ds_write_b64 v28, v[30:31]")
stamp(1)
a("s_cmp_eq_u32 %s, 15" % s(sJ))
a("s_cbranch_scc1 Lk_lo_v_entry")
kloop("lo_t", True, False)
a("s_branch Lepi_lo_t")
a.label("Lk_lo_v_entry")
kloop("lo_v", True, True)
a("s_branch Lepi_lo_v")

a.label("Lsetup_hi")
a("s_and_b32 s15, %s, 3" % s(sW))
a("s_lshl_b32 s15, s15, 10")
a("s_mov_b32 %s, 0" % s(sOA))
srd(rWS, pWS, WS_BYTES)
a("s_lshl_b32 s11, s2, 3")
a("s_add_u32 s11, s11, %s" % s(sW))
a("v_mov_b32 v32, %d" % E_OFF)
a("s_cmp_lg_u32 s11, 7")
a("s_cbranch_scc1 Lno_nonce1")
a("buffer_load_dword v33, v32, %s, 0 offen sc1" % s(rWS, 4))
a.label("Lno_nonce1")
gate_load()
stamp(0)
for st in range(4):
    for i, (vd, r) in enumerate(((vDA, rA), (vDB, rB), (vDC, rC))):
        for x in dma_lines(vd, r, sOA, 15, WB + st * WSLOT + i * 4096):
            a(x)
    a("s_add_u32 %s, %s, %s" % (s(sOA), s(sOA), s(sSA)))
common_setup()
a("s_add_u32 %s, s15, %d" % (s(sWd), WB + 4 * WSLOT))
for i in range(96):
    a("v_mov_b32 %s, 0" % v(ACC + i))
a("s_waitcnt vmcnt(12)")
a("ds_write_b64 v28, v[30:31]")
a("s_lshl_b32 s11, s2, 3")
a("s_add_u32 s11, s11, %s" % s(sW))
a("s_cmp_lg_u32 s11, 7")
a("s_cbranch_scc1 Lno_nonce2")
srd(rT, pDBG, 256)
a("v_add_u32 v33, 1, v33")
a("v_or_b32 v33, 0x80000000, v33")
a("s_mov_b64 exec, 1")
a("buffer_store_dword v33, v32, %s, 0 offen sc1" % s(rWS, 4))
a("buffer_store_dword v33, %s, %s, 0 offen sc1" % (v(vZero), s(rT, 4)))
a("s_mov_b64 exec, -1")
a.label("Lno_nonce2")
stamp(1)
a("s_cmp_ge_u32 %s, 14" % s(sJ))
a("s_cbranch_scc1 Lk_hi_v_entry")
kloop("hi_t", False, False)
a("s_branch Lepi_hi_t")
a.label("Lk_hi_v_entry")
kloop("hi_v", False, True)
a("s_branch Lepi_hi_v")

vNon, vFA, vFT = 240, 241, 242


def nonce_load():
    srd(rT, pDBG, 256)
    a("buffer_load_dword %s, %s, %s, 0 offen sc1" % (v(vNon), v(vZero), s(rT, 4)))


def gelu_tile(acc, vc, dst):
    T = 48
    for p in range(4):
        a("v_pk_mul_f32 %s, %s, %s" % (v(T + 2 * p, 2), v(acc + 2 * p, 2), v(acc + 2 * p, 2)))
    for p in range(4):
        a("v_pk_fma_f32 %s, %s, %s, %s op_sel:[0,0,1] op_sel_hi:[1,0,1]" % (v(T + 2 * p, 2), v(T + 2 * p, 2), s(kG, 2), s(kG, 2)))
    for p in range(4):
        a("v_pk_mul_f32 %s, %s, %s" % (v(T + 2 * p, 2), v(T + 2 * p, 2), v(acc + 2 * p, 2)))
    for i in range(8):
        a("v_exp_f32 %s, %s" % (v(T + i), v(T + i)))
    for p in range(4):
        a("v_pk_mul_f32 %s, %s, %s" % (v(acc + 8 + 2 * p, 2), v(acc + 8 + 2 * p, 2), v(acc + 2 * p, 2)))
    for p in range(4):
        a("v_pk_fma_f32 %s, %s, %s, %s op_sel_hi:[1,0,0]" % (v(T + 2 * p, 2), v(T + 2 * p, 2), v(vc, 2), v(vc, 2)))
    for i in range(8):
        a("v_rcp_f32 %s, %s" % (v(T + i), v(T + i)))
    a("s_nop 0")
    for p in range(4):
        a("v_pk_mul_f32 %s, %s, %s" % (v(acc + 8 + 2 * p, 2), v(acc + 8 + 2 * p, 2), v(T + 2 * p, 2)))
    for p in range(4):
        a("v_cvt_pk_bf16_f32 %s, %s, %s" % (v(dst + p), v(acc + 8 + 2 * p), v(acc + 9 + 2 * p)))


def qk_tile(acc, vpad, vaddr, so, dst):
    for p in range(8):
        a("v_pk_mul_f32 %s, %s, %s op_sel_hi:[1,0]" % (v(acc + 2 * p, 2), v(acc + 2 * p, 2), s(kS, 2)))
    for p in range(8):
        a("v_cvt_pk_bf16_f32 %s, %s, %s" % (v(dst + p), v(acc + 2 * p), v(acc + 2 * p + 1)))
    a("v_cndmask_b32 %s, %s, %s, %s" % (v(dst + 6), v(dst + 6), v(vpad), s(mHI, 2)))
    a("v_cndmask_b32 %s, %s, %s, %s" % (v(dst + 7), v(dst + 7), v(vZero), s(mHI, 2)))
    a("buffer_store_dwordx4 %s, %s, %s, %s offen sc1" % (v(dst, 4), v(vaddr), s(rWS, 4), s(so)))
    a("buffer_store_dwordx4 %s, %s, %s, %s offen offset:1024 sc1" % (v(dst + 4, 4), v(vaddr), s(rWS, 4), s(so)))


def v_tile(acc, so, dst):
    for p in range(8):
        a("v_cvt_pk_bf16_f32 %s, %s, %s" % (v(dst + p), v(acc + 2 * p), v(acc + 2 * p + 1)))
    for p in range(8):
        a("v_cndmask_b32 %s, %s, v29, %s" % (v(dst + p), v(dst + p), s(sP, 2)))
    a("buffer_store_dwordx4 %s, %s, %s, %s offen offset:2048 sc1" % (v(dst, 4), v(vL16), s(rWS, 4), s(so)))
    a("buffer_store_dwordx4 %s, %s, %s, %s offen offset:3072 sc1" % (v(dst + 4, 4), v(vL16), s(rWS, 4), s(so)))


def v_prep():
    a("s_mov_b32 %s, 0xf0000000" % s(sP))
    a("s_mov_b32 %s, 0xf0000000" % s(sP + 1))
    a("v_and_b32 v28, 31, %s" % v(vLane))
    a("v_cmp_eq_u32 vcc, 28, v28")
    a("v_mov_b32 v27, 0x3f803f80")
    a("s_nop 0")
    a("v_cndmask_b32 v29, %s, v27, vcc" % v(vZero))


def tile_index(sd):
    a("s_lshl_b32 %s, %s, 1" % (s(sd), s(sM)))
    a("s_add_u32 %s, %s, %s" % (s(sd), s(sd), s(sHalf)))
    a("s_lshl_b32 %s, %s, 1" % (s(sd), s(sd)))


def fq_addr(sHp):
    a("s_lshl_b32 s11, %s, 5" % s(sHp))
    a("s_lshl_b32 s12, %s, 1" % s(sM))
    a("s_add_u32 s11, s11, s12")
    a("s_add_u32 s11, s11, %s" % s(sHalf))
    a("s_lshl_b32 s11, s11, 7")
    a("s_add_u32 s11, s11, 0x%x" % FQ_OFF)
    a("v_lshl_add_u32 %s, %s, 12, s11" % (v(vFA), v(vLane)))


def fh_addr():
    a("s_lshl_b32 s11, %s, 1" % s(sM))
    a("s_add_u32 s11, s11, %s" % s(sHalf))
    a("s_lshl_b32 s11, s11, 4")
    a("s_add_u32 s11, s11, %s" % s(sJ))
    a("s_lshl_b32 s11, s11, 2")
    a("s_add_u32 s11, s11, %s" % s(sCg))
    a("s_lshl_b32 s11, s11, 7")
    a("s_add_u32 s11, s11, 0x%x" % FH_OFF)
    a("v_mov_b32 %s, s11" % v(vFA))


def h_base(sd, sTile):
    tile_index(sd)
    a("s_mul_i32 %s, %s, 114688" % (s(sd), s(sd)))
    a("s_lshl_b32 s11, %s, 3" % s(sJ))
    a("s_add_u32 s11, s11, %s" % s(sTile))
    a("s_lshl_b32 s11, s11, 10")
    a("s_add_u32 %s, %s, s11" % (s(sd), s(sd)))
    a("s_add_u32 %s, %s, 0x%x" % (s(sd), s(sd), H_OFF))


a.label("Lepi_lo_t")
stamp(3)
nonce_load()
a("s_lshl_b32 s13, %s, 1" % s(sJ))
a("s_add_u32 s13, s13, %s" % s(sCg))
a("s_lshl_b32 s14, %s, 1" % s(sCg))
a("s_add_u32 s14, s14, 28")
a("s_cmp_ge_u32 %s, 14" % s(sJ))
a("s_cselect_b32 s38, s14, s13")
tile_index(39)
a("s_cmp_lt_u32 s38, 16")
a("s_cselect_b32 %s, 0x%x, 0x3f800000" % (s(kS), f2u(math.log2(math.e) / math.sqrt(28.0))))
a("s_cselect_b32 s13, 0xffff, 0")
a("s_cselect_b32 s14, 0, 12")
a("s_cselect_b32 s15, 11, 12")
a("s_cselect_b32 s11, 0x%x, %d" % (Q_OFF, KV_OFF))
a("s_and_b32 s12, s38, 15")
a("s_lshl_b32 s12, s12, 6")
a("s_add_u32 s12, s12, s39")
a("s_lshl_b32 s12, s12, s15")
a("s_add_u32 %s, s11, s12" % s(sOA))
a("s_lshl_b32 s12, 1, s15")
a("s_add_u32 %s, %s, s12" % (s(sOB), s(sOA)))
a("v_lshrrev_b32 v27, 1, %s" % v(vLane))
a("v_xor_b32 v27, v27, %s" % v(vLane))
a("v_bfe_u32 v27, v27, 2, 1")
a("v_mul_u32_u24 v27, s14, v27")
a("v_xor_b32 v27, v27, %s" % v(vLane))
a("v_lshlrev_b32 v26, 4, v27")
a("v_mov_b32 v16, %s" % v(ACC + 12))
a("v_mov_b32 v17, %s" % v(ACC + 16 + 12))
a("s_nop 1")
a("v_permlane32_swap_b32 v16, v17")
a("s_nop 1")
a("v_cvt_pk_bf16_f32 v17, v17, v17")
a("v_and_b32 v17, 0xffff0000, v17")
a("v_mul_f32 v17, 0x%x, v17" % f2u(-math.log2(math.e)))
a("v_exp_f32 v17, v17")
a("s_nop 0")
a("v_add_f32 v17, 1.0, v17")
a("v_rcp_f32 v17, v17")
a("s_nop 0")
a("v_cvt_pk_bf16_f32 v18, v17, v17")
a("v_and_b32 v17, 0xffff0000, v18")
a("v_sub_f32 v17, 1.0, v17")
a("v_cvt_pk_bf16_f32 v17, v17, v17")
a("v_and_b32 v17, 0xffff0000, v17")
a("v_rcp_f32 v20, v17")
a("v_and_b32 v18, s13, v18")
a("v_min_f32 v20, 0x7f000000, v20")
a("s_lshl_b32 s11, %s, 8" % s(sHalf))
a("s_add_u32 s11, s11, %d" % EX)
a("v_lshl_add_u32 v27, %s, 2, s11" % v(vLane))
a("ds_write_b32 v27, v20")
a("v_mov_b32 v19, v18")
a("v_mov_b32 v22, v20")
a("s_nop 1")
a("v_permlane32_swap_b32 v18, v19")
a("v_permlane32_swap_b32 v20, v22")
qk_tile(ACC, 18, 26, sOA, 32)
qk_tile(ACC + 16, 19, 26, sOB, 40)
a("s_cmp_ge_u32 %s, 14" % s(sJ))
a("s_cbranch_scc1 Lepi_lo_k2")
a("s_waitcnt vmcnt(5) lgkmcnt(0)")
a("s_barrier")
gelu_tile(ACC + 32, 20, 32)
gelu_tile(ACC + 48, 22, 36)
fq_addr(38)
a("s_lshl_b32 s13, %s, 2" % s(sCg))
h_base(sOA, 13)
a("s_add_u32 %s, %s, 114688" % (s(sOB), s(sOA)))
stamp(12)
a("s_waitcnt vmcnt(0)")
get_nonce(vNon, vFT)
flag_store(vFA, vFT)
stamp(4)
a("buffer_store_dwordx4 v[32:35], %s, %s, %s offen sc1" % (v(vL16), s(rWS, 4), s(sOA)))
a("buffer_store_dwordx4 v[36:39], %s, %s, %s offen sc1" % (v(vL16), s(rWS, 4), s(sOB)))
fh_addr()
a("s_waitcnt vmcnt(0)")
flag_store(vFA, vFT)
stamp(13)
a("s_branch Lattn")
a.label("Lepi_lo_k2")
a("s_add_u32 %s, %s, 0x40000" % (s(sOA), s(sOA)))
a("s_add_u32 %s, %s, 0x40000" % (s(sOB), s(sOB)))
qk_tile(ACC + 32, vZero, 26, sOA, 48)
qk_tile(ACC + 48, vZero, 26, sOB, 56)
a("s_waitcnt vmcnt(9) lgkmcnt(0)")
a("s_barrier")
fq_addr(38)
a("s_waitcnt vmcnt(0)")
get_nonce(vNon, vFT)
flag_store(vFA, vFT, 2)
stamp(4)
a("s_branch Lattn")


def v_epilogue(ncol):
    tile_index(39)
    v_prep()
    a("s_sub_u32 s12, s38, 32")
    a("s_lshl_b32 s12, s12, 6")
    a("s_add_u32 s12, s12, s39")
    a("s_lshl_b32 %s, s12, 12" % s(sOA))
    a("s_add_u32 %s, %s, 4096" % (s(sOB), s(sOA)))
    a("s_nop 3")
    for c in range(ncol):
        v_tile(ACC + 32 * c, sOA, 32 + 16 * (c & 1))
        v_tile(ACC + 32 * c + 16, sOB, 40 + 16 * (c & 1))
        if c + 1 < ncol:
            a("s_add_u32 %s, %s, 0x40000" % (s(sOA), s(sOA)))
            a("s_add_u32 %s, %s, 0x40000" % (s(sOB), s(sOB)))
    a("s_waitcnt vmcnt(%d)" % (4 * ncol + 1))
    a("s_barrier")
    fq_addr(38)
    a("s_waitcnt vmcnt(0)")
    get_nonce(vNon, vFT)
    flag_store(vFA, vFT, ncol)
    stamp(4)


a.label("Lepi_lo_v")
stamp(3)
nonce_load()
a("s_lshl_b32 s38, %s, 1" % s(sCg))
a("s_add_u32 s38, s38, 38")
v_epilogue(2)
a("s_branch Lattn")

vDd, vDr, vH1 = 226, 227, 229


def d_prefetch():
    skip = L("nopf")
    a("s_cmp_eq_u32 %s, 0" % s(sFin))
    a("s_cbranch_scc1 %s" % skip)
    srd(rWD, pWD, 1792 * 896)
    srd(rWO, pWO, 448 * 896)
    a("v_lshrrev_b32 v16, 3, %s" % v(vLane))
    a("v_and_b32 v17, 7, %s" % v(vLane))
    a("v_bfe_u32 v18, v16, 1, 1")
    a("v_lshlrev_b32 v18, 2, v18")
    a("v_xor_b32 v18, v18, v17")
    a("v_lshlrev_b32 v18, 4, v18")
    a("v_mul_u32_u24 v16, 896, v16")
    a("s_lshl_b32 s11, %s, 7" % s(sT))
    a("v_add3_u32 %s, v16, v18, s11" % v(vDd))
    a("s_and_b32 s12, %s, 3" % s(sW))
    a("s_mul_i32 %s, s12, %d" % (s(sOC), 448 * 896))
    a("s_mul_i32 %s, s12, %d" % (s(sWd), DREG))
    a("s_add_u32 %s, %s, %d" % (s(sWd), s(sWd), DB))
    for n in range(26):
        for x in dma_lines(vDd, rWD, sOC, sWd, 1024 * n):
            a(x)
        a("s_add_u32 %s, %s, 7168" % (s(sOC), s(sOC)))
    a.label(skip)


a.label("Lepi_hi_v")
stamp(3)
nonce_load()
a("s_mul_i32 s38, %s, 10" % s(sJ))
a("s_mul_i32 s11, %s, 3" % s(sCg))
a("s_add_u32 s38, s38, s11")
a("s_sub_u32 s38, s38, %d" % (140 + 6 - 32))
v_epilogue(3)
d_prefetch()
a("s_branch Ldown")

a.label("Lepi_hi_t")
stamp(3)
nonce_load()
a("s_lshl_b32 s11, %s, 8" % s(sHalf))
a("s_add_u32 s11, s11, %d" % EX)
a("v_and_b32 v27, 31, %s" % v(vLane))
a("v_lshl_add_u32 v27, v27, 2, s11")
a("s_lshl_b32 s13, %s, 2" % s(sCg))
a("s_sub_u32 s13, s13, 7")
h_base(sOA, 13)
a("s_add_u32 %s, %s, 114688" % (s(sOB), s(sOA)))
a("s_waitcnt vmcnt(0)")
a("s_barrier")
a("ds_read_b32 v20, v27")
a("ds_read_b32 v22, v27 offset:128")
d_prefetch()
a("s_waitcnt lgkmcnt(0)")
for c in range(3):
    for rt in range(2):
        d = 32 + 4 * rt + 8 * (c & 1)
        gelu_tile(ACC + 32 * c + 16 * rt, 20 + 2 * rt, d)
        a("buffer_store_dwordx4 %s, %s, %s, %s offen offset:%d sc1" % (v(d, 4), v(vL16), s(rWS, 4), s((sOA, sOB)[rt]), 1024 * c))
fh_addr()
stamp(12)
a("s_waitcnt vmcnt(0)")
get_nonce(vNon, vFT)
flag_store(vFA, vFT)
stamp(4)
a("s_branch Ldown")

Q, O, S_, KV, vIdx = 0, 32, 96, 160, 224
sKV, sQb = sOA, sOB


def kvload(b, part, so=None):
    so = sKV if so is None else so
    for i in range(2):
        a("buffer_load_dwordx4 %s, %s, %s, %s offen offset:%d sc1" % (
            v(KV + 16 * b + 8 * part + 4 * i, 4), v(vL16), s(rWS, 4), s(so), 2048 * part + 1024 * i))


def qk(n, half):
    kt, u = n >> 2, n & 3
    K = KV + 16 * (kt & 3) + 4 * half
    d = S_ + 16 * u
    return "v_mfma_f32_32x32x16_bf16 %s, %s, %s, %s" % (v(d, 16), v(K, 4), v(Q + 8 * u + 4 * half, 4), v(d, 16) if half else "0")


def pv(n, half):
    kt, u = n >> 2, n & 3
    V = KV + 16 * (kt & 3) + 8 + 4 * half
    return "v_smfmac_f32_32x32x32_bf16 %s, %s, %s, %s" % (v(O + 16 * u, 16), v(V, 4), v(S_ + 16 * u + 8 * half, 8), v(vIdx))


def slot(n, last=False, extra=None):
    u = n & 3
    extra = extra or {}
    e = ["v_exp_f32 %s, %s" % (v(S_ + 16 * u + i), v(S_ + 16 * u + i)) for i in range(16)]
    if not last:
        seq = [qk(n + 1, 0)] + e[0:3] + [qk(n + 1, 1)] + e[3:6]
    else:
        seq = e[0:6]
    seq += [pv(n - 1, 0)] + e[6:9] + [pv(n - 1, 1)] + e[9:16]
    for i, x in enumerate(seq):
        for y in extra.get(i, []):
            a(y)
        a(x)


a.label("Lattn")
a("s_setprio 2")
a("s_lshl_b32 s11, %s, 3" % s(sW))
a("v_and_b32 v16, 7, %s" % v(vLane))
a("v_add_u32 v16, s11, v16")
a("v_bfe_u32 v17, %s, 3, 1" % v(vLane))
a("v_lshlrev_b32 v17, 4, v17")
a("s_add_u32 s12, %s, 16" % s(sH))
a("v_add_u32 v17, s12, v17")
a("v_lshl_add_u32 v16, v17, 5, v16")
a("s_lshl_b32 s11, %s, 5" % s(sH))
a("s_lshl_b32 s12, %s, 1" % s(sMA))
a("s_add_u32 s11, s11, s12")
a("v_and_b32 v17, 1, %s" % v(vLane))
a("v_add_u32 v17, s11, v17")
a("v_cmp_gt_u32 vcc, 16, %s" % v(vLane))
a("s_mov_b32 s11, 0x%x" % FQ_OFF)
a("s_nop 0")
a("v_cndmask_b32 v16, v17, v16, vcc")
a("v_lshl_add_u32 %s, v16, 7, s11" % v(vFA))
for i in range(64):
    a("v_mov_b32 %s, 0" % v(O + i))
for i in range(16):
    a("v_mov_b32 %s, 0" % v(S_ + 48 + i))
for i in range(8):
    a("v_mov_b32 %s, 0" % v(KV + 48 + 8 + i))
a("v_mov_b32 %s, 0xdddd" % v(vIdx))
a("s_lshl_b32 s11, %s, 6" % s(sH))
a("s_lshl_b32 s12, %s, 4" % s(sW))
a("s_add_u32 s12, s12, s11")
a("s_lshl_b32 %s, s12, 12" % s(sKV))
a("s_lshl_b32 s12, %s, 2" % s(sMA))
a("s_add_u32 s11, s11, s12")
a("s_lshl_b32 s11, s11, 11")
a("s_add_u32 %s, s11, 0x%x" % (s(sQb), Q_OFF))
poll(vFA, vFT)
stamp(5)
kvload(0, 0)
for u in range(4):
    a("s_add_u32 s11, %s, %d" % (s(sW), u + 1))
    a("s_and_b32 s11, s11, 3")
    a("s_lshl_b32 s11, s11, 11")
    a("s_add_u32 s11, s11, %s" % s(sQb))
    for i in range(2):
        a("buffer_load_dwordx4 %s, %s, %s, s11 offen offset:%d sc1" % (v(Q + 8 * u + 4 * i, 4), v(vL16), s(rWS, 4), 1024 * i))
kvload(0, 1)
for b in (1, 2):
    a("s_add_u32 %s, %s, 4096" % (s(sKV), s(sKV)))
    kvload(b, 0)
    kvload(b, 1)
for u in range(3):
    a("s_add_u32 s11, %s, %d" % (s(sW), u + 1))
    a("s_and_b32 s11, s11, 3")
    a("s_mul_i32 s11, s11, 12288")
    a("s_add_u32 s11, s11, %d" % (PB + 4096 * u))
    a("v_add_u32 %s, s11, %s" % (v(225 + u), v(vL16)))
a("s_mov_b32 %s, 0" % s(sIt))
a("s_waitcnt vmcnt(8)")
stamp(6)
a(qk(0, 0))
a(qk(0, 1))
a("s_nop 10")
a(".p2align 5")
a.label("Lattn_loop")


def kv_extra(kt, loads=True, wait=8):
    b = (kt + 3) & 3
    ex = [{}, {}, {}, {}]
    if loads:
        ld = lambda part, i: "buffer_load_dwordx4 %s, %s, %s, %s offen offset:%d sc1" % (
            v(KV + 16 * b + 8 * part + 4 * i, 4), v(vL16), s(rWS, 4), s(sKV), 2048 * part + 1024 * i)
        ex[0] = {16: ["s_add_u32 %s, %s, 4096" % (s(sKV), s(sKV))]}
        ex[1] = {15: [ld(0, 0)], 17: [ld(0, 1)]}
        ex[2] = {15: [ld(1, 0)], 17: [ld(1, 1)]}
    if wait is not None:
        ex[3] = {0: ["s_waitcnt vmcnt(%d)" % wait]}
    return ex


for kt in range(4):
    ex = kv_extra(kt)
    for u in range(4):
        slot(4 * kt + u, extra=ex[u])
a("s_add_u32 %s, %s, 1" % (s(sIt), s(sIt)))
a("s_cmp_lt_u32 %s, 3" % s(sIt))
a("s_cbranch_scc1 Lattn_loop")
for kt in range(4):
    ex = kv_extra(kt, loads=(kt == 0), wait=(8, 4, 0, None)[kt])
    for u in range(4):
        n = 4 * kt + u
        e = dict(ex[u])
        if kt == 3 and u >= 2:
            for qd in range(4):
                e.setdefault(5 + 2 * qd, []).append(
                    "ds_write_b128 %s, %s offset:%d" % (v(225 + u - 2), v(O + 16 * (u - 2) + 4 * qd, 4), 1024 * qd))
        slot(n, last=(n == 15), extra=e)
a(pv(15, 0))
a("v_mov_b32 v225, %d" % CNT)
a("v_mov_b32 v226, 1")
a("s_mul_i32 s11, %s, 12288" % s(sW))
a(pv(15, 1))
for qd in range(4):
    a("ds_write_b128 %s, %s offset:%d" % (v(227), v(O + 32 + 4 * qd, 4), 1024 * qd))
stamp(7)
a("v_add_u32 v227, s11, %s" % v(vL16))
a("s_waitcnt lgkmcnt(0)")
a("ds_add_u32 v225, v226")
a("s_mov_b32 %s, %d" % (s(sSpin), SPIN_MAX))
a.label("Lasync")
a("ds_read_b32 v226, v225")
a("s_waitcnt lgkmcnt(0)")
a("v_readfirstlane_b32 s11, v226")
a("s_sub_u32 %s, %s, 1" % (s(sSpin), s(sSpin)))
a("s_cbranch_scc1 Lasync_done")
a("s_cmp_lt_u32 s11, 256")
a("s_cbranch_scc1 Lasync")
a.label("Lasync_done")
OW = O + 48
for u in range(3):
    for qd in range(4):
        a("ds_read_b128 %s, v227 offset:%d" % (v(S_ + 16 * u + 4 * qd, 4), PB + 4096 * u + 1024 * qd))
a("s_lshl_b32 s11, %s, 2" % s(sMA))
a("s_add_u32 s11, s11, %s" % s(sW))
a("s_lshl_b32 s12, s11, 4")
a("s_add_u32 s12, s12, %s" % s(sH))
a("s_lshl_b32 s13, s12, 11")
a("s_add_u32 %s, s13, 0x%x" % (s(sOC), O_OFF))
a("s_lshl_b32 s12, s12, 7")
a("s_add_u32 s12, s12, 0x%x" % FO_OFF)
a("v_mov_b32 %s, s12" % v(vFA))
for u in range(3):
    a("s_waitcnt lgkmcnt(%d)" % (8 - 4 * u))
    for p in range(8):
        a("v_pk_add_f32 %s, %s, %s" % (v(OW + 2 * p, 2), v(OW + 2 * p, 2), v(S_ + 16 * u + 2 * p, 2)))
a("v_pk_mul_f32 v[228:229], %s, 0 op_sel_hi:[1,0]" % v(OW, 2))
a("v_pk_mul_f32 v[232:233], %s, 0 op_sel_hi:[1,0]" % v(OW + 2, 2))
for p in range(2, 8):
    t = 228 if p % 2 == 0 else 232
    a("v_pk_fma_f32 %s, %s, 0, %s op_sel_hi:[1,0,1]" % (v(t, 2), v(OW + 2 * p, 2), v(t, 2)))
a("v_subrev_u32 v226, 0x%x, %s" % (f2u(2.0 ** -40), v(OW + 12)))
a("v_pk_add_f32 v[228:229], v[228:229], v[232:233]")
a("v_cmp_lt_u32 vcc, 0x%x, v226" % (f2u(2.0 ** 40) - f2u(2.0 ** -40)))
a("v_cmp_u_f32 %s, v228, v229" % s(sP, 2))
a("s_and_b64 vcc, vcc, %s" % s(mHI, 2))
a("s_or_b64 vcc, vcc, %s" % s(sP, 2))
if FORCE_FB:
    a("s_mov_b64 vcc, -1")
a("s_cbranch_vccnz Lfallback")
a.label("Lnormalize")
a("v_rcp_f32 v225, %s" % v(OW + 12))
a("v_lshlrev_b32 v226, 16, %s" % v(Q + 24 + 6))
a("v_mul_f32 v226, v225, v226")
a("v_mov_b32 v228, v226")
a("s_nop 1")
a("v_permlane32_swap_b32 v226, v228")
a("s_nop 1")
for p in range(8):
    a("v_pk_mul_f32 %s, %s, v[228:229] op_sel_hi:[1,0]" % (v(OW + 2 * p, 2), v(OW + 2 * p, 2)))
for p in range(8):
    a("v_cvt_pk_bf16_f32 %s, %s, %s" % (v(S_ + p), v(OW + 2 * p), v(OW + 2 * p + 1)))
a("v_cndmask_b32 %s, %s, %s, %s" % (v(S_ + 6), v(S_ + 6), v(vZero), s(mHI, 2)))
a("v_cndmask_b32 %s, %s, %s, %s" % (v(S_ + 7), v(S_ + 7), v(vZero), s(mHI, 2)))
a("buffer_store_dwordx4 %s, %s, %s, %s offen sc1" % (v(S_, 4), v(vL16), s(rWS, 4), s(sOC)))
a("buffer_store_dwordx4 %s, %s, %s, %s offen offset:1024 sc1" % (v(S_ + 4, 4), v(vL16), s(rWS, 4), s(sOC)))
for i in range(32):
    a("v_mov_b32 %s, 0" % v(i))
a("s_waitcnt vmcnt(0)")
flag_store(vFA, vFT)
stamp(8)
a("s_cmp_eq_u32 %s, 0" % s(sFin))
a("s_cbranch_scc1 Lexit")
a("s_mov_b32 %s, 1" % s(sHalf))
a("s_branch Ltail")

a.label("Lfallback")
a("s_lshl_b32 %s, %s, 18" % (s(sKV), s(sH)))
a("v_mov_b32 v225, 0xff800000")
a("s_mov_b32 %s, 0" % s(sIt))
a.label("Lfb1")
kvload(0, 0)
a("s_waitcnt vmcnt(0)")
a(qk(3, 0))
a(qk(3, 1))
a("s_nop 11")
for i in range(0, 16, 2):
    a("v_max3_f32 v225, %s, %s, v225" % (v(S_ + 48 + i), v(S_ + 49 + i)))
a("s_add_u32 %s, %s, 4096" % (s(sKV), s(sKV)))
a("s_add_u32 %s, %s, 1" % (s(sIt), s(sIt)))
a("s_cmp_lt_u32 %s, 64" % s(sIt))
a("s_cbranch_scc1 Lfb1")
a("v_mov_b32 v226, v225")
a("s_nop 1")
a("v_permlane32_swap_b32 v225, v226")
a("s_nop 1")
a("v_max_f32 v225, v225, v226")
for i in range(16):
    a("v_mov_b32 %s, 0" % v(OW + i))
a("s_lshl_b32 %s, %s, 18" % (s(sKV), s(sH)))
a("s_mov_b32 %s, 0" % s(sIt))
a.label("Lfb2")
kvload(0, 0)
kvload(0, 1)
a("s_waitcnt vmcnt(0)")
a(qk(3, 0))
a(qk(3, 1))
a("s_nop 11")
for i in range(16):
    a("v_sub_f32 %s, %s, v225" % (v(S_ + 48 + i), v(S_ + 48 + i)))
for i in range(16):
    a("v_exp_f32 %s, %s" % (v(S_ + 48 + i), v(S_ + 48 + i)))
a("s_nop 1")
a(pv(3, 0))
a(pv(3, 1))
a("s_add_u32 %s, %s, 4096" % (s(sKV), s(sKV)))
a("s_add_u32 %s, %s, 1" % (s(sIt), s(sIt)))
a("s_cmp_lt_u32 %s, 64" % s(sIt))
a("s_cbranch_scc1 Lfb2")
a("s_nop 11")
a("s_branch Lnormalize")

DA, HB, WF = 0, 64, 128


def dr_setup():
    a("s_and_b32 s12, %s, 3" % s(sW))
    a("s_mul_i32 s13, s12, %d" % DREG)
    a("s_add_u32 s13, s13, %d" % DB)
    a("v_bfe_u32 v240, %s, 2, 2" % v(vLane))
    a("v_lshrrev_b32 v243, 5, %s" % v(vLane))
    a("v_lshl_add_u32 v243, v243, 2, v240")
    a("v_lshl_add_u32 v243, v243, 7, s13")
    a("v_lshrrev_b32 v240, 1, v240")
    a("v_lshlrev_b32 v240, 6, v240")
    a("v_bfe_u32 v244, %s, 4, 1" % v(vLane))
    a("v_add_u32 v244, s12, v244")
    a("v_and_b32 v245, 3, %s" % v(vLane))
    a("v_lshlrev_b32 v245, 3, v245")
    for ct in range(2):
        a("v_add_u32 v246, %d, v244" % (2 * ct))
        a("v_and_b32 v246, 3, v246")
        a("v_lshl_add_u32 v246, v246, 5, v245")
        a("v_xor_b32 v246, v246, v240")
        a("v_add_u32 %s, v246, v243" % v(vDr + ct))


a.label("Ldown")
a("s_cmp_eq_u32 %s, 0" % s(sFin))
a("s_cbranch_scc1 Lexit")
dr_setup()
a("s_mul_i32 s11, s12, 7")
a("s_lshr_b32 s11, s11, 1")
a("s_lshl_b32 s13, %s, 4" % s(sR))
a("s_add_u32 s11, s11, s13")
a("s_lshl_b32 s11, s11, 9")
a("s_add_u32 s11, s11, 0x%x" % FH_OFF)
a("v_and_b32 v240, 15, %s" % v(vLane))
a("v_lshl_add_u32 %s, v240, 7, s11" % v(vFA))
a("s_mul_i32 s11, %s, 229376" % s(sR))
a("s_mul_i32 s13, s12, 28672")
a("s_add_u32 s11, s11, s13")
a("s_add_u32 %s, s11, 0x%x" % (s(sOA), H_OFF))
a("s_mul_i32 %s, s12, %d" % (s(sOB), 112 * 896))
a("v_add_u32 %s, 114688, %s" % (v(vH1), v(vL16)))
for i in range(64):
    a("v_mov_b32 %s, 0" % v(DA + i))
poll(vFA, vFT)
stamp(5)
vmq = []


def hload(i):
    if i and i % 4 == 0:
        a("s_add_u32 %s, %s, 4096" % (s(sOA), s(sOA)))
    for rt in range(2):
        a("buffer_load_dwordx4 %s, %s, %s, %s offen offset:%d sc1" % (
            v(HB + 8 * (i & 7) + 4 * rt, 4), v((vL16, vH1)[rt]), s(rWS, 4), s(sOA), 1024 * (i & 3)))
        vmq.append(("h", i))


def vm_wait(tags):
    idx = [k for k, t in enumerate(vmq) if t in tags]
    return None if not idx else len(vmq) - 1 - max(idx)


def wreads(dst, off):
    for ct in range(2):
        for jj in range(2):
            a("ds_read_b64_tr_b16 %s, %s offset:%d" % (v(dst + 4 * ct + 2 * jj, 2), v(vDr + ct), off + 1024 * jj))


for i in range(8):
    hload(i)
wreads(WF, 0)
for i in range(28):
    n = vm_wait({("h", i), ("w", i + 1)})
    a("s_waitcnt vmcnt(%d) lgkmcnt(0)" % n)
    if i + 1 < 28:
        wreads(WF + 8 * ((i + 1) & 1), ((i + 1) % 13) * 2048)
    for rt in range(2):
        for ct in range(2):
            mfma(DA + 32 * rt + 16 * ct, WF + 8 * (i & 1) + 4 * ct, HB + 8 * (i & 7) + 4 * rt)
    if i <= 14:
        for e in range(2):
            for x in dma_lines(vDd, rWD, sOC, sWd, (i % 13) * 2048 + 1024 * e):
                a(x)
            a("s_add_u32 %s, %s, 7168" % (s(sOC), s(sOC)))
            vmq.append(("w", i + 13))
    elif i <= 22:
        for e in range(2):
            for x in dma_lines(vDd, rWO, sOB, sWd, (i % 13) * 2048 + 1024 * e):
                a(x)
            a("s_add_u32 %s, %s, 7168" % (s(sOB), s(sOB)))
            vmq.append(("o", i))
    if i + 8 < 28:
        hload(i + 8)
stamp(7)
a("v_add_u32 v240, %s, %s" % (s(sWd), v(vL16)))
a("s_nop 10")
for o in range(4):
    for q in range(2):
        a("ds_write_b128 v240, %s offset:%d" % (v(DA + 32 + 8 * o + 4 * q, 4), (o >> 1) * 20480 + (o & 1) * 2048 + 1024 * q))
a("s_mov_b32 %s, 0" % s(sHalf))
stamp(8)
a("s_branch Ltail2")

OF, WOF, RR = 64, 128, 96
a.label("Ltail")
dr_setup()
a.label("Ltail2")
a("s_and_b32 s12, %s, 3" % s(sW))
a("s_lshl_b32 s11, %s, 1" % s(sR))
a("s_add_u32 s14, s11, %s" % s(sHalf))
a("s_lshl_b32 s11, s14, 2")
a("s_add_u32 s11, s11, s12")
a("s_lshl_b32 s13, s11, 13")
a("s_add_u32 %s, s13, 0x%x" % (s(sOA), O_OFF))
a("s_add_u32 %s, %s, 4096" % (s(sOB), s(sOA)))
a("s_lshl_b32 s11, s11, 9")
a("s_add_u32 s11, s11, 0x%x" % FO_OFF)
a("v_and_b32 v240, 3, %s" % v(vLane))
a("v_lshl_add_u32 %s, v240, 7, s11" % v(vFA))
srd(rOUT, pOUT, 2048 * 896)
a("v_and_b32 v240, 31, %s" % v(vLane))
a("s_lshl_b32 s14, s14, 5")
a("v_add_u32 v240, s14, v240")
a("v_mul_u32_u24 v240, 896, v240")
a("v_lshrrev_b32 v243, 5, %s" % v(vLane))
a("v_lshlrev_b32 v243, 4, v243")
a("s_lshl_b32 s13, %s, 7" % s(sT))
a("s_lshl_b32 s14, s12, 5")
a("s_add_u32 s13, s13, s14")
a("v_add3_u32 v247, v240, v243, s13")
a("s_mul_i32 s15, %s, 24576" % s(sHalf))
for o in range(1, 4):
    a("s_add_u32 s11, s12, %d" % o)
    a("s_and_b32 s11, s11, 3")
    a("s_mul_i32 s11, s11, 6144")
    a("s_add_u32 s11, s11, s15")
    a("s_add_u32 s11, s11, %d" % (PB + 2048 * (o - 1)))
    a("v_add_u32 %s, s11, %s" % (v(232 + o), v(vL16)))
a("s_mul_i32 s11, s12, 6144")
a("s_add_u32 s11, s11, s15")
a("v_add_u32 v232, s11, %s" % v(vL16))
for k in range(4):
    a("s_sub_u32 s11, s12, %d" % k)
    a("s_and_b32 s11, s11, 3")
    a("s_lshr_b32 s13, s11, 1")
    a("s_mul_i32 s13, s13, 20480")
    a("s_and_b32 s11, s11, 1")
    a("s_lshl_b32 s11, s11, 11")
    a("s_add_u32 s11, s11, s13")
    a("s_add_u32 s11, s11, %d" % (DB + k * DREG))
    a("v_add_u32 %s, s11, %s" % (v(236 + k), v(vL16)))
poll(vFA, vFT)
stamp(9)
for k in range(8):
    a("buffer_load_dwordx4 %s, %s, %s, %s offen offset:%d sc1" % (v(OF + 4 * k, 4), v(vL16), s(rWS, 4), s((sOA, sOB)[k >> 2]), 1024 * (k & 3)))
a("s_waitcnt lgkmcnt(0)")
a("s_barrier")
for k in range(8):
    wreads(WOF + 8 * k, 4096 + (28 * (k >> 1) + 16 * (k & 1)) * 128)
    if k in (2, 4, 6):
        a("s_waitcnt lgkmcnt(4)")
for k in range(8):
    a("s_waitcnt vmcnt(%d) lgkmcnt(0)" % (7 - k))
    for ct in range(2):
        mfma(16 * ct, WOF + 8 * k + 4 * ct, OF + 4 * k)
stamp(10)
a("s_nop 11")
for o in range(1, 4):
    for q in range(2):
        a("ds_write_b128 %s, %s offset:%d" % (v(232 + o), v(8 * o + 4 * q, 4), 1024 * q))
a("s_waitcnt lgkmcnt(0)")
a("s_barrier")
for u in range(3):
    for q in range(2):
        a("ds_read_b128 %s, v232 offset:%d" % (v(RR + 8 * u + 4 * q, 4), PB + 2048 * u + 1024 * q))
a("s_cmp_eq_u32 %s, 0" % s(sHalf))
a("s_cbranch_scc1 Lfin_sum")
for k in range(4):
    for q in range(2):
        a("ds_read_b128 %s, %s offset:%d" % (v(WOF + 8 * k + 4 * q, 4), v(236 + k), 1024 * q))
a("s_waitcnt lgkmcnt(0)")
for k in range(4):
    for p in range(4):
        a("v_pk_add_f32 %s, %s, %s" % (v(2 * p, 2), v(2 * p, 2), v(WOF + 8 * k + 2 * p, 2)))
a.label("Lfin_sum")
a("s_waitcnt lgkmcnt(0)")
for u in range(3):
    for p in range(4):
        a("v_pk_add_f32 %s, %s, %s" % (v(2 * p, 2), v(2 * p, 2), v(RR + 8 * u + 2 * p, 2)))
for p in range(4):
    a("v_cvt_pk_bf16_f32 %s, %s, %s" % (v(8 + p), v(2 * p), v(2 * p + 1)))
a("s_nop 1")
a("v_permlane32_swap_b32 v8, v10")
a("v_permlane32_swap_b32 v9, v11")
a("buffer_store_dwordx4 v[8:11], v247, %s, 0 offen" % s(rOUT, 4))
a.label("Lexit")
if PROF:
    stamp(11)
    a("s_lshl_b32 s11, s2, 3")
    a("s_add_u32 s11, s11, %s" % s(sW))
    a("s_lshl_b32 s11, s11, 6")
    a("s_add_u32 s11, s11, 0x%x" % PROF_OFF)
    a("v_lshl_add_u32 v240, %s, 2, s11" % v(vLane))
    a("s_mov_b64 exec, 0xffff")
    a("buffer_store_dword %s, v240, %s, 0 offen" % (v(vProf), s(rWS, 4)))
if DBGT:
    a("s_waitcnt vmcnt(0)")
    a("s_memrealtime s[100:101]")
    a("s_memtime s[98:99]")
    srd(rT, pDBG, 256)
    a("s_waitcnt lgkmcnt(0)")
    a("s_and_b32 s11, s2, 31")
    a("s_add_u32 s11, s11, %s" % s(sW))
    a("s_cmp_lg_u32 s11, 0")
    a("s_cbranch_scc1 Lend")
    a("s_cmp_ge_u32 s2, 160")
    a("s_cbranch_scc1 Lend")
    a("s_lshr_b32 s11, s2, 5")
    a("s_mul_i32 s11, s11, 12")
    a("v_mov_b32 v240, v253")
    a("v_sub_u32 v241, s100, v253")
    a("v_sub_u32 v242, s98, v254")
    a("s_mov_b64 exec, 1")
    a("buffer_store_dwordx3 v[240:242], %s, %s, s11 offen offset:4" % (v(vZero), s(rT, 4)))
a.label("Lend")
a("s_endpgm")

if STF != "sc1":
    a.L = [(l[:-4] + (" " + STF.replace("+", " ") if STF != "none" else "")) if l.startswith("buffer_store_dwordx4") and l.endswith(" sc1") else l for l in a.L]
bad = check(a.L)
if bad:
    print("%d hazards" % len(bad))

head = open("cdna_kernels/%s.s.ref" % NAME).read().split("; Override launch")[0]
txt = head + "; @launch grid=(256,1,1) block=(512,1,1) lds=%d\n" % LDS_BYTES
txt += '.amdgcn_target "amdgcn-amd-amdhsa--gfx950"\n.text\n.globl %s_kernel\n.p2align 8\n.type %s_kernel,@function\n' % (NAME, NAME)
txt += a.text()
txt += """.section .rodata,"a"
.p2align 6
.amdhsa_kernel %s_kernel
  .amdhsa_next_free_vgpr 256
  .amdhsa_next_free_sgpr 102
  .amdhsa_accum_offset 256
  .amdhsa_group_segment_fixed_size 0
  .amdhsa_kernarg_size 88
  .amdhsa_user_sgpr_count 2
  .amdhsa_user_sgpr_kernarg_segment_ptr 1
  .amdhsa_system_sgpr_workgroup_id_x 1
.end_amdhsa_kernel
""" % NAME
open(OUT, "w").write(txt)
print("wrote", OUT, len(a.L), "lines")
```

```python
import sys, struct, math
from asmlib import Asm, v, s, check

NAME = "gated_mix__mha_block__glu_gated_geglu__prompt"
PROF = "--prof" in sys.argv
FORCE_FB = "--force-fallback" in sys.argv
def opt(name, default):
    for x in sys.argv:
        if x.startswith("--%s=" % name):
            return type(default)(x.split("=")[1])
    return default
SLEEP = opt("sleep", 1)
STF = opt("stf", "sc1")
PFMODE = opt("pf", 0)
ROT = opt("rot", 7)
RN = opt("rn", 7)
DBGT = "--dbgt" in sys.argv
OUT = [a for a in sys.argv[1:] if not a.startswith("--")]
OUT = OUT[0] if OUT else "cdna_kernels/%s.s" % NAME


def f2u(x):
    return struct.unpack("<I", struct.pack("<f", x))[0]


KV_OFF, Q_OFF, H_OFF, O_OFF = 0, 0x400000, 0x600000, 0xD00000
FQ_OFF, FH_OFF, FO_OFF, E_OFF, PROF_OFF = 0xF00000, 0xF40000, 0xF80000, 0xFA0000, 0xFC0000
WS_BYTES = 0x1000000
XB, WB, TB, EX, CNT = 0, 49152, 155648, 159744, 160768
WSLOT = 20480
PB, DB, DREG = 0, 49152, 26624
LDS_BYTES = 163840
SPIN_MAX = 1 << 18

sB, sW, sM, sJ, sH, sMA, sR, sT, sNON = 2, 3, 4, 5, 6, 7, 8, 9, 10
t0, t1, t2, t3, t4 = 11, 12, 13, 14, 15
pX, pQKV, pWO, pWG, pWU, pWD, pGW, pOUT, pDBG, pWS = 16, 18, 20, 24, 26, 28, 30, 32, 34, 36
t5, t6 = 38, 39
rA, rB, rC, rWS, rWD, rWO, rOUT, rT = 40, 44, 48, 52, 56, 60, 64, 68
sIt, sOA, sOB, sOC, sSA, sSB, sSC = 72, 73, 74, 75, 76, 77, 78
sWr, sWd, sXs, sXp, sXo, sTr, sX0 = 79, 80, 81, 82, 83, 84, 85
sHalf, sCg, sFin, sSpin = 86, 87, 88, 89
mHI, mT, kG, kS = 90, 92, 94, 96
sP = 98
sStamp = 100
vL16, vLane, vZero = 250, 251, 252
vProf = 230

a = Asm()
nstamp = [0]


def stamp(k):
    if not PROF:
        return
    a("s_memtime %s" % s(sStamp, 2))
    a("s_waitcnt lgkmcnt(0)")
    a("v_writelane_b32 %s, %s, %d" % (v(vProf), s(sStamp), k))


def srd(r, p, nbytes):
    a("s_mov_b32 %s, %s" % (s(r), s(p)))
    a("s_mov_b32 %s, %s" % (s(r + 1), s(p + 1)))
    a("s_mov_b32 %s, 0x%x" % (s(r + 2), nbytes))
    a("s_mov_b32 %s, 0x20000" % s(r + 3))


def mfma(d, A, B, C=None):
    c = v(d, 16) if C is None else C
    a("v_mfma_f32_32x32x16_bf16 %s, %s, %s, %s" % (v(d, 16), v(A, 4), v(B, 4), c))


def dma(vo, r, so, m0src, m0add=0):
    if m0add:
        a("s_add_u32 m0, %s, %d" % (s(m0src), m0add))
    else:
        a("s_mov_b32 m0, %s" % s(m0src))
    a("s_nop 0")
    a("buffer_load_dwordx4 %s, %s, %s offen lds" % (v(vo), s(r, 4), s(so)))


uid = [0]


def L(p):
    uid[0] += 1
    return "L%s_%d" % (p, uid[0])


def poll(vaddr, vtmp):
    lp, done = L("poll"), L("pdone")
    a("s_mov_b32 %s, %d" % (s(sSpin), SPIN_MAX))
    a.label(lp)
    a("buffer_load_dword %s, %s, %s, 0 offen sc1" % (v(vtmp), v(vaddr), s(rWS, 4)))
    a("s_waitcnt vmcnt(0)")
    a("v_cmp_ne_u32 vcc, %s, %s" % (s(sNON), v(vtmp)))
    a("s_nop 1")
    a("s_cbranch_vccz %s" % done)
    a("s_sub_u32 %s, %s, 1" % (s(sSpin), s(sSpin)))
    a("s_cbranch_scc1 %s" % done)
    a("s_sleep %d" % SLEEP)
    a("s_branch %s" % lp)
    a.label(done)


def get_nonce(vn, vtmp):
    lp, done = L("non"), L("ndone")
    a("s_mov_b32 %s, %d" % (s(sSpin), SPIN_MAX))
    a.label(lp)
    a("v_readfirstlane_b32 %s, %s" % (s(sNON), v(vn)))
    a("s_nop 1")
    a("s_cmp_lg_u32 %s, 0" % s(sNON))
    a("s_cbranch_scc1 %s" % done)
    a("s_sub_u32 %s, %s, 1" % (s(sSpin), s(sSpin)))
    a("s_cbranch_scc1 %s" % done)
    a("buffer_load_dword %s, %s, %s, 0 offen sc1" % (v(vn), v(vZero), s(rT, 4)))
    a("s_waitcnt vmcnt(0)")
    a("s_branch %s" % lp)
    a.label(done)


def flag_store(vaddr, vtmp, nlanes=1):
    a("v_mov_b32 %s, %s" % (v(vtmp), s(sNON)))
    a("s_mov_b64 exec, %d" % ((1 << nlanes) - 1))
    a("buffer_store_dword %s, %s, %s, 0 offen sc1" % (v(vtmp), v(vaddr), s(rWS, 4)))
    a("s_mov_b64 exec, -1")


a.label(NAME + "_kernel")
a("s_cmp_ge_u32 s2, 256")
a("s_cbranch_scc1 Lend")
a("s_load_dwordx16 s[16:31], s[0:1], 0")
a("s_load_dwordx4 s[32:35], s[0:1], 64")
a("s_load_dwordx2 s[36:37], s[0:1], 80")
if PROF:
    a("v_mov_b32 %s, 0" % v(vProf))
    a("s_memrealtime %s" % s(sStamp, 2))
    a("s_waitcnt lgkmcnt(0)")
    a("v_writelane_b32 %s, %s, 16" % (v(vProf), s(sStamp)))
    stamp(14)
if DBGT:
    a("s_memrealtime s[100:101]")
    a("s_memtime s[98:99]")
    a("s_waitcnt lgkmcnt(0)")
    a("v_mov_b32 v253, s100")
    a("v_mov_b32 v254, s98")
a("v_lshrrev_b32 v1, 6, v0")
a("v_and_b32 %s, 63, v0" % v(vLane))
a("v_readfirstlane_b32 %s, v1" % s(sW))
a("v_lshlrev_b32 %s, 4, %s" % (v(vL16), v(vLane)))
a("v_mov_b32 %s, 0" % v(vZero))
sCol, sSpec = 5, 39
a("""
s_and_b32 s11, s2, 7
s_lshr_b32 s12, s2, 3
s_and_b32 s13, s11, 1
s_lshl_b32 s13, s13, 3
s_and_b32 s14, s12, 7
s_add_u32 s4, s13, s14
s_lshr_b32 s13, s11, 1
s_lshr_b32 s14, s12, 3
s_mul_i32 s15, s13, 3
s_add_u32 s15, s15, s14
s_add_u32 s13, s13, 12
s_cmp_eq_u32 s14, 3
s_cselect_b32 s5, s13, s15
s_cselect_b32 s39, 1, 0
""")
a("s_and_b32 %s, %s, 1" % (s(sHalf), s(sW)))
a("s_lshr_b32 %s, %s, 1" % (s(sCg), s(sW)))

vWb, vWa, vXb, vXa0, vXa1, vTb, vDA, vDB, vDC, vDC2 = 1, 4, 7, 8, 9, 10, 11, 12, 13, 14
a("""
v_lshrrev_b32 v16, 3, v251
v_and_b32 v17, 7, v251
v_bfe_u32 v25, v16, 1, 1
v_lshlrev_b32 v25, 2, v25
v_xor_b32 v25, v25, v17
v_lshlrev_b32 v25, 4, v25
""")
a("s_and_b32 s12, %s, 3" % s(sW))
a("s_lshl_b32 s13, s12, 3")
a("s_lshl_b32 s15, s12, 10")
a("v_add_u32 v26, s13, v16")
a("v_mul_u32_u24 v27, 3584, v26")
a("v_mul_u32_u24 v28, 2688, v26")
a("v_xor_b32 v29, 32, v25")
a("s_lshl_b32 s13, %s, 8" % s(sCol))
a("s_add_u32 s14, %s, 12" % s(sCol))
a("s_lshl_b32 s14, s14, 7")
a("s_cmp_eq_u32 %s, 1" % s(sSpec))
a("s_cselect_b32 s38, s14, s13")
a("s_lshr_b32 s12, s2, 3")
a("s_and_b32 s13, s12, 7")
a("s_lshr_b32 s12, s12, 3")
a("s_lshl_b32 s12, s12, 1")
a("s_add_u32 s12, s12, s13")
a("s_sub_u32 s13, s12, 7")
a("s_cselect_b32 %s, s12, s13" % s(sXp))
if not ROT & 1:
    a("s_mov_b32 %s, 0" % s(sXp))
if RN in (2, 4):
    a("s_lshr_b32 s12, s2, 3")
    a("s_lshr_b32 s13, s12, 3")
    a("s_add_u32 s12, s12, s13")
    a("s_and_b32 s12, s12, %d" % (RN - 1))
    a("s_mul_i32 s12, s12, 7")
    a("s_add_u32 s12, s12, %d" % (RN // 2))
    a("s_lshr_b32 %s, s12, %d" % (s(sXp), RN // 2))
if RN == 3:
    a("s_lshr_b32 s12, s2, 3")
    a("s_lshr_b32 s13, s12, 3")
    a("s_and_b32 s12, s12, 7")
    a("s_add_u32 s12, s12, s13")
    a("s_mul_i32 s13, s12, 43")
    a("s_lshr_b32 s13, s13, 7")
    a("s_mul_i32 s13, s13, 3")
    a("s_sub_u32 s12, s12, s13")
    a("s_mul_i32 s12, s12, 5")
    a("s_lshr_b32 %s, s12, 1" % s(sXp))
a("s_mul_i32 %s, %s, %d" % (s(sOA), s(sXp), 64 * 3584))
a("s_lshl_b32 %s, %s, 7" % (s(sXo), s(sXp)))
a("s_cmp_ge_u32 %s, 4" % s(sW))
a("s_cbranch_scc1 Lsetup_hi")

WG_BYTES, QKV_BYTES, X_BYTES = 448 * 3584, 448 * 2688, 2048 * 896
ACC = 128
XS, WS_ = (64, 84), (72, 92)


def late_setup():
    a("""
s_and_b32 s11, s2, 7
s_lshr_b32 s12, s2, 3
s_lshl_b32 s13, s11, 1
s_lshr_b32 s38, s12, 4
s_add_u32 s6, s13, s38
s_and_b32 s7, s12, 15
s_mul_i32 s13, s12, 37
s_lshr_b32 s13, s13, 8
s_mul_i32 s38, s13, 7
s_sub_u32 s9, s12, s38
s_lshl_b32 s38, s11, 2
s_add_u32 s8, s38, s13
s_cmp_lt_u32 s12, 28
""")
    a("s_cselect_b32 %s, 1, 0" % s(sFin))
    a("s_mov_b32 %s, 0" % s(mHI))
    a("s_mov_b32 %s, -1" % s(mHI + 1))
    a("s_mov_b32 %s, 0x88880000" % s(mT))
    a("s_mov_b32 %s, 0x88880000" % s(mT + 1))
    K1 = -2.0 * math.sqrt(2.0 / math.pi) * math.log2(math.e)
    a("s_mov_b32 %s, 0x%x" % (s(kG), f2u(K1 * 0.044715)))
    a("s_mov_b32 %s, 0x%x" % (s(kG + 1), f2u(K1)))
    a("s_mov_b32 %s, 0xffff0000" % s(sP))
    a("s_mov_b32 %s, 0xffff0000" % s(sP + 1))
    a("""
v_bfe_u32 v18, v251, 2, 2
v_and_b32 v19, 3, v251
v_lshlrev_b32 v19, 3, v19
v_lshrrev_b32 v20, 5, v251
v_and_b32 v21, 31, v251
v_lshl_add_u32 v22, v20, 3, v18
v_lshlrev_b32 v22, 7, v22
v_lshrrev_b32 v23, 1, v18
v_lshlrev_b32 v23, 6, v23
""")
    a("v_lshl_add_u32 %s, v20, 2, v18" % v(vTb))
    a("v_lshlrev_b32 %s, 3, %s" % (v(vTb), v(vTb)))
    a("v_bfe_u32 v24, v21, 1, 3")
    a("v_xor_b32 v24, v24, v20")
    a("v_lshlrev_b32 v24, 4, v24")
    a("s_lshl_b32 s11, %s, 13" % s(sHalf))
    a("v_lshl_add_u32 %s, v21, 7, v24" % v(vXb))
    a("v_add_u32 %s, s11, %s" % (v(vXb), v(vXb)))
    a("v_bfe_u32 v27, v0, 4, 1")
    a("v_lshlrev_b32 v34, 11, v27")
    a("v_lshrrev_b32 v27, 8, v0")
    a("v_lshl_add_u32 v34, v27, 10, v34")
    a("v_bfe_u32 v27, v0, 2, 1")
    a("v_lshl_add_u32 v34, v27, 9, v34")
    a("v_bfe_u32 v27, v0, 5, 3")
    a("v_lshl_add_u32 v34, v27, 6, v34")
    a("v_bfe_u32 v27, v0, 3, 1")
    a("v_lshl_add_u32 v34, v27, 5, v34")
    a("v_and_b32 v27, 3, v0")
    a("v_lshl_add_u32 v34, v27, 3, v34")
    a("v_add_u32 v34, %d, v34" % TB)
    a("v_mov_b32 v31, 0")
    a("s_mov_b32 %s, %d" % (s(sWr), WB))
    a("s_mov_b32 %s, 0" % s(sXs))
    a("s_lshr_b32 s11, %s, 2" % s(sXp))
    a("s_lshl_b32 s11, s11, 10")
    a("s_and_b32 s12, %s, 3" % s(sXp))
    a("s_lshl_b32 s12, s12, 7")
    a("s_add_u32 s11, s11, s12")
    a("s_add_u32 %s, s11, %d" % (s(sTr), TB))
    a("s_mov_b32 %s, 1" % s(sIt))


def gate_load():
    srd(rT, pGW, 896)
    a("v_lshlrev_b32 v35, 1, v0")
    a("buffer_load_ushort v30, v35, %s, 0 offen" % s(rT, 4))


def tile_base(vd):
    a("v_mov_b32 v27, s11")
    a("v_mov_b32 v28, s12")
    a("v_cndmask_b32 v27, v27, v28, %s" % s(sP, 2))
    a("v_add_u32 v27, v27, v19")
    a("v_xor_b32 v27, v27, v23")
    a("v_add_u32 %s, v27, v22" % v(vd))


def addr_update(ncol, lo, par):
    a("s_or_b32 %s, %s, %d" % (s(sX0), s(sXs), 64 * par))
    for c in range(ncol):
        a("v_add_u32 %s, %s, %s" % (v(vWa + c), s(sWr), v(vWb + c)))
    a("v_xor_b32 %s, %s, %s" % (v(vXa0), s(sX0), v(vXb)))
    if lo:
        a("v_add_u32 v27, %s, %s" % (s(sTr), v(vTb)))
        a("v_cndmask_b32 %s, %s, v27, %s" % (v(vWa), v(vWa), s(mT, 2)))
    a("v_xor_b32 %s, 32, %s" % (v(vXa1), v(vXa0)))


def reads(ncol, st, ks):
    xa = vXa0 if ks == 0 else vXa1
    r = []
    rx = lambda rt: "ds_read_b128 %s, %s offset:%d" % (v(XS[st] + 4 * rt, 4), v(xa), 4096 * rt)
    rw = lambda c, jj: "ds_read_b64_tr_b16 %s, %s offset:%d" % (v(WS_[st] + 4 * c + 2 * jj, 2), v(vWa + c), 2048 * ks + 512 * jj)
    r += [rx(0), rw(0, 0), rw(0, 1), rx(1)]
    for c in range(1, ncol):
        r += [rw(c, 0), rw(c, 1)]
    return r


def mm(st, vor, first=False):
    out = []
    for c, vo in enumerate(vor):
        for rt in range(2):
            d = ACC + 32 * c + 16 * rt
            W, X = WS_[st] + 4 * c, XS[st] + 4 * rt
            A, B = (X, W) if vo else (W, X)
            out.append("v_mfma_f32_32x32x16_bf16 %s, %s, %s, %s" % (v(d, 16), v(A, 4), v(B, 4), "0" if first else v(d, 16)))
    return out


def dma_lines(vo, r, so, m0src, m0add):
    return ["s_add_u32 m0, %s, %d" % (s(m0src), m0add), "s_nop 0",
            "buffer_load_dwordx4 %s, %s, %s offen lds" % (v(vo), s(r, 4), s(so))]


def adv(x, y):
    return ["s_add_u32 %s, %s, %s" % (s(x), s(x), s(y))]


def wrap(x, step, total, par):
    r = ["s_add_u32 %s, %s, %s" % (s(x), s(x), step)]
    if par:
        r += ["s_cmp_eq_u32 %s, %s" % (s(x), total), "s_cselect_b32 %s, 0, %s" % (s(x), s(x))]
    return r


def step_dmas(lo, par, static=None):
    pre = ["s_add_u32 s11, %s, %d" % (s(sXo), par * 57344)]
    if static is None:
        wm, wo, xm, xo = sWd, 0, sOC, par * 8192
    else:
        n = static + 4
        wm, wo, xm, xo = 15, WB + (n % 5) * WSLOT, 14, (n >> 1) * 16384 + par * 8192
    if lo:
        return [pre + dma_lines(vDC, rC, 11, xm, xo),
                dma_lines(vDC2, rC, 11, xm, xo + 1024) + (wrap(sXo, "128", "896", 1) if par else []),
                dma_lines(vDA, rA, sOA, wm, wo + 3 * 4096) + wrap(sOA, str(32 * 3584), str(WG_BYTES), par),
                dma_lines(vDB, rB, sOB, wm, wo + 4 * 4096) + wrap(sOB, str(32 * 2688), str(QKV_BYTES), par)]
    return [dma_lines(vDA, rA, sOA, wm, wo) + wrap(sOA, str(32 * 3584), str(WG_BYTES), par),
            dma_lines(vDB, rB, sOB, wm, wo + 4096),
            dma_lines(vDC, rC, sOB, wm, wo + 8192) + wrap(sOB, s(sSB), s(sSC), par)]


def state_advance(lo, par):
    a("s_add_u32 %s, %s, s15" % (s(sWd), s(sWr)))
    a("s_add_u32 %s, %s, %d" % (s(sWr), s(sWr), WSLOT))
    a("s_cmp_eq_u32 %s, %d" % (s(sWr), WB + 5 * WSLOT))
    a("s_cselect_b32 %s, %d, %s" % (s(sWr), WB, s(sWr)))
    if lo:
        a("s_add_u32 %s, %s, 64" % (s(sTr), s(sTr)))
    if par == 1:
        if lo:
            a("s_add_u32 %s, %s, s14" % (s(sOC), s(sXs)))
            a("s_cmp_eq_u32 %s, %d" % (s(sTr), TB + 512))
            a("s_cselect_b32 %s, %d, %s" % (s(sTr), TB + 1024, s(sTr)))
            a("s_cmp_eq_u32 %s, %d" % (s(sTr), TB + 1024 + 384))
            a("s_cselect_b32 %s, %d, %s" % (s(sTr), TB, s(sTr)))
        a("s_add_u32 %s, %s, 16384" % (s(sXs), s(sXs)))
        a("s_cmp_eq_u32 %s, 49152" % s(sXs))
        a("s_cselect_b32 %s, 0, %s" % (s(sXs), s(sXs)))


def interleave(ms, fill):
    for i, m in enumerate(ms):
        a(m)
        if i < len(fill):
            for x in fill[i]:
                a(x)
    for g in fill[len(ms):]:
        for x in g:
            a(x)


vNon, vFA, vFT = 240, 241, 242


def kstep(lo, vor, par, nvm, d1, d2, first=False):
    ncol = len(vor)
    a("s_waitcnt vmcnt(%d) lgkmcnt(0)" % nvm)
    a("s_barrier")
    if first:
        stamp(2)
    r = reads(ncol, 0, 0)
    interleave([] if first else mm(1, vor), [r[2 * i:2 * i + 2] for i in range(len(r) // 2)] + d1)
    a("s_waitcnt lgkmcnt(0)")
    r = reads(ncol, 1, 1)
    interleave(mm(0, vor, first), [r[2 * i:2 * i + 2] for i in range(len(r) // 2)] + d2)
    state_advance(lo, par)
    addr_update(ncol, lo, 1 - par)


def kloop(tag, lo, vor):
    top = "Lk_%s" % tag
    addr_update(len(vor), lo, 0)
    kstep(lo, vor, 0, 2 if lo else 3, step_dmas(lo, 0, -2), step_dmas(lo, 1, -1), first=True)
    kstep(lo, vor, 1, 8 if lo else 6, step_dmas(lo, 0, 0), step_dmas(lo, 1, 1))
    a(".p2align 5")
    a.label(top)
    if PROF:
        a("s_memtime %s" % s(sStamp, 2))
        a("s_add_u32 s12, %s, 17" % s(sIt))
        a("s_waitcnt lgkmcnt(0)")
        a("s_mov_b32 m0, s12")
        a("v_writelane_b32 %s, %s, m0" % (v(vProf), s(sStamp)))
    if lo:
        a("s_cmp_lg_u32 %s, s38" % s(sIt))
        a("s_cbranch_scc1 %s_nn" % top)
        a("buffer_load_dword %s, %s, %s, 0 offen sc1" % (v(vNon), v(vZero), s(rT, 4)))
        a.label(top + "_nn")
    a("s_cmp_eq_u32 %s, 5" % s(sIt))
    for x in (sOA, sOB, sXo) if lo else (sOA, sOB):
        a("s_cselect_b32 %s, 0x40000000, %s" % (s(x), s(x)))
    for par in range(2):
        d = step_dmas(lo, par)
        kstep(lo, vor, par, 10 if lo else 9, d[:2], d[2:])
    a("s_add_u32 %s, %s, 1" % (s(sIt), s(sIt)))
    a("s_cmp_lt_u32 %s, 7" % s(sIt))
    a("s_cbranch_scc1 %s" % top)
    a("s_waitcnt lgkmcnt(0)")
    for m in mm(1, vor):
        a(m)


a("s_add_u32 s13, s38, 128")
a("s_cmp_eq_u32 %s, 1" % s(sSpec))
a("s_cselect_b32 s13, s38, s13")
a("v_add3_u32 %s, v27, v29, s13" % v(vDA))
a("s_mul_i32 s13, %s, 112" % s(sCol))
a("v_add3_u32 %s, v28, v25, s13" % v(vDB))
a("s_lshl_b32 s11, %s, 7" % s(sM))
a("s_lshl_b32 s12, %s, 4" % s(sW))
a("s_add_u32 s11, s11, s12")
a("v_add_u32 v27, s11, v16")
a("v_mul_u32_u24 v27, 896, v27")
a("v_lshrrev_b32 v28, 1, v16")
a("v_xor_b32 v28, v28, v17")
a("v_lshl_add_u32 %s, v28, 4, v27" % v(vDC))
a("v_xor_b32 v28, 4, v28")
a("v_lshl_add_u32 %s, v28, 4, v27" % v(vDC2))
a("v_add_u32 %s, %d, %s" % (v(vDC2), 8 * 896, v(vDC2)))
a("s_lshl_b32 s14, %s, 11" % s(sW))
a("s_mul_i32 %s, %s, %d" % (s(sOB), s(sXp), 64 * 2688))
a("s_waitcnt lgkmcnt(0)")
stamp(15)
srd(rC, pX, X_BYTES)
srd(rA, pWU, WG_BYTES)
srd(rB, pQKV, QKV_BYTES)
gate_load()
stamp(0)
for st in (-4, -3):
    for g in step_dmas(True, st & 1, st):
        for x in g:
            a(x)
late_setup()
srd(rWS, pWS, WS_BYTES)
a("s_mul_i32 s11, %s, 56" % s(sCg))
a("s_add_u32 s11, s11, 16384")
a("s_add_u32 s12, s11, 32")
tile_base(vWb)
a("s_lshl_b32 s11, %s, 12" % s(sCg))
a("s_add_u32 s12, s11, %d" % (8192 + 32))
a("s_lshl_b32 s13, %s, 5" % s(sCg))
a("s_xor_b32 s38, s13, %d" % (12288 + 32))
a("s_cmp_eq_u32 %s, 1" % s(sSpec))
a("s_cselect_b32 s11, s13, s11")
a("s_cselect_b32 s12, s38, s12")
tile_base(vWb + 1)
a("s_cmp_eq_u32 %s, 0" % s(sW))
a("s_cselect_b32 s38, 4, 99")
a("v_mov_b32 v27, %d" % CNT)
a("ds_write_b32 v27, v31")
a("s_waitcnt vmcnt(8)")
a("ds_write_b64 v34, v[30:31]")
srd(rT, pDBG, 256)
stamp(1)
kloop("lo", True, (False, False))
a("s_branch Lepi_lo")

a.label("Lsetup_hi")
a("v_add3_u32 %s, v27, v25, s38" % v(vDA))
a("v_mov_b32 v32, %d" % E_OFF)
a("s_cmp_eq_u32 %s, 1" % s(sSpec))
a("s_cbranch_scc1 Lsetup_hi_s")
a("v_add_u32 %s, 128, %s" % (v(vDB), v(vDA)))
a("v_add3_u32 %s, v27, v29, s38" % v(vDC))
a("s_mov_b32 %s, %d" % (s(sSB), 32 * 3584))
a("s_mov_b32 %s, %d" % (s(sSC), WG_BYTES))
a("s_mov_b32 %s, %s" % (s(sOB), s(sOA)))
a("s_waitcnt lgkmcnt(0)")
srd(rB, pWG, WG_BYTES)
srd(rC, pWU, WG_BYTES)
a("s_branch Lsetup_hi_c")
a.label("Lsetup_hi_s")
a("s_mul_i32 s13, %s, 224" % s(sCol))
a("s_sub_u32 s13, s13, %d" % (12 * 224 - 1792))
a("v_add3_u32 %s, v28, v25, s13" % v(vDB))
a("v_add_u32 %s, 112, %s" % (v(vDC), v(vDB)))
a("s_mov_b32 %s, %d" % (s(sSB), 32 * 2688))
a("s_mov_b32 %s, %d" % (s(sSC), QKV_BYTES))
a("s_mul_i32 %s, %s, %d" % (s(sOB), s(sXp), 64 * 2688))
a("s_waitcnt lgkmcnt(0)")
srd(rB, pQKV, QKV_BYTES)
srd(rC, pQKV, QKV_BYTES)
a.label("Lsetup_hi_c")
stamp(15)
srd(rA, pWG, WG_BYTES)
srd(rWS, pWS, WS_BYTES)
a("s_lshl_b32 s14, s2, 3")
a("s_add_u32 s14, s14, %s" % s(sW))
a("s_cmp_lg_u32 s14, 7")
a("s_cbranch_scc1 Lno_nonce1")
a("buffer_load_dword v33, v32, %s, 0 offen sc1" % s(rWS, 4))
a.label("Lno_nonce1")
gate_load()
stamp(0)
for st in (-4, -3):
    for g in step_dmas(False, st & 1, st):
        for x in g:
            a(x)
late_setup()
a("s_waitcnt vmcnt(6)")
a("ds_write_b64 v34, v[30:31]")
a("s_cmp_lg_u32 s14, 7")
a("s_cbranch_scc1 Lno_nonce2")
srd(rT, pDBG, 256)
a("v_add_u32 v33, 1, v33")
a("v_or_b32 v33, 0x80000000, v33")
a("s_mov_b64 exec, 1")
a("buffer_store_dword v33, v32, %s, 0 offen sc1" % s(rWS, 4))
a("buffer_store_dword v33, %s, %s, 0 offen sc1" % (v(vZero), s(rT, 4)))
a("s_mov_b64 exec, -1")
a.label("Lno_nonce2")
a("s_cmp_eq_u32 %s, 1" % s(sSpec))
a("s_cbranch_scc1 Lk_hi_s_entry")
for c in range(3):
    a("s_lshl_b32 s12, %s, 12" % s(sCg))
    a("s_sub_u32 s11, s12, %d" % (8192 - 32 * (1 + c)))
    a("s_add_u32 s12, s12, %d" % ((32 * (1 + c)) ^ 32))
    tile_base(vWb + c)
stamp(1)
kloop("hi_t", False, (False, False, False))
a("s_branch Lepi_hi_t")
a.label("Lk_hi_s_entry")
for c in range(2):
    a("s_lshl_b32 s11, %s, 12" % s(sCg))
    a("s_sub_u32 s11, s11, %d" % (4096 - 56 * c))
    a("s_add_u32 s12, s11, 32")
    tile_base(vWb + c)
a("s_lshl_b32 s11, %s, 5" % s(sCg))
a("s_xor_b32 s12, s11, %d" % (12288 + 32))
tile_base(vWb + 2)
stamp(1)
kloop("hi_s", False, (True, True, False))
a("s_branch Lepi_hi_s")

NONL = CNT + 16


def gelu_tile(acc, vc, dst, extra=()):
    T = 56
    extra = list(extra)

    def ex():
        if extra:
            for x in extra.pop(0):
                a(x)
    for p in range(4):
        a("v_pk_mul_f32 %s, %s, %s" % (v(T + 2 * p, 2), v(acc + 2 * p, 2), v(acc + 2 * p, 2)))
    for p in range(4):
        a("v_pk_fma_f32 %s, %s, %s, %s op_sel:[0,0,1] op_sel_hi:[1,0,1]" % (v(T + 2 * p, 2), v(T + 2 * p, 2), s(kG, 2), s(kG, 2)))
    for p in range(4):
        a("v_pk_mul_f32 %s, %s, %s" % (v(T + 2 * p, 2), v(T + 2 * p, 2), v(acc + 2 * p, 2)))
    ex()
    for i in range(8):
        a("v_exp_f32 %s, %s" % (v(T + i), v(T + i)))
        if i == 5:
            ex()
    for p in range(4):
        a("v_pk_mul_f32 %s, %s, %s" % (v(acc + 8 + 2 * p, 2), v(acc + 8 + 2 * p, 2), v(acc + 2 * p, 2)))
    for p in range(4):
        a("v_pk_fma_f32 %s, %s, %s, %s op_sel_hi:[1,0,0]" % (v(T + 2 * p, 2), v(T + 2 * p, 2), v(vc, 2), v(vc, 2)))
    ex()
    for i in range(8):
        a("v_rcp_f32 %s, %s" % (v(T + i), v(T + i)))
        if i == 5:
            ex()
    a("s_nop 0")
    for p in range(4):
        a("v_pk_mul_f32 %s, %s, %s" % (v(acc + 8 + 2 * p, 2), v(acc + 8 + 2 * p, 2), v(T + 2 * p, 2)))
    for p in range(4):
        a("v_cvt_pk_bf16_f32 %s, %s, %s" % (v(dst + p), v(acc + 8 + 2 * p), v(acc + 9 + 2 * p)))
    while extra:
        ex()


def qk_tile(acc, vpad, vaddr, so, dst):
    for p in range(8):
        a("v_pk_mul_f32 %s, %s, %s op_sel_hi:[1,0]" % (v(acc + 2 * p, 2), v(acc + 2 * p, 2), s(kS, 2)))
    for p in range(8):
        a("v_cvt_pk_bf16_f32 %s, %s, %s" % (v(dst + p), v(acc + 2 * p), v(acc + 2 * p + 1)))
    a("v_cndmask_b32 %s, %s, %s, %s" % (v(dst + 6), v(dst + 6), v(vpad), s(mHI, 2)))
    a("v_cndmask_b32 %s, %s, %s, %s" % (v(dst + 7), v(dst + 7), v(vZero), s(mHI, 2)))
    a("buffer_store_dwordx4 %s, %s, %s, %s offen sc1" % (v(dst, 4), v(vaddr), s(rWS, 4), s(so)))
    a("buffer_store_dwordx4 %s, %s, %s, %s offen offset:1024 sc1" % (v(dst + 4, 4), v(vaddr), s(rWS, 4), s(so)))


def v_tile(acc, so, dst):
    for p in range(8):
        a("v_cvt_pk_bf16_f32 %s, %s, %s" % (v(dst + p), v(acc + 2 * p), v(acc + 2 * p + 1)))
    for p in range(8):
        a("v_cndmask_b32 %s, %s, v29, %s" % (v(dst + p), v(dst + p), s(sP, 2)))
    a("buffer_store_dwordx4 %s, %s, %s, %s offen offset:2048 sc1" % (v(dst, 4), v(vL16), s(rWS, 4), s(so)))
    a("buffer_store_dwordx4 %s, %s, %s, %s offen offset:3072 sc1" % (v(dst + 4, 4), v(vL16), s(rWS, 4), s(so)))


def tile_index(sd):
    a("s_lshl_b32 %s, %s, 1" % (s(sd), s(sM)))
    a("s_add_u32 %s, %s, %s" % (s(sd), s(sd), s(sHalf)))
    a("s_lshl_b32 %s, %s, 1" % (s(sd), s(sd)))


def fq_addr(sHp):
    a("s_lshl_b32 s11, %s, 5" % s(sHp))
    a("s_lshl_b32 s12, %s, 1" % s(sM))
    a("s_add_u32 s11, s11, s12")
    a("s_add_u32 s11, s11, %s" % s(sHalf))
    a("s_lshl_b32 s11, s11, 7")
    a("s_add_u32 s11, s11, 0x%x" % FQ_OFF)
    a("v_lshl_add_u32 %s, %s, 12, s11" % (v(vFA), v(vLane)))


def fh_addr(vd):
    a("s_lshl_b32 s11, %s, 1" % s(sM))
    a("s_add_u32 s11, s11, %s" % s(sHalf))
    a("s_lshl_b32 s11, s11, 4")
    a("s_add_u32 s11, s11, %s" % s(sCol))
    a("s_lshl_b32 s11, s11, 2")
    a("s_add_u32 s11, s11, %s" % s(sCg))
    a("s_lshl_b32 s11, s11, 7")
    a("s_add_u32 s11, s11, 0x%x" % FH_OFF)
    a("v_mov_b32 %s, s11" % v(vd))


def h_base(sd, sd2, sKs):
    tile_index(sd)
    a("s_mul_i32 %s, %s, 114688" % (s(sd), s(sd)))
    a("s_lshl_b32 s11, %s, 10" % s(sKs))
    a("s_add_u32 %s, %s, s11" % (s(sd), s(sd)))
    a("s_add_u32 %s, %s, 0x%x" % (s(sd), s(sd), H_OFF))
    a("s_add_u32 %s, %s, 114688" % (s(sd2), s(sd)))


def hstore(d, so, off=0):
    a("buffer_store_dwordx4 %s, %s, %s, %s offen offset:%d sc1" % (v(d, 4), v(vL16), s(rWS, 4), s(so), off))


def read_exchange(with_c):
    a("v_mov_b32 v24, %d" % NONL)
    a("ds_read_b32 %s, v24" % v(vNon))
    if with_c:
        a("ds_read_b32 v20, v27")
        a("ds_read_b32 v22, v27 offset:128")


def c_addr():
    a("s_lshl_b32 s11, %s, 8" % s(sHalf))
    a("s_add_u32 s11, s11, %d" % EX)
    a("v_and_b32 v27, 31, %s" % v(vLane))
    a("v_lshl_add_u32 v27, v27, 2, s11")


sH0, sH1 = sSA, sSC
a.label("Lepi_lo")
stamp(3)
a("s_lshl_b32 s38, %s, 1" % s(sCol))
a("s_add_u32 s38, s38, %s" % s(sCg))
tile_index(sX0)
a("s_cmp_lt_u32 s38, 16")
a("s_cselect_b32 %s, 0x%x, 1.0" % (s(kS), f2u(math.log2(math.e) / math.sqrt(28.0))))
a("s_cselect_b32 s13, 0xffff, 0")
a("s_cselect_b32 s14, 0, 12")
a("s_cselect_b32 s15, 11, 12")
a("s_cselect_b32 s11, 0x%x, %d" % (Q_OFF, KV_OFF))
a("s_and_b32 s12, s38, 15")
a("s_lshl_b32 s12, s12, 6")
a("s_add_u32 s12, s12, %s" % s(sX0))
a("s_lshl_b32 s12, s12, s15")
a("s_add_u32 %s, s11, s12" % s(sOA))
a("s_lshl_b32 s12, 1, s15")
a("s_add_u32 %s, %s, s12" % (s(sOB), s(sOA)))
a("v_lshrrev_b32 v27, 1, %s" % v(vLane))
a("v_xor_b32 v27, v27, %s" % v(vLane))
a("v_bfe_u32 v27, v27, 2, 1")
a("v_mul_u32_u24 v27, s14, v27")
a("v_xor_b32 v27, v27, %s" % v(vLane))
a("v_lshlrev_b32 v26, 4, v27")
a("v_mov_b32 v16, %s" % v(ACC + 12))
a("v_mov_b32 v17, %s" % v(ACC + 16 + 12))
a("s_nop 1")
a("v_permlane32_swap_b32 v16, v17")
a("s_nop 1")
a("v_cvt_pk_bf16_f32 v17, v17, v17")
a("v_and_b32 v17, 0xffff0000, v17")
a("v_mul_f32 v17, 0x%x, v17" % f2u(-math.log2(math.e)))
a("v_exp_f32 v17, v17")
a("s_nop 0")
a("v_add_f32 v17, 1.0, v17")
a("v_rcp_f32 v17, v17")
a("s_nop 0")
a("v_cvt_pk_bf16_f32 v18, v17, v17")
a("v_and_b32 v17, 0xffff0000, v18")
a("v_sub_f32 v17, 1.0, v17")
a("v_cvt_pk_bf16_f32 v17, v17, v17")
a("v_and_b32 v17, 0xffff0000, v17")
a("v_rcp_f32 v20, v17")
a("v_and_b32 v18, s13, v18")
a("v_min_f32 v20, 0x7f000000, v20")
a("s_lshl_b32 s11, %s, 8" % s(sHalf))
a("s_add_u32 s11, s11, %d" % EX)
a("v_lshl_add_u32 v27, %s, 2, s11" % v(vLane))
a("ds_write_b32 v27, v20")
a("v_mov_b32 v19, v18")
a("v_mov_b32 v22, v20")
a("s_nop 1")
a("v_permlane32_swap_b32 v18, v19")
a("v_permlane32_swap_b32 v20, v22")
qk_tile(ACC, 18, 26, sOA, 32)
qk_tile(ACC + 16, 19, 26, sOB, 40)
a("s_waitcnt vmcnt(4)")
a("s_cmp_lg_u32 %s, 0" % s(sW))
a("s_cbranch_scc1 Lepi_lo_nn")
get_nonce(vNon, vFT)
a("v_mov_b32 v24, %d" % NONL)
a("ds_write_b32 v24, %s" % v(vNon))
a.label("Lepi_lo_nn")
a("s_waitcnt lgkmcnt(0)")
a("s_barrier")
read_exchange(False)
gelu_tile(ACC + 32, 20, 32)
gelu_tile(ACC + 48, 22, 36)
a("s_lshl_b32 s13, %s, 1" % s(sCol))
a("s_add_u32 s13, s13, %s" % s(sCg))
a("s_lshl_b32 s13, s13, 2")
a("s_lshl_b32 s14, %s, 2" % s(sCol))
a("s_add_u32 s14, s14, %s" % s(sCg))
a("s_add_u32 s14, s14, 48")
a("s_cmp_eq_u32 %s, 1" % s(sSpec))
a("s_cselect_b32 s13, s14, s13")
h_base(sH0, sH1, 13)
hstore(32, sH0)
hstore(36, sH1)
fq_addr(38)
fh_addr(243)
a("s_waitcnt lgkmcnt(0)")
a("v_readfirstlane_b32 %s, %s" % (s(sNON), v(vNon)))
stamp(12)
a("s_nop 0")
a("s_waitcnt vmcnt(2)")
flag_store(vFA, vFT)
stamp(4)
a("s_waitcnt vmcnt(1)")
flag_store(243, vFT)
stamp(13)
a("s_branch Lattn")

vH0, vDd, vDr, vH1 = 225, 226, 227, 229


def d_prefetch_setup():
    srd(rWD, pWD, 1792 * 896)
    srd(rWO, pWO, 448 * 896)
    a("v_lshrrev_b32 v16, 3, %s" % v(vLane))
    a("v_and_b32 v17, 7, %s" % v(vLane))
    a("v_bfe_u32 v18, v16, 1, 1")
    a("v_lshlrev_b32 v18, 2, v18")
    a("v_xor_b32 v18, v18, v17")
    a("v_lshlrev_b32 v18, 4, v18")
    a("v_mul_u32_u24 v16, 896, v16")
    a("s_lshl_b32 s11, %s, 7" % s(sT))
    a("v_add3_u32 %s, v16, v18, s11" % v(vDd))
    a("s_and_b32 s12, %s, 3" % s(sW))
    a("s_mul_i32 %s, s12, %d" % (s(sXs), 448 * 896))
    a("s_add_u32 %s, %s, %d" % (s(sXo), s(sXs), 448 * 896))
    a("s_lshl_b32 %s, %s, 2" % (s(sTr), s(sT)))
    a("s_and_b32 s11, %s, 3" % s(sR))
    a("s_add_u32 %s, %s, s11" % (s(sTr), s(sTr)))
    if not ROT & 4:
        a("s_mov_b32 %s, 0" % s(sTr))
    a("s_mul_i32 s11, %s, %d" % (s(sTr), 16 * 896))
    a("s_add_u32 %s, %s, s11" % (s(sOC), s(sXs)))
    a("s_cmp_eq_u32 %s, 0" % s(sFin))
    a("s_cselect_b32 %s, 0x40000000, %s" % (s(sOC), s(sOC)))
    a("s_mul_i32 %s, s12, %d" % (s(sWd), DREG))
    a("s_add_u32 %s, %s, %d" % (s(sWd), s(sWd), DB))


def wd_adv(e):
    r = ["s_add_u32 %s, %s, 7168" % (s(sOC), s(sOC))]
    if e:
        r += ["s_cmp_eq_u32 %s, %s" % (s(sOC), s(sXo)), "s_cselect_b32 %s, %s, %s" % (s(sOC), s(sXs), s(sOC))]
    return r


def d_prefetch_groups():
    return [dma_lines(vDd, rWD, sOC, sWd, 1024 * n) + wd_adv(n & 1) for n in range(26)]


a.label("Lepi_hi_s")
stamp(3)
a("s_lshl_b32 s38, %s, 1" % s(sCol))
a("s_add_u32 s38, s38, %s" % s(sCg))
a("s_lshl_b32 s38, s38, 1")
a("s_sub_u32 s38, s38, %d" % (48 + 4))
tile_index(sX0)
a("s_mov_b32 %s, 0xf0000000" % s(sP))
a("s_mov_b32 %s, 0xf0000000" % s(sP + 1))
a("v_and_b32 v28, 31, %s" % v(vLane))
a("v_cmp_eq_u32 vcc, 28, v28")
a("v_mov_b32 v27, 0x3f803f80")
a("s_lshl_b32 s12, s38, 6")
a("v_cndmask_b32 v29, %s, v27, vcc" % v(vZero))
a("s_add_u32 s12, s12, %s" % s(sX0))
a("s_lshl_b32 %s, s12, 12" % s(sOA))
a("s_add_u32 %s, %s, 4096" % (s(sOB), s(sOA)))
for c in range(2):
    v_tile(ACC + 32 * c, sOA, 32)
    v_tile(ACC + 32 * c + 16, sOB, 40)
    if c == 0:
        a("s_add_u32 %s, %s, 0x40000" % (s(sOA), s(sOA)))
        a("s_add_u32 %s, %s, 0x40000" % (s(sOB), s(sOB)))
c_addr()
a("s_waitcnt vmcnt(8)")
a("s_barrier")
read_exchange(True)
a("s_add_u32 s38, s38, 32")
fq_addr(38)
fh_addr(243)
a("s_lshl_b32 s13, %s, 2" % s(sCol))
a("s_add_u32 s13, s13, %s" % s(sCg))
a("s_add_u32 s13, s13, 48")
h_base(sH0, sH1, 13)
d_prefetch_setup()
a("s_waitcnt lgkmcnt(0)")
a("v_readfirstlane_b32 %s, %s" % (s(sNON), v(vNon)))
gelu_tile(ACC + 64, 20, 32)
gelu_tile(ACC + 80, 22, 36)
hstore(32, sH0)
hstore(36, sH1)
stamp(12)
a("s_waitcnt vmcnt(2)")
flag_store(vFA, vFT, 2)
for g in d_prefetch_groups():
    for x in g:
        a(x)
a("s_waitcnt vmcnt(27)")
flag_store(243, vFT)
stamp(4)
a("s_branch Ldown")

a.label("Lepi_hi_t")
stamp(3)
c_addr()
a("s_lshl_b32 s13, %s, 1" % s(sCol))
a("s_add_u32 s13, s13, %s" % s(sCg))
a("s_lshl_b32 s13, s13, 2")
a("s_sub_u32 s13, s13, 7")
h_base(sH0, sH1, 13)
fh_addr(243)
d_prefetch_setup()
a("s_waitcnt vmcnt(0)")
a("s_barrier")
read_exchange(True)
a("s_waitcnt lgkmcnt(0)")
a("v_readfirstlane_b32 %s, %s" % (s(sNON), v(vNon)))
pf = d_prefetch_groups()
for c in range(3):
    for rt in range(2):
        n = 2 * c + rt
        gelu_tile(ACC + 32 * c + 16 * rt, 20 + 2 * rt, 32 + 4 * n, pf[(26 * n) // 6:(26 * (n + 1)) // 6] if PFMODE == 0 else ())
for c in range(3):
    for rt in range(2):
        hstore(32 + 4 * (2 * c + rt), (sH0, sH1)[rt], 1024 * c)
stamp(12)
if PFMODE == 1:
    for g in pf:
        for x in g:
            a(x)
    a("s_waitcnt vmcnt(26)")
else:
    a("s_waitcnt vmcnt(0)")
flag_store(243, vFT)
stamp(4)
a("s_branch Ldown")

Q, O, S_, KV, vIdx = 0, 32, 96, 160, 224
sKV, sQb = sOA, sOB


vKV = 231


def kvload(b, part, va=vKV):
    for i in range(2):
        a("buffer_load_dwordx4 %s, %s, %s, %s offen offset:%d sc1" % (
            v(KV + 16 * b + 8 * part + 4 * i, 4), v(va), s(rWS, 4), s(sKV), 2048 * part + 1024 * i))


def qk(n, half):
    kt, u = n >> 2, n & 3
    K = KV + 16 * (kt & 3) + 4 * half
    d = S_ + 16 * u
    return "v_mfma_f32_32x32x16_bf16 %s, %s, %s, %s" % (v(d, 16), v(K, 4), v(Q + 8 * u + 4 * half, 4), v(d, 16) if half else "0")


def pv(n, half):
    kt, u = n >> 2, n & 3
    V = KV + 16 * (kt & 3) + 8 + 4 * half
    return "v_smfmac_f32_32x32x32_bf16 %s, %s, %s, %s" % (v(O + 16 * u, 16), v(V, 4), v(S_ + 16 * u + 8 * half, 8), v(vIdx))


def slot(n, last=False, extra=None):
    u = n & 3
    extra = extra or {}
    e = ["v_exp_f32 %s, %s" % (v(S_ + 16 * u + i), v(S_ + 16 * u + i)) for i in range(16)]
    if not last:
        seq = [qk(n + 1, 0)] + e[0:3] + [qk(n + 1, 1)] + e[3:6]
    else:
        seq = e[0:6]
    seq += [pv(n - 1, 0)] + e[6:9] + [pv(n - 1, 1)] + e[9:16]
    for i, x in enumerate(seq):
        for y in extra.get(i, []):
            a(y)
        a(x)


a.label("Lattn")
a("s_setprio 2")
a("s_lshl_b32 s11, %s, 3" % s(sW))
a("v_and_b32 v16, 7, %s" % v(vLane))
a("v_add_u32 v16, s11, v16")
a("v_bfe_u32 v17, %s, 3, 1" % v(vLane))
a("v_lshlrev_b32 v17, 4, v17")
a("s_add_u32 s12, %s, 16" % s(sH))
a("v_add_u32 v17, s12, v17")
a("v_lshl_add_u32 v16, v17, 5, v16")
a("s_lshl_b32 s11, %s, 5" % s(sH))
a("s_lshl_b32 s12, %s, 1" % s(sMA))
a("s_add_u32 s11, s11, s12")
a("v_and_b32 v17, 1, %s" % v(vLane))
a("v_add_u32 v17, s11, v17")
a("v_cmp_gt_u32 vcc, 16, %s" % v(vLane))
a("s_mov_b32 s11, 0x%x" % FQ_OFF)
a("s_nop 0")
a("v_cndmask_b32 v16, v17, v16, vcc")
a("v_lshl_add_u32 %s, v16, 7, s11" % v(vFA))
for i in range(64):
    a("v_mov_b32 %s, 0" % v(O + i))
for i in range(16):
    a("v_mov_b32 %s, 0" % v(S_ + 48 + i))
for i in range(8):
    a("v_mov_b32 %s, 0" % v(KV + 48 + 8 + i))
a("v_mov_b32 %s, 0xdddd" % v(vIdx))
a("s_lshl_b32 s11, %s, 6" % s(sH))
a("s_lshl_b32 s12, %s, 4" % s(sW))
a("s_add_u32 s12, s12, s11")
a("s_lshl_b32 s12, s12, 12")
a("v_add_u32 %s, s12, %s" % (v(vKV), v(vL16)))
a("s_lshl_b32 %s, %s, 12" % (s(sKV), s(sMA)))
if not ROT & 2:
    a("s_mov_b32 %s, 0" % s(sKV))
a("s_lshl_b32 s12, %s, 2" % s(sMA))
a("s_add_u32 s11, s11, s12")
a("s_lshl_b32 s11, s11, 11")
a("s_add_u32 %s, s11, 0x%x" % (s(sQb), Q_OFF))
poll(vFA, vFT)
stamp(5)
kvload(0, 0)
for u in range(4):
    a("s_add_u32 s11, %s, %d" % (s(sW), u + 1))
    a("s_and_b32 s11, s11, 3")
    a("s_lshl_b32 s11, s11, 11")
    a("s_add_u32 s11, s11, %s" % s(sQb))
    for i in range(2):
        a("buffer_load_dwordx4 %s, %s, %s, s11 offen offset:%d sc1" % (v(Q + 8 * u + 4 * i, 4), v(vL16), s(rWS, 4), 1024 * i))
kvload(0, 1)
for b in (1, 2):
    a("s_add_u32 %s, %s, 4096" % (s(sKV), s(sKV)))
    a("s_and_b32 %s, %s, 0xffff" % (s(sKV), s(sKV)))
    kvload(b, 0)
    kvload(b, 1)
for u in range(3):
    a("s_add_u32 s11, %s, %d" % (s(sW), u + 1))
    a("s_and_b32 s11, s11, 3")
    a("s_mul_i32 s11, s11, 12288")
    a("s_add_u32 s11, s11, %d" % (PB + 4096 * u))
    a("v_add_u32 %s, s11, %s" % (v(225 + u), v(vL16)))
a("s_mov_b32 %s, 0" % s(sIt))
a("s_waitcnt vmcnt(8)")
stamp(6)
a(qk(0, 0))
a(qk(0, 1))
a("s_nop 10")
a(".p2align 5")
a.label("Lattn_loop")


def kv_extra(kt, loads=True, wait=8):
    b = (kt + 3) & 3
    ex = [{}, {}, {}, {}]
    if loads:
        ld = lambda part, i: "buffer_load_dwordx4 %s, %s, %s, %s offen offset:%d sc1" % (
            v(KV + 16 * b + 8 * part + 4 * i, 4), v(vKV), s(rWS, 4), s(sKV), 2048 * part + 1024 * i)
        ex[0] = {15: ["s_add_u32 %s, %s, 4096" % (s(sKV), s(sKV))], 17: ["s_and_b32 %s, %s, 0xffff" % (s(sKV), s(sKV))]}
        ex[1] = {15: [ld(0, 0)], 17: [ld(0, 1)]}
        ex[2] = {15: [ld(1, 0)], 17: [ld(1, 1)]}
    if wait is not None:
        ex[3] = {0: ["s_waitcnt vmcnt(%d)" % wait]}
    return ex


for kt in range(4):
    ex = kv_extra(kt)
    for u in range(4):
        slot(4 * kt + u, extra=ex[u])
a("s_add_u32 %s, %s, 1" % (s(sIt), s(sIt)))
a("s_cmp_lt_u32 %s, 3" % s(sIt))
a("s_cbranch_scc1 Lattn_loop")
for kt in range(4):
    ex = kv_extra(kt, loads=(kt == 0), wait=(8, 4, 0, None)[kt])
    for u in range(4):
        n = 4 * kt + u
        e = dict(ex[u])
        if kt == 3 and u >= 2:
            for qd in range(4):
                e.setdefault(5 + 2 * qd, []).append(
                    "ds_write_b128 %s, %s offset:%d" % (v(225 + u - 2), v(O + 16 * (u - 2) + 4 * qd, 4), 1024 * qd))
        slot(n, last=(n == 15), extra=e)
a(pv(15, 0))
a("v_mov_b32 v225, %d" % CNT)
a("v_mov_b32 v226, 1")
a("s_mul_i32 s11, %s, 12288" % s(sW))
a(pv(15, 1))
for qd in range(4):
    a("ds_write_b128 %s, %s offset:%d" % (v(227), v(O + 32 + 4 * qd, 4), 1024 * qd))
stamp(7)
a("v_add_u32 v227, s11, %s" % v(vL16))
a("s_waitcnt lgkmcnt(0)")
a("ds_add_u32 v225, v226")
a("s_mov_b32 %s, %d" % (s(sSpin), SPIN_MAX))
a.label("Lasync")
a("ds_read_b32 v226, v225")
a("s_waitcnt lgkmcnt(0)")
a("v_readfirstlane_b32 s11, v226")
a("s_sub_u32 %s, %s, 1" % (s(sSpin), s(sSpin)))
a("s_cbranch_scc1 Lasync_done")
a("s_cmp_lt_u32 s11, 256")
a("s_cbranch_scc1 Lasync")
a.label("Lasync_done")
OW = O + 48
for u in range(3):
    for qd in range(4):
        a("ds_read_b128 %s, v227 offset:%d" % (v(S_ + 16 * u + 4 * qd, 4), PB + 4096 * u + 1024 * qd))
a("s_lshl_b32 s11, %s, 2" % s(sMA))
a("s_add_u32 s11, s11, %s" % s(sW))
a("s_lshl_b32 s12, s11, 4")
a("s_add_u32 s12, s12, %s" % s(sH))
a("s_lshl_b32 s13, s12, 11")
a("s_add_u32 %s, s13, 0x%x" % (s(sOC), O_OFF))
a("s_lshl_b32 s12, s12, 7")
a("s_add_u32 s12, s12, 0x%x" % FO_OFF)
a("v_mov_b32 %s, s12" % v(vFA))
for u in range(3):
    a("s_waitcnt lgkmcnt(%d)" % (8 - 4 * u))
    for p in range(8):
        a("v_pk_add_f32 %s, %s, %s" % (v(OW + 2 * p, 2), v(OW + 2 * p, 2), v(S_ + 16 * u + 2 * p, 2)))
a("v_pk_mul_f32 v[228:229], %s, 0 op_sel_hi:[1,0]" % v(OW, 2))
a("v_pk_mul_f32 v[232:233], %s, 0 op_sel_hi:[1,0]" % v(OW + 2, 2))
for p in range(2, 8):
    t = 228 if p % 2 == 0 else 232
    a("v_pk_fma_f32 %s, %s, 0, %s op_sel_hi:[1,0,1]" % (v(t, 2), v(OW + 2 * p, 2), v(t, 2)))
a("v_subrev_u32 v226, 0x%x, %s" % (f2u(2.0 ** -40), v(OW + 12)))
a("v_pk_add_f32 v[228:229], v[228:229], v[232:233]")
a("v_cmp_lt_u32 vcc, 0x%x, v226" % (f2u(2.0 ** 40) - f2u(2.0 ** -40)))
a("v_cmp_u_f32 %s, v228, v229" % s(sP, 2))
a("s_and_b64 vcc, vcc, %s" % s(mHI, 2))
a("s_or_b64 vcc, vcc, %s" % s(sP, 2))
if FORCE_FB:
    a("s_mov_b64 vcc, -1")
a("s_cbranch_vccnz Lfallback")
a.label("Lnormalize")
a("v_rcp_f32 v225, %s" % v(OW + 12))
a("v_lshlrev_b32 v226, 16, %s" % v(Q + 24 + 6))
a("v_mul_f32 v226, v225, v226")
a("v_mov_b32 v228, v226")
a("s_nop 1")
a("v_permlane32_swap_b32 v226, v228")
a("s_nop 1")
for p in range(8):
    a("v_pk_mul_f32 %s, %s, v[228:229] op_sel_hi:[1,0]" % (v(OW + 2 * p, 2), v(OW + 2 * p, 2)))
for p in range(8):
    a("v_cvt_pk_bf16_f32 %s, %s, %s" % (v(S_ + p), v(OW + 2 * p), v(OW + 2 * p + 1)))
a("v_cndmask_b32 %s, %s, %s, %s" % (v(S_ + 6), v(S_ + 6), v(vZero), s(mHI, 2)))
a("v_cndmask_b32 %s, %s, %s, %s" % (v(S_ + 7), v(S_ + 7), v(vZero), s(mHI, 2)))
a("buffer_store_dwordx4 %s, %s, %s, %s offen sc1" % (v(S_, 4), v(vL16), s(rWS, 4), s(sOC)))
a("buffer_store_dwordx4 %s, %s, %s, %s offen offset:1024 sc1" % (v(S_ + 4, 4), v(vL16), s(rWS, 4), s(sOC)))
for i in range(32):
    a("v_mov_b32 %s, 0" % v(i))
a("s_waitcnt vmcnt(0)")
flag_store(vFA, vFT)
stamp(8)
a("s_cmp_eq_u32 %s, 0" % s(sFin))
a("s_cbranch_scc1 Lexit")
a("s_mov_b32 %s, 1" % s(sHalf))
a("s_branch Ltail")

a.label("Lfallback")
a("s_lshl_b32 %s, %s, 18" % (s(sKV), s(sH)))
a("v_mov_b32 v225, 0xff800000")
a("s_mov_b32 %s, 0" % s(sIt))
a.label("Lfb1")
kvload(0, 0, vL16)
a("s_waitcnt vmcnt(0)")
a(qk(3, 0))
a(qk(3, 1))
a("s_nop 11")
for i in range(0, 16, 2):
    a("v_max3_f32 v225, %s, %s, v225" % (v(S_ + 48 + i), v(S_ + 49 + i)))
a("s_add_u32 %s, %s, 4096" % (s(sKV), s(sKV)))
a("s_add_u32 %s, %s, 1" % (s(sIt), s(sIt)))
a("s_cmp_lt_u32 %s, 64" % s(sIt))
a("s_cbranch_scc1 Lfb1")
a("v_mov_b32 v226, v225")
a("s_nop 1")
a("v_permlane32_swap_b32 v225, v226")
a("s_nop 1")
a("v_max_f32 v225, v225, v226")
for i in range(16):
    a("v_mov_b32 %s, 0" % v(OW + i))
a("s_lshl_b32 %s, %s, 18" % (s(sKV), s(sH)))
a("s_mov_b32 %s, 0" % s(sIt))
a.label("Lfb2")
kvload(0, 0, vL16)
kvload(0, 1, vL16)
a("s_waitcnt vmcnt(0)")
a(qk(3, 0))
a(qk(3, 1))
a("s_nop 11")
for i in range(16):
    a("v_sub_f32 %s, %s, v225" % (v(S_ + 48 + i), v(S_ + 48 + i)))
for i in range(16):
    a("v_exp_f32 %s, %s" % (v(S_ + 48 + i), v(S_ + 48 + i)))
a("s_nop 1")
a(pv(3, 0))
a(pv(3, 1))
a("s_add_u32 %s, %s, 4096" % (s(sKV), s(sKV)))
a("s_add_u32 %s, %s, 1" % (s(sIt), s(sIt)))
a("s_cmp_lt_u32 %s, 64" % s(sIt))
a("s_cbranch_scc1 Lfb2")
a("s_nop 11")
a("s_branch Lnormalize")

DA, HB, WF = 0, 64, 128


def dr_setup():
    a("s_and_b32 s12, %s, 3" % s(sW))
    a("s_mul_i32 s13, s12, %d" % DREG)
    a("s_add_u32 s13, s13, %d" % DB)
    a("v_bfe_u32 v240, %s, 2, 2" % v(vLane))
    a("v_lshrrev_b32 v243, 5, %s" % v(vLane))
    a("v_lshl_add_u32 v243, v243, 2, v240")
    a("v_lshl_add_u32 v243, v243, 7, s13")
    a("v_lshrrev_b32 v240, 1, v240")
    a("v_lshlrev_b32 v240, 6, v240")
    a("v_bfe_u32 v244, %s, 4, 1" % v(vLane))
    a("v_add_u32 v244, s12, v244")
    a("v_and_b32 v245, 3, %s" % v(vLane))
    a("v_lshlrev_b32 v245, 3, v245")
    for ct in range(2):
        a("v_add_u32 v246, %d, v244" % (2 * ct))
        a("v_and_b32 v246, 3, v246")
        a("v_lshl_add_u32 v246, v246, 5, v245")
        a("v_xor_b32 v246, v246, v240")
        a("v_add_u32 %s, v246, v243" % v(vDr + ct))


a.label("Ldown")
a("s_cmp_eq_u32 %s, 0" % s(sFin))
a("s_cbranch_scc1 Lexit")
dr_setup()
a("s_mul_i32 s11, s12, 7")
a("s_lshr_b32 s11, s11, 1")
a("s_lshl_b32 s13, %s, 4" % s(sR))
a("s_add_u32 s11, s11, s13")
a("s_lshl_b32 s11, s11, 9")
a("s_add_u32 s11, s11, 0x%x" % FH_OFF)
a("s_cmp_eq_u32 s12, 3")
a("s_cselect_b32 s13, 23, 15")
a("v_min_u32 v240, s13, %s" % v(vLane))
a("v_lshl_add_u32 %s, v240, 7, s11" % v(vFA))
a("s_mul_i32 s11, %s, 229376" % s(sR))
a("s_mul_i32 s13, s12, 28672")
a("s_add_u32 s11, s11, s13")
a("s_add_u32 s11, s11, 0x%x" % H_OFF)
a("v_add_u32 %s, s11, %s" % (v(vH0), v(vL16)))
a("s_lshl_b32 %s, %s, 10" % (s(sOA), s(sTr)))
a("s_mul_i32 %s, s12, %d" % (s(sOB), 112 * 896))
a("v_add_u32 %s, 114688, %s" % (v(vH1), v(vH0)))
for i in range(64):
    a("v_mov_b32 %s, 0" % v(DA + i))
poll(vFA, vFT)
stamp(5)
vmq = []


def hload(i):
    for rt in range(2):
        a("buffer_load_dwordx4 %s, %s, %s, %s offen sc1" % (
            v(HB + 8 * (i & 7) + 4 * rt, 4), v((vH0, vH1)[rt]), s(rWS, 4), s(sOA)))
        vmq.append(("h", i))
    a("s_add_u32 %s, %s, 1024" % (s(sOA), s(sOA)))
    a("s_cmp_eq_u32 %s, 28672" % s(sOA))
    a("s_cselect_b32 %s, 0, %s" % (s(sOA), s(sOA)))


def vm_wait(tags):
    idx = [k for k, t in enumerate(vmq) if t in tags]
    return None if not idx else len(vmq) - 1 - max(idx)


def wreads(dst, off):
    for ct in range(2):
        for jj in range(2):
            a("ds_read_b64_tr_b16 %s, %s offset:%d" % (v(dst + 4 * ct + 2 * jj, 2), v(vDr + ct), off + 1024 * jj))


for i in range(8):
    hload(i)
wreads(WF, 0)
for i in range(28):
    n = vm_wait({("h", i), ("w", i + 1)})
    a("s_waitcnt vmcnt(%d) lgkmcnt(0)" % n)
    if i + 1 < 28:
        wreads(WF + 8 * ((i + 1) & 1), ((i + 1) % 13) * 2048)
    for rt in range(2):
        for ct in range(2):
            mfma(DA + 32 * rt + 16 * ct, WF + 8 * (i & 1) + 4 * ct, HB + 8 * (i & 7) + 4 * rt)
    if i <= 14:
        for e in range(2):
            for x in dma_lines(vDd, rWD, sOC, sWd, (i % 13) * 2048 + 1024 * e):
                a(x)
            for x in wd_adv(e):
                a(x)
            vmq.append(("w", i + 13))
    elif i <= 22:
        for e in range(2):
            for x in dma_lines(vDd, rWO, sOB, sWd, (i % 13) * 2048 + 1024 * e):
                a(x)
            a("s_add_u32 %s, %s, 7168" % (s(sOB), s(sOB)))
            vmq.append(("o", i))
    if i + 8 < 28:
        hload(i + 8)
stamp(7)
a("v_add_u32 v240, %s, %s" % (s(sWd), v(vL16)))
a("s_nop 10")
for o in range(4):
    for q in range(2):
        a("ds_write_b128 v240, %s offset:%d" % (v(DA + 32 + 8 * o + 4 * q, 4), (o >> 1) * 20480 + (o & 1) * 2048 + 1024 * q))
a("s_mov_b32 %s, 0" % s(sHalf))
stamp(8)
a("s_branch Ltail2")

OF, WOF, RR = 64, 128, 96
a.label("Ltail")
dr_setup()
a.label("Ltail2")
a("s_and_b32 s12, %s, 3" % s(sW))
a("s_lshl_b32 s11, %s, 1" % s(sR))
a("s_add_u32 s14, s11, %s" % s(sHalf))
a("s_lshl_b32 s11, s14, 2")
a("s_add_u32 s11, s11, s12")
a("s_lshl_b32 s13, s11, 13")
a("s_add_u32 %s, s13, 0x%x" % (s(sOA), O_OFF))
a("s_add_u32 %s, %s, 4096" % (s(sOB), s(sOA)))
a("s_lshl_b32 s11, s11, 9")
a("s_add_u32 s11, s11, 0x%x" % FO_OFF)
a("v_and_b32 v240, 3, %s" % v(vLane))
a("v_lshl_add_u32 %s, v240, 7, s11" % v(vFA))
srd(rOUT, pOUT, 2048 * 896)
a("v_and_b32 v240, 31, %s" % v(vLane))
a("s_lshl_b32 s14, s14, 5")
a("v_add_u32 v240, s14, v240")
a("v_mul_u32_u24 v240, 896, v240")
a("v_lshrrev_b32 v243, 5, %s" % v(vLane))
a("v_lshlrev_b32 v243, 4, v243")
a("s_lshl_b32 s13, %s, 7" % s(sT))
a("s_lshl_b32 s14, s12, 5")
a("s_add_u32 s13, s13, s14")
a("v_add3_u32 v247, v240, v243, s13")
a("s_mul_i32 s15, %s, 24576" % s(sHalf))
for o in range(1, 4):
    a("s_add_u32 s11, s12, %d" % o)
    a("s_and_b32 s11, s11, 3")
    a("s_mul_i32 s11, s11, 6144")
    a("s_add_u32 s11, s11, s15")
    a("s_add_u32 s11, s11, %d" % (PB + 2048 * (o - 1)))
    a("v_add_u32 %s, s11, %s" % (v(232 + o), v(vL16)))
a("s_mul_i32 s11, s12, 6144")
a("s_add_u32 s11, s11, s15")
a("v_add_u32 v232, s11, %s" % v(vL16))
for k in range(4):
    a("s_sub_u32 s11, s12, %d" % k)
    a("s_and_b32 s11, s11, 3")
    a("s_lshr_b32 s13, s11, 1")
    a("s_mul_i32 s13, s13, 20480")
    a("s_and_b32 s11, s11, 1")
    a("s_lshl_b32 s11, s11, 11")
    a("s_add_u32 s11, s11, s13")
    a("s_add_u32 s11, s11, %d" % (DB + k * DREG))
    a("v_add_u32 %s, s11, %s" % (v(236 + k), v(vL16)))
poll(vFA, vFT)
stamp(9)
for k in range(8):
    a("buffer_load_dwordx4 %s, %s, %s, %s offen offset:%d sc1" % (v(OF + 4 * k, 4), v(vL16), s(rWS, 4), s((sOA, sOB)[k >> 2]), 1024 * (k & 3)))
a("s_waitcnt lgkmcnt(0)")
a("s_barrier")
for k in range(8):
    wreads(WOF + 8 * k, 4096 + (28 * (k >> 1) + 16 * (k & 1)) * 128)
    if k in (2, 4, 6):
        a("s_waitcnt lgkmcnt(4)")
for k in range(8):
    a("s_waitcnt vmcnt(%d) lgkmcnt(0)" % (7 - k))
    for ct in range(2):
        mfma(16 * ct, WOF + 8 * k + 4 * ct, OF + 4 * k)
stamp(10)
a("s_nop 11")
for o in range(1, 4):
    for q in range(2):
        a("ds_write_b128 %s, %s offset:%d" % (v(232 + o), v(8 * o + 4 * q, 4), 1024 * q))
a("s_waitcnt lgkmcnt(0)")
a("s_barrier")
for u in range(3):
    for q in range(2):
        a("ds_read_b128 %s, v232 offset:%d" % (v(RR + 8 * u + 4 * q, 4), PB + 2048 * u + 1024 * q))
a("s_cmp_eq_u32 %s, 0" % s(sHalf))
a("s_cbranch_scc1 Lfin_sum")
for k in range(4):
    for q in range(2):
        a("ds_read_b128 %s, %s offset:%d" % (v(WOF + 8 * k + 4 * q, 4), v(236 + k), 1024 * q))
a("s_waitcnt lgkmcnt(0)")
for k in range(4):
    for p in range(4):
        a("v_pk_add_f32 %s, %s, %s" % (v(2 * p, 2), v(2 * p, 2), v(WOF + 8 * k + 2 * p, 2)))
a.label("Lfin_sum")
a("s_waitcnt lgkmcnt(0)")
for u in range(3):
    for p in range(4):
        a("v_pk_add_f32 %s, %s, %s" % (v(2 * p, 2), v(2 * p, 2), v(RR + 8 * u + 2 * p, 2)))
for p in range(4):
    a("v_cvt_pk_bf16_f32 %s, %s, %s" % (v(8 + p), v(2 * p), v(2 * p + 1)))
a("s_nop 1")
a("v_permlane32_swap_b32 v8, v10")
a("v_permlane32_swap_b32 v9, v11")
a("buffer_store_dwordx4 v[8:11], v247, %s, 0 offen" % s(rOUT, 4))
a.label("Lexit")
if PROF:
    stamp(11)
    a("s_memrealtime %s" % s(sStamp, 2))
    a("s_waitcnt lgkmcnt(0)")
    a("v_writelane_b32 %s, %s, 17" % (v(vProf), s(sStamp)))
    a("s_lshl_b32 s11, s2, 3")
    a("s_add_u32 s11, s11, %s" % s(sW))
    a("s_lshl_b32 s11, s11, 7")
    a("s_add_u32 s11, s11, 0x%x" % PROF_OFF)
    a("v_lshl_add_u32 v240, %s, 2, s11" % v(vLane))
    a("s_mov_b64 exec, 0xffffffff")
    a("buffer_store_dword %s, v240, %s, 0 offen" % (v(vProf), s(rWS, 4)))
if DBGT:
    a("s_waitcnt vmcnt(0)")
    a("s_memrealtime s[100:101]")
    a("s_memtime s[98:99]")
    srd(rT, pDBG, 256)
    a("s_waitcnt lgkmcnt(0)")
    a("s_and_b32 s11, s2, 31")
    a("s_add_u32 s11, s11, %s" % s(sW))
    a("s_cmp_lg_u32 s11, 0")
    a("s_cbranch_scc1 Lend")
    a("s_cmp_ge_u32 s2, 160")
    a("s_cbranch_scc1 Lend")
    a("s_lshr_b32 s11, s2, 5")
    a("s_mul_i32 s11, s11, 12")
    a("v_mov_b32 v240, v253")
    a("v_sub_u32 v241, s100, v253")
    a("v_sub_u32 v242, s98, v254")
    a("s_mov_b64 exec, 1")
    a("buffer_store_dwordx3 v[240:242], %s, %s, s11 offen offset:4" % (v(vZero), s(rT, 4)))
a.label("Lend")
a("s_endpgm")

if STF != "sc1":
    a.L = [(l[:-4] + (" " + STF.replace("+", " ") if STF != "none" else "")) if l.startswith("buffer_store_dwordx4") and l.endswith(" sc1") else l for l in a.L]
bad = check(a.L)
if bad:
    print("%d hazards" % len(bad))

head = open("cdna_kernels/%s.s.ref" % NAME).read().split("; Override launch")[0]
txt = head + "; @launch grid=(256,1,1) block=(512,1,1) lds=%d\n" % LDS_BYTES
txt += '.amdgcn_target "amdgcn-amd-amdhsa--gfx950"\n.text\n.globl %s_kernel\n.p2align 8\n.type %s_kernel,@function\n' % (NAME, NAME)
txt += a.text()
txt += """.section .rodata,"a"
.p2align 6
.amdhsa_kernel %s_kernel
  .amdhsa_next_free_vgpr 256
  .amdhsa_next_free_sgpr 102
  .amdhsa_accum_offset 256
  .amdhsa_group_segment_fixed_size 0
  .amdhsa_kernarg_size 88
  .amdhsa_user_sgpr_count 2
  .amdhsa_user_sgpr_kernarg_segment_ptr 1
  .amdhsa_system_sgpr_workgroup_id_x 1
.end_amdhsa_kernel
""" % NAME
open(OUT, "w").write(txt)
print("wrote", OUT, len(a.L), "lines")
```

```python
import sys, struct, math
from asmlib import Asm, v, s, check

NAME = "gated_mix__mha_block__glu_gated_geglu__prompt"
PROF = "--prof" in sys.argv
FORCE_FB = "--force-fallback" in sys.argv
def opt(name, default):
    for x in sys.argv:
        if x.startswith("--%s=" % name):
            return type(default)(x.split("=")[1])
    return default
SLEEP = opt("sleep", 1)
STF = opt("stf", "sc1")
PFMODE = opt("pf", 0)
ROT = opt("rot", 7)
RN = opt("rn", 7)
DBGT = "--dbgt" in sys.argv
LEAK = opt("leak", 0)
OUT = [a for a in sys.argv[1:] if not a.startswith("--")]
OUT = OUT[0] if OUT else "cdna_kernels/%s.s" % NAME


def f2u(x):
    return struct.unpack("<I", struct.pack("<f", x))[0]


KV_OFF, Q_OFF, H_OFF, O_OFF = 0, 0x400000, 0x600000, 0xD00000
FQ_OFF, FH_OFF, FO_OFF, E_OFF, PROF_OFF = 0xF00000, 0xF40000, 0xF80000, 0xFA0000, 0xFC0000
WS_BYTES = 0x1000000
XB, WB, TB, EX, CNT = 0, 49152, 155648, 159744, 160768
WSLOT = 20480
PB, DB, DREG = 0, 49152, 26624
LDS_BYTES = 163840
SPIN_MAX = 1 << 18

sB, sW, sM, sJ, sH, sMA, sR, sT, sNON = 2, 3, 4, 5, 6, 7, 8, 9, 10
t0, t1, t2, t3, t4 = 11, 12, 13, 14, 15
pX, pQKV, pWO, pWG, pWU, pWD, pGW, pOUT, pDBG, pWS = 16, 18, 20, 24, 26, 28, 30, 32, 34, 36
t5, t6 = 38, 39
rA, rB, rC, rWS, rWD, rWO, rOUT, rT = 40, 44, 48, 52, 56, 60, 64, 68
sIt, sOA, sOB, sOC, sSA, sSB, sSC = 72, 73, 74, 75, 76, 77, 78
sWr, sWd, sXs, sXp, sXo, sTr, sX0 = 79, 80, 81, 82, 83, 84, 85
sHalf, sCg, sFin, sSpin = 86, 87, 88, 89
mHI, mT, kG, kS = 90, 92, 94, 96
sP = 98
sStamp = 100
vL16, vLane, vZero = 250, 251, 252
vProf = 230

a = Asm()
nstamp = [0]


def stamp(k):
    if not PROF:
        return
    a("s_memtime %s" % s(sStamp, 2))
    a("s_waitcnt lgkmcnt(0)")
    a("v_writelane_b32 %s, %s, %d" % (v(vProf), s(sStamp), k))


def srd(r, p, nbytes):
    a("s_mov_b32 %s, %s" % (s(r), s(p)))
    a("s_mov_b32 %s, %s" % (s(r + 1), s(p + 1)))
    a("s_mov_b32 %s, 0x%x" % (s(r + 2), nbytes))
    a("s_mov_b32 %s, 0x20000" % s(r + 3))


def mfma(d, A, B, C=None):
    c = v(d, 16) if C is None else C
    a("v_mfma_f32_32x32x16_bf16 %s, %s, %s, %s" % (v(d, 16), v(A, 4), v(B, 4), c))


def dma(vo, r, so, m0src, m0add=0):
    if m0add:
        a("s_add_u32 m0, %s, %d" % (s(m0src), m0add))
    else:
        a("s_mov_b32 m0, %s" % s(m0src))
    a("s_nop 0")
    a("buffer_load_dwordx4 %s, %s, %s offen lds" % (v(vo), s(r, 4), s(so)))


uid = [0]


def L(p):
    uid[0] += 1
    return "L%s_%d" % (p, uid[0])


def poll(vaddr, vtmp):
    lp, done = L("poll"), L("pdone")
    a("s_mov_b32 %s, %d" % (s(sSpin), SPIN_MAX))
    a.label(lp)
    a("buffer_load_dword %s, %s, %s, 0 offen sc1" % (v(vtmp), v(vaddr), s(rWS, 4)))
    a("s_waitcnt vmcnt(0)")
    a("v_cmp_ne_u32 vcc, %s, %s" % (s(sNON), v(vtmp)))
    a("s_nop 1")
    a("s_cbranch_vccz %s" % done)
    a("s_sub_u32 %s, %s, 1" % (s(sSpin), s(sSpin)))
    a("s_cbranch_scc1 %s" % done)
    a("s_sleep %d" % SLEEP)
    a("s_branch %s" % lp)
    a.label(done)


def get_nonce(vn, vtmp):
    lp, done = L("non"), L("ndone")
    a("s_mov_b32 %s, %d" % (s(sSpin), SPIN_MAX))
    a.label(lp)
    a("v_readfirstlane_b32 %s, %s" % (s(sNON), v(vn)))
    a("s_nop 1")
    a("s_cmp_lg_u32 %s, 0" % s(sNON))
    a("s_cbranch_scc1 %s" % done)
    a("s_sub_u32 %s, %s, 1" % (s(sSpin), s(sSpin)))
    a("s_cbranch_scc1 %s" % done)
    a("buffer_load_dword %s, %s, %s, 0 offen sc1" % (v(vn), v(vZero), s(rT, 4)))
    a("s_waitcnt vmcnt(0)")
    a("s_branch %s" % lp)
    a.label(done)


def flag_store(vaddr, vtmp, nlanes=1):
    a("v_mov_b32 %s, %s" % (v(vtmp), s(sNON)))
    a("s_mov_b64 exec, %d" % ((1 << nlanes) - 1))
    a("buffer_store_dword %s, %s, %s, 0 offen sc1" % (v(vtmp), v(vaddr), s(rWS, 4)))
    a("s_mov_b64 exec, -1")


a.label(NAME + "_kernel")
a("s_cmp_ge_u32 s2, 256")
a("s_cbranch_scc1 Lend")
a("s_load_dwordx16 s[16:31], s[0:1], 0")
a("s_load_dwordx4 s[32:35], s[0:1], 64")
a("s_load_dwordx2 s[36:37], s[0:1], 80")
if PROF:
    a("v_mov_b32 %s, 0" % v(vProf))
    a("s_memrealtime %s" % s(sStamp, 2))
    a("s_waitcnt lgkmcnt(0)")
    a("v_writelane_b32 %s, %s, 16" % (v(vProf), s(sStamp)))
    stamp(14)
if DBGT or LEAK:
    a("s_memrealtime s[100:101]")
    a("s_memtime s[98:99]")
    a("s_waitcnt lgkmcnt(0)")
    a("v_mov_b32 v253, s100")
    a("v_mov_b32 v254, s98")
a("v_lshrrev_b32 v1, 6, v0")
a("v_and_b32 %s, 63, v0" % v(vLane))
a("v_readfirstlane_b32 %s, v1" % s(sW))
a("v_lshlrev_b32 %s, 4, %s" % (v(vL16), v(vLane)))
a("v_mov_b32 %s, 0" % v(vZero))
sCol, sSpec = 5, 39
a("""
s_and_b32 s11, s2, 7
s_lshr_b32 s12, s2, 3
s_and_b32 s13, s11, 1
s_lshl_b32 s13, s13, 3
s_and_b32 s14, s12, 7
s_add_u32 s4, s13, s14
s_lshr_b32 s13, s11, 1
s_lshr_b32 s14, s12, 3
s_mul_i32 s15, s13, 3
s_add_u32 s15, s15, s14
s_add_u32 s13, s13, 12
s_cmp_eq_u32 s14, 3
s_cselect_b32 s5, s13, s15
s_cselect_b32 s39, 1, 0
""")
a("s_and_b32 %s, %s, 1" % (s(sHalf), s(sW)))
a("s_lshr_b32 %s, %s, 1" % (s(sCg), s(sW)))

vWb, vWa, vXb, vXa0, vXa1, vTb, vDA, vDB, vDC, vDC2 = 1, 4, 7, 8, 9, 10, 11, 12, 13, 14
a("""
v_lshrrev_b32 v16, 3, v251
v_and_b32 v17, 7, v251
v_bfe_u32 v25, v16, 1, 1
v_lshlrev_b32 v25, 2, v25
v_xor_b32 v25, v25, v17
v_lshlrev_b32 v25, 4, v25
""")
a("s_and_b32 s12, %s, 3" % s(sW))
a("s_lshl_b32 s13, s12, 3")
a("s_lshl_b32 s15, s12, 10")
a("v_add_u32 v26, s13, v16")
a("v_mul_u32_u24 v27, 3584, v26")
a("v_mul_u32_u24 v28, 2688, v26")
a("v_xor_b32 v29, 32, v25")
a("s_lshl_b32 s13, %s, 8" % s(sCol))
a("s_add_u32 s14, %s, 12" % s(sCol))
a("s_lshl_b32 s14, s14, 7")
a("s_cmp_eq_u32 %s, 1" % s(sSpec))
a("s_cselect_b32 s38, s14, s13")
a("s_lshr_b32 s12, s2, 3")
a("s_and_b32 s13, s12, 7")
a("s_lshr_b32 s12, s12, 3")
a("s_lshl_b32 s12, s12, 1")
a("s_add_u32 s12, s12, s13")
a("s_sub_u32 s13, s12, 7")
a("s_cselect_b32 %s, s12, s13" % s(sXp))
if not ROT & 1:
    a("s_mov_b32 %s, 0" % s(sXp))
if RN in (2, 4):
    a("s_lshr_b32 s12, s2, 3")
    a("s_lshr_b32 s13, s12, 3")
    a("s_add_u32 s12, s12, s13")
    a("s_and_b32 s12, s12, %d" % (RN - 1))
    a("s_mul_i32 s12, s12, 7")
    a("s_add_u32 s12, s12, %d" % (RN // 2))
    a("s_lshr_b32 %s, s12, %d" % (s(sXp), RN // 2))
if RN == 3:
    a("s_lshr_b32 s12, s2, 3")
    a("s_lshr_b32 s13, s12, 3")
    a("s_and_b32 s12, s12, 7")
    a("s_add_u32 s12, s12, s13")
    a("s_mul_i32 s13, s12, 43")
    a("s_lshr_b32 s13, s13, 7")
    a("s_mul_i32 s13, s13, 3")
    a("s_sub_u32 s12, s12, s13")
    a("s_mul_i32 s12, s12, 5")
    a("s_lshr_b32 %s, s12, 1" % s(sXp))
a("s_mul_i32 %s, %s, %d" % (s(sOA), s(sXp), 64 * 3584))
a("s_lshl_b32 %s, %s, 7" % (s(sXo), s(sXp)))
a("s_cmp_ge_u32 %s, 4" % s(sW))
a("s_cbranch_scc1 Lsetup_hi")

WG_BYTES, QKV_BYTES, X_BYTES = 448 * 3584, 448 * 2688, 2048 * 896
ACC = 128
XS, WS_ = (64, 84), (72, 92)


def late_setup():
    a("""
s_and_b32 s11, s2, 7
s_lshr_b32 s12, s2, 3
s_lshl_b32 s13, s11, 1
s_lshr_b32 s38, s12, 4
s_add_u32 s6, s13, s38
s_and_b32 s7, s12, 15
s_mul_i32 s13, s12, 37
s_lshr_b32 s13, s13, 8
s_mul_i32 s38, s13, 7
s_sub_u32 s9, s12, s38
s_lshl_b32 s38, s11, 2
s_add_u32 s8, s38, s13
s_cmp_lt_u32 s12, 28
""")
    a("s_cselect_b32 %s, 1, 0" % s(sFin))
    a("s_mov_b32 %s, 0" % s(mHI))
    a("s_mov_b32 %s, -1" % s(mHI + 1))
    a("s_mov_b32 %s, 0x88880000" % s(mT))
    a("s_mov_b32 %s, 0x88880000" % s(mT + 1))
    K1 = -2.0 * math.sqrt(2.0 / math.pi) * math.log2(math.e)
    a("s_mov_b32 %s, 0x%x" % (s(kG), f2u(K1 * 0.044715)))
    a("s_mov_b32 %s, 0x%x" % (s(kG + 1), f2u(K1)))
    a("s_mov_b32 %s, 0xffff0000" % s(sP))
    a("s_mov_b32 %s, 0xffff0000" % s(sP + 1))
    a("""
v_bfe_u32 v18, v251, 2, 2
v_and_b32 v19, 3, v251
v_lshlrev_b32 v19, 3, v19
v_lshrrev_b32 v20, 5, v251
v_and_b32 v21, 31, v251
v_lshl_add_u32 v22, v20, 3, v18
v_lshlrev_b32 v22, 7, v22
v_lshrrev_b32 v23, 1, v18
v_lshlrev_b32 v23, 6, v23
""")
    a("v_lshl_add_u32 %s, v20, 2, v18" % v(vTb))
    a("v_lshlrev_b32 %s, 3, %s" % (v(vTb), v(vTb)))
    a("v_bfe_u32 v24, v21, 1, 3")
    a("v_xor_b32 v24, v24, v20")
    a("v_lshlrev_b32 v24, 4, v24")
    a("s_lshl_b32 s11, %s, 13" % s(sHalf))
    a("v_lshl_add_u32 %s, v21, 7, v24" % v(vXb))
    a("v_add_u32 %s, s11, %s" % (v(vXb), v(vXb)))
    a("v_bfe_u32 v27, v0, 4, 1")
    a("v_lshlrev_b32 v34, 11, v27")
    a("v_lshrrev_b32 v27, 8, v0")
    a("v_lshl_add_u32 v34, v27, 10, v34")
    a("v_bfe_u32 v27, v0, 2, 1")
    a("v_lshl_add_u32 v34, v27, 9, v34")
    a("v_bfe_u32 v27, v0, 5, 3")
    a("v_lshl_add_u32 v34, v27, 6, v34")
    a("v_bfe_u32 v27, v0, 3, 1")
    a("v_lshl_add_u32 v34, v27, 5, v34")
    a("v_and_b32 v27, 3, v0")
    a("v_lshl_add_u32 v34, v27, 3, v34")
    a("v_add_u32 v34, %d, v34" % TB)
    a("v_mov_b32 v31, 0")
    a("s_mov_b32 %s, %d" % (s(sWr), WB))
    a("s_mov_b32 %s, 0" % s(sXs))
    a("s_lshr_b32 s11, %s, 2" % s(sXp))
    a("s_lshl_b32 s11, s11, 10")
    a("s_and_b32 s12, %s, 3" % s(sXp))
    a("s_lshl_b32 s12, s12, 7")
    a("s_add_u32 s11, s11, s12")
    a("s_add_u32 %s, s11, %d" % (s(sTr), TB))
    a("s_mov_b32 %s, 1" % s(sIt))


def gate_load():
    srd(rT, pGW, 896)
    a("v_lshlrev_b32 v35, 1, v0")
    a("buffer_load_ushort v30, v35, %s, 0 offen" % s(rT, 4))


def tile_base(vd):
    a("v_mov_b32 v27, s11")
    a("v_mov_b32 v28, s12")
    a("v_cndmask_b32 v27, v27, v28, %s" % s(sP, 2))
    a("v_add_u32 v27, v27, v19")
    a("v_xor_b32 v27, v27, v23")
    a("v_add_u32 %s, v27, v22" % v(vd))


def addr_update(ncol, lo, par):
    a("s_or_b32 %s, %s, %d" % (s(sX0), s(sXs), 64 * par))
    for c in range(ncol):
        a("v_add_u32 %s, %s, %s" % (v(vWa + c), s(sWr), v(vWb + c)))
    a("v_xor_b32 %s, %s, %s" % (v(vXa0), s(sX0), v(vXb)))
    if lo:
        a("v_add_u32 v27, %s, %s" % (s(sTr), v(vTb)))
        a("v_cndmask_b32 %s, %s, v27, %s" % (v(vWa), v(vWa), s(mT, 2)))
    a("v_xor_b32 %s, 32, %s" % (v(vXa1), v(vXa0)))


def reads(ncol, st, ks):
    xa = vXa0 if ks == 0 else vXa1
    r = []
    rx = lambda rt: "ds_read_b128 %s, %s offset:%d" % (v(XS[st] + 4 * rt, 4), v(xa), 4096 * rt)
    rw = lambda c, jj: "ds_read_b64_tr_b16 %s, %s offset:%d" % (v(WS_[st] + 4 * c + 2 * jj, 2), v(vWa + c), 2048 * ks + 512 * jj)
    r += [rx(0), rw(0, 0), rw(0, 1), rx(1)]
    for c in range(1, ncol):
        r += [rw(c, 0), rw(c, 1)]
    return r


def mm(st, vor, first=False):
    out = []
    for c, vo in enumerate(vor):
        for rt in range(2):
            d = ACC + 32 * c + 16 * rt
            W, X = WS_[st] + 4 * c, XS[st] + 4 * rt
            A, B = (X, W) if vo else (W, X)
            out.append("v_mfma_f32_32x32x16_bf16 %s, %s, %s, %s" % (v(d, 16), v(A, 4), v(B, 4), "0" if first else v(d, 16)))
    return out


def dma_lines(vo, r, so, m0src, m0add):
    return ["s_add_u32 m0, %s, %d" % (s(m0src), m0add), "s_nop 0",
            "buffer_load_dwordx4 %s, %s, %s offen lds" % (v(vo), s(r, 4), s(so))]


def adv(x, y):
    return ["s_add_u32 %s, %s, %s" % (s(x), s(x), s(y))]


def wrap(x, step, total, par):
    r = ["s_add_u32 %s, %s, %s" % (s(x), s(x), step)]
    if par:
        r += ["s_cmp_eq_u32 %s, %s" % (s(x), total), "s_cselect_b32 %s, 0, %s" % (s(x), s(x))]
    return r


def step_dmas(lo, par, static=None):
    pre = ["s_add_u32 s11, %s, %d" % (s(sXo), par * 57344)]
    if static is None:
        wm, wo, xm, xo = sWd, 0, sOC, par * 8192
    else:
        n = static + 4
        wm, wo, xm, xo = 15, WB + (n % 5) * WSLOT, 14, (n >> 1) * 16384 + par * 8192
    if lo:
        return [pre + dma_lines(vDC, rC, 11, xm, xo),
                dma_lines(vDC2, rC, 11, xm, xo + 1024) + (wrap(sXo, "128", "896", 1) if par else []),
                dma_lines(vDA, rA, sOA, wm, wo + 3 * 4096) + wrap(sOA, str(32 * 3584), str(WG_BYTES), par),
                dma_lines(vDB, rB, sOB, wm, wo + 4 * 4096) + wrap(sOB, str(32 * 2688), str(QKV_BYTES), par)]
    return [dma_lines(vDA, rA, sOA, wm, wo) + wrap(sOA, str(32 * 3584), str(WG_BYTES), par),
            dma_lines(vDB, rB, sOB, wm, wo + 4096),
            dma_lines(vDC, rC, sOB, wm, wo + 8192) + wrap(sOB, s(sSB), s(sSC), par)]


def state_advance(lo, par):
    a("s_add_u32 %s, %s, s15" % (s(sWd), s(sWr)))
    a("s_add_u32 %s, %s, %d" % (s(sWr), s(sWr), WSLOT))
    a("s_cmp_eq_u32 %s, %d" % (s(sWr), WB + 5 * WSLOT))
    a("s_cselect_b32 %s, %d, %s" % (s(sWr), WB, s(sWr)))
    if lo:
        a("s_add_u32 %s, %s, 64" % (s(sTr), s(sTr)))
    if par == 1:
        if lo:
            a("s_add_u32 %s, %s, s14" % (s(sOC), s(sXs)))
            a("s_cmp_eq_u32 %s, %d" % (s(sTr), TB + 512))
            a("s_cselect_b32 %s, %d, %s" % (s(sTr), TB + 1024, s(sTr)))
            a("s_cmp_eq_u32 %s, %d" % (s(sTr), TB + 1024 + 384))
            a("s_cselect_b32 %s, %d, %s" % (s(sTr), TB, s(sTr)))
        a("s_add_u32 %s, %s, 16384" % (s(sXs), s(sXs)))
        a("s_cmp_eq_u32 %s, 49152" % s(sXs))
        a("s_cselect_b32 %s, 0, %s" % (s(sXs), s(sXs)))


def interleave(ms, fill):
    for i, m in enumerate(ms):
        a(m)
        if i < len(fill):
            for x in fill[i]:
                a(x)
    for g in fill[len(ms):]:
        for x in g:
            a(x)


vNon, vFA, vFT = 240, 241, 242


def kstep(lo, vor, par, nvm, d1, d2, first=False):
    ncol = len(vor)
    a("s_waitcnt vmcnt(%d) lgkmcnt(0)" % nvm)
    a("s_barrier")
    if first:
        stamp(2)
    r = reads(ncol, 0, 0)
    interleave([] if first else mm(1, vor), [r[2 * i:2 * i + 2] for i in range(len(r) // 2)] + d1)
    a("s_waitcnt lgkmcnt(0)")
    r = reads(ncol, 1, 1)
    interleave(mm(0, vor, first), [r[2 * i:2 * i + 2] for i in range(len(r) // 2)] + d2)
    state_advance(lo, par)
    addr_update(ncol, lo, 1 - par)


def kloop(tag, lo, vor):
    top = "Lk_%s" % tag
    addr_update(len(vor), lo, 0)
    kstep(lo, vor, 0, 2 if lo else 3, step_dmas(lo, 0, -2), step_dmas(lo, 1, -1), first=True)
    kstep(lo, vor, 1, 8 if lo else 6, step_dmas(lo, 0, 0), step_dmas(lo, 1, 1))
    a(".p2align 5")
    a.label(top)
    if PROF:
        a("s_memtime %s" % s(sStamp, 2))
        a("s_add_u32 s12, %s, 17" % s(sIt))
        a("s_waitcnt lgkmcnt(0)")
        a("s_mov_b32 m0, s12")
        a("v_writelane_b32 %s, %s, m0" % (v(vProf), s(sStamp)))
    if lo:
        a("s_cmp_lg_u32 %s, s38" % s(sIt))
        a("s_cbranch_scc1 %s_nn" % top)
        a("buffer_load_dword %s, %s, %s, 0 offen sc1" % (v(vNon), v(vZero), s(rT, 4)))
        a.label(top + "_nn")
    a("s_cmp_eq_u32 %s, 5" % s(sIt))
    for x in (sOA, sOB, sXo) if lo else (sOA, sOB):
        a("s_cselect_b32 %s, 0x40000000, %s" % (s(x), s(x)))
    for par in range(2):
        d = step_dmas(lo, par)
        kstep(lo, vor, par, 10 if lo else 9, d[:2], d[2:])
    a("s_add_u32 %s, %s, 1" % (s(sIt), s(sIt)))
    a("s_cmp_lt_u32 %s, 7" % s(sIt))
    a("s_cbranch_scc1 %s" % top)
    a("s_waitcnt lgkmcnt(0)")
    for m in mm(1, vor):
        a(m)


a("s_add_u32 s13, s38, 128")
a("s_cmp_eq_u32 %s, 1" % s(sSpec))
a("s_cselect_b32 s13, s38, s13")
a("v_add3_u32 %s, v27, v29, s13" % v(vDA))
a("s_mul_i32 s13, %s, 112" % s(sCol))
a("v_add3_u32 %s, v28, v25, s13" % v(vDB))
a("s_lshl_b32 s11, %s, 7" % s(sM))
a("s_lshl_b32 s12, %s, 4" % s(sW))
a("s_add_u32 s11, s11, s12")
a("v_add_u32 v27, s11, v16")
a("v_mul_u32_u24 v27, 896, v27")
a("v_lshrrev_b32 v28, 1, v16")
a("v_xor_b32 v28, v28, v17")
a("v_lshl_add_u32 %s, v28, 4, v27" % v(vDC))
a("v_xor_b32 v28, 4, v28")
a("v_lshl_add_u32 %s, v28, 4, v27" % v(vDC2))
a("v_add_u32 %s, %d, %s" % (v(vDC2), 8 * 896, v(vDC2)))
a("s_lshl_b32 s14, %s, 11" % s(sW))
a("s_mul_i32 %s, %s, %d" % (s(sOB), s(sXp), 64 * 2688))
a("s_waitcnt lgkmcnt(0)")
stamp(15)
srd(rC, pX, X_BYTES)
srd(rA, pWU, WG_BYTES)
srd(rB, pQKV, QKV_BYTES)
gate_load()
stamp(0)
for st in (-4, -3):
    for g in step_dmas(True, st & 1, st):
        for x in g:
            a(x)
late_setup()
srd(rWS, pWS, WS_BYTES)
a("s_mul_i32 s11, %s, 56" % s(sCg))
a("s_add_u32 s11, s11, 16384")
a("s_add_u32 s12, s11, 32")
tile_base(vWb)
a("s_lshl_b32 s11, %s, 12" % s(sCg))
a("s_add_u32 s12, s11, %d" % (8192 + 32))
a("s_lshl_b32 s13, %s, 5" % s(sCg))
a("s_xor_b32 s38, s13, %d" % (12288 + 32))
a("s_cmp_eq_u32 %s, 1" % s(sSpec))
a("s_cselect_b32 s11, s13, s11")
a("s_cselect_b32 s12, s38, s12")
tile_base(vWb + 1)
a("s_cmp_eq_u32 %s, 0" % s(sW))
a("s_cselect_b32 s38, 4, 99")
a("v_mov_b32 v27, %d" % CNT)
a("ds_write_b32 v27, v31")
a("s_waitcnt vmcnt(8)")
a("ds_write_b64 v34, v[30:31]")
srd(rT, pDBG, 256)
stamp(1)
kloop("lo", True, (False, False))
a("s_branch Lepi_lo")

a.label("Lsetup_hi")
a("v_add3_u32 %s, v27, v25, s38" % v(vDA))
a("v_mov_b32 v32, %d" % E_OFF)
a("s_cmp_eq_u32 %s, 1" % s(sSpec))
a("s_cbranch_scc1 Lsetup_hi_s")
a("v_add_u32 %s, 128, %s" % (v(vDB), v(vDA)))
a("v_add3_u32 %s, v27, v29, s38" % v(vDC))
a("s_mov_b32 %s, %d" % (s(sSB), 32 * 3584))
a("s_mov_b32 %s, %d" % (s(sSC), WG_BYTES))
a("s_mov_b32 %s, %s" % (s(sOB), s(sOA)))
a("s_waitcnt lgkmcnt(0)")
srd(rB, pWG, WG_BYTES)
srd(rC, pWU, WG_BYTES)
a("s_branch Lsetup_hi_c")
a.label("Lsetup_hi_s")
a("s_mul_i32 s13, %s, 224" % s(sCol))
a("s_sub_u32 s13, s13, %d" % (12 * 224 - 1792))
a("v_add3_u32 %s, v28, v25, s13" % v(vDB))
a("v_add_u32 %s, 112, %s" % (v(vDC), v(vDB)))
a("s_mov_b32 %s, %d" % (s(sSB), 32 * 2688))
a("s_mov_b32 %s, %d" % (s(sSC), QKV_BYTES))
a("s_mul_i32 %s, %s, %d" % (s(sOB), s(sXp), 64 * 2688))
a("s_waitcnt lgkmcnt(0)")
srd(rB, pQKV, QKV_BYTES)
srd(rC, pQKV, QKV_BYTES)
a.label("Lsetup_hi_c")
stamp(15)
srd(rA, pWG, WG_BYTES)
srd(rWS, pWS, WS_BYTES)
a("s_lshl_b32 s14, s2, 3")
a("s_add_u32 s14, s14, %s" % s(sW))
a("s_cmp_lg_u32 s14, 7")
a("s_cbranch_scc1 Lno_nonce1")
a("buffer_load_dword v33, v32, %s, 0 offen sc1" % s(rWS, 4))
a.label("Lno_nonce1")
gate_load()
stamp(0)
for st in (-4, -3):
    for g in step_dmas(False, st & 1, st):
        for x in g:
            a(x)
late_setup()
a("s_waitcnt vmcnt(6)")
a("ds_write_b64 v34, v[30:31]")
a("s_cmp_lg_u32 s14, 7")
a("s_cbranch_scc1 Lno_nonce2")
srd(rT, pDBG, 256)
a("v_add_u32 v33, 1, v33")
a("v_or_b32 v33, 0x80000000, v33")
a("s_mov_b64 exec, 1")
a("buffer_store_dword v33, v32, %s, 0 offen sc1" % s(rWS, 4))
a("buffer_store_dword v33, %s, %s, 0 offen sc1" % (v(vZero), s(rT, 4)))
a("s_mov_b64 exec, -1")
a.label("Lno_nonce2")
a("s_cmp_eq_u32 %s, 1" % s(sSpec))
a("s_cbranch_scc1 Lk_hi_s_entry")
for c in range(3):
    a("s_lshl_b32 s12, %s, 12" % s(sCg))
    a("s_sub_u32 s11, s12, %d" % (8192 - 32 * (1 + c)))
    a("s_add_u32 s12, s12, %d" % ((32 * (1 + c)) ^ 32))
    tile_base(vWb + c)
stamp(1)
kloop("hi_t", False, (False, False, False))
a("s_branch Lepi_hi_t")
a.label("Lk_hi_s_entry")
for c in range(2):
    a("s_lshl_b32 s11, %s, 12" % s(sCg))
    a("s_sub_u32 s11, s11, %d" % (4096 - 56 * c))
    a("s_add_u32 s12, s11, 32")
    tile_base(vWb + c)
a("s_lshl_b32 s11, %s, 5" % s(sCg))
a("s_xor_b32 s12, s11, %d" % (12288 + 32))
tile_base(vWb + 2)
stamp(1)
kloop("hi_s", False, (True, True, False))
a("s_branch Lepi_hi_s")

NONL = CNT + 16


def gelu_tile(acc, vc, dst, extra=()):
    T = 56
    extra = list(extra)

    def ex():
        if extra:
            for x in extra.pop(0):
                a(x)
    for p in range(4):
        a("v_pk_mul_f32 %s, %s, %s" % (v(T + 2 * p, 2), v(acc + 2 * p, 2), v(acc + 2 * p, 2)))
    for p in range(4):
        a("v_pk_fma_f32 %s, %s, %s, %s op_sel:[0,0,1] op_sel_hi:[1,0,1]" % (v(T + 2 * p, 2), v(T + 2 * p, 2), s(kG, 2), s(kG, 2)))
    for p in range(4):
        a("v_pk_mul_f32 %s, %s, %s" % (v(T + 2 * p, 2), v(T + 2 * p, 2), v(acc + 2 * p, 2)))
    ex()
    for i in range(8):
        a("v_exp_f32 %s, %s" % (v(T + i), v(T + i)))
        if i == 5:
            ex()
    for p in range(4):
        a("v_pk_mul_f32 %s, %s, %s" % (v(acc + 8 + 2 * p, 2), v(acc + 8 + 2 * p, 2), v(acc + 2 * p, 2)))
    for p in range(4):
        a("v_pk_fma_f32 %s, %s, %s, %s op_sel_hi:[1,0,0]" % (v(T + 2 * p, 2), v(T + 2 * p, 2), v(vc, 2), v(vc, 2)))
    ex()
    for i in range(8):
        a("v_rcp_f32 %s, %s" % (v(T + i), v(T + i)))
        if i == 5:
            ex()
    a("s_nop 0")
    for p in range(4):
        a("v_pk_mul_f32 %s, %s, %s" % (v(acc + 8 + 2 * p, 2), v(acc + 8 + 2 * p, 2), v(T + 2 * p, 2)))
    for p in range(4):
        a("v_cvt_pk_bf16_f32 %s, %s, %s" % (v(dst + p), v(acc + 8 + 2 * p), v(acc + 9 + 2 * p)))
    while extra:
        ex()


def qk_tile(acc, vpad, vaddr, so, dst):
    for p in range(8):
        a("v_pk_mul_f32 %s, %s, %s op_sel_hi:[1,0]" % (v(acc + 2 * p, 2), v(acc + 2 * p, 2), s(kS, 2)))
    for p in range(8):
        a("v_cvt_pk_bf16_f32 %s, %s, %s" % (v(dst + p), v(acc + 2 * p), v(acc + 2 * p + 1)))
    a("v_cndmask_b32 %s, %s, %s, %s" % (v(dst + 6), v(dst + 6), v(vpad), s(mHI, 2)))
    a("v_cndmask_b32 %s, %s, %s, %s" % (v(dst + 7), v(dst + 7), v(vZero), s(mHI, 2)))
    a("buffer_store_dwordx4 %s, %s, %s, %s offen sc1" % (v(dst, 4), v(vaddr), s(rWS, 4), s(so)))
    a("buffer_store_dwordx4 %s, %s, %s, %s offen offset:1024 sc1" % (v(dst + 4, 4), v(vaddr), s(rWS, 4), s(so)))


def v_tile(acc, so, dst):
    for p in range(8):
        a("v_cvt_pk_bf16_f32 %s, %s, %s" % (v(dst + p), v(acc + 2 * p), v(acc + 2 * p + 1)))
    for p in range(8):
        a("v_cndmask_b32 %s, %s, v29, %s" % (v(dst + p), v(dst + p), s(sP, 2)))
    a("buffer_store_dwordx4 %s, %s, %s, %s offen offset:2048 sc1" % (v(dst, 4), v(vL16), s(rWS, 4), s(so)))
    a("buffer_store_dwordx4 %s, %s, %s, %s offen offset:3072 sc1" % (v(dst + 4, 4), v(vL16), s(rWS, 4), s(so)))


def tile_index(sd):
    a("s_lshl_b32 %s, %s, 1" % (s(sd), s(sM)))
    a("s_add_u32 %s, %s, %s" % (s(sd), s(sd), s(sHalf)))
    a("s_lshl_b32 %s, %s, 1" % (s(sd), s(sd)))


def fq_addr(sHp):
    a("s_lshl_b32 s11, %s, 5" % s(sHp))
    a("s_lshl_b32 s12, %s, 1" % s(sM))
    a("s_add_u32 s11, s11, s12")
    a("s_add_u32 s11, s11, %s" % s(sHalf))
    a("s_lshl_b32 s11, s11, 7")
    a("s_add_u32 s11, s11, 0x%x" % FQ_OFF)
    a("v_lshl_add_u32 %s, %s, 12, s11" % (v(vFA), v(vLane)))


def fh_addr(vd):
    a("s_lshl_b32 s11, %s, 1" % s(sM))
    a("s_add_u32 s11, s11, %s" % s(sHalf))
    a("s_lshl_b32 s11, s11, 4")
    a("s_add_u32 s11, s11, %s" % s(sCol))
    a("s_lshl_b32 s11, s11, 2")
    a("s_add_u32 s11, s11, %s" % s(sCg))
    a("s_lshl_b32 s11, s11, 7")
    a("s_add_u32 s11, s11, 0x%x" % FH_OFF)
    a("v_mov_b32 %s, s11" % v(vd))


def h_base(sd, sd2, sKs):
    tile_index(sd)
    a("s_mul_i32 %s, %s, 114688" % (s(sd), s(sd)))
    a("s_lshl_b32 s11, %s, 10" % s(sKs))
    a("s_add_u32 %s, %s, s11" % (s(sd), s(sd)))
    a("s_add_u32 %s, %s, 0x%x" % (s(sd), s(sd), H_OFF))
    a("s_add_u32 %s, %s, 114688" % (s(sd2), s(sd)))


def hstore(d, so, off=0):
    a("buffer_store_dwordx4 %s, %s, %s, %s offen offset:%d sc1" % (v(d, 4), v(vL16), s(rWS, 4), s(so), off))


def read_exchange(with_c):
    a("v_mov_b32 v24, %d" % NONL)
    a("ds_read_b32 %s, v24" % v(vNon))
    if with_c:
        a("ds_read_b32 v20, v27")
        a("ds_read_b32 v22, v27 offset:128")


def c_addr():
    a("s_lshl_b32 s11, %s, 8" % s(sHalf))
    a("s_add_u32 s11, s11, %d" % EX)
    a("v_and_b32 v27, 31, %s" % v(vLane))
    a("v_lshl_add_u32 v27, v27, 2, s11")


sH0, sH1 = sSA, sSC
a.label("Lepi_lo")
stamp(3)
a("s_lshl_b32 s38, %s, 1" % s(sCol))
a("s_add_u32 s38, s38, %s" % s(sCg))
tile_index(sX0)
a("s_cmp_lt_u32 s38, 16")
a("s_cselect_b32 %s, 0x%x, 1.0" % (s(kS), f2u(math.log2(math.e) / math.sqrt(28.0))))
a("s_cselect_b32 s13, 0xffff, 0")
a("s_cselect_b32 s14, 0, 12")
a("s_cselect_b32 s15, 11, 12")
a("s_cselect_b32 s11, 0x%x, %d" % (Q_OFF, KV_OFF))
a("s_and_b32 s12, s38, 15")
a("s_lshl_b32 s12, s12, 6")
a("s_add_u32 s12, s12, %s" % s(sX0))
a("s_lshl_b32 s12, s12, s15")
a("s_add_u32 %s, s11, s12" % s(sOA))
a("s_lshl_b32 s12, 1, s15")
a("s_add_u32 %s, %s, s12" % (s(sOB), s(sOA)))
a("v_lshrrev_b32 v27, 1, %s" % v(vLane))
a("v_xor_b32 v27, v27, %s" % v(vLane))
a("v_bfe_u32 v27, v27, 2, 1")
a("v_mul_u32_u24 v27, s14, v27")
a("v_xor_b32 v27, v27, %s" % v(vLane))
a("v_lshlrev_b32 v26, 4, v27")
a("v_mov_b32 v16, %s" % v(ACC + 12))
a("v_mov_b32 v17, %s" % v(ACC + 16 + 12))
a("s_nop 1")
a("v_permlane32_swap_b32 v16, v17")
a("s_nop 1")
a("v_cvt_pk_bf16_f32 v17, v17, v17")
a("v_and_b32 v17, 0xffff0000, v17")
a("v_mul_f32 v17, 0x%x, v17" % f2u(-math.log2(math.e)))
a("v_exp_f32 v17, v17")
a("s_nop 0")
a("v_add_f32 v17, 1.0, v17")
a("v_rcp_f32 v17, v17")
a("s_nop 0")
a("v_cvt_pk_bf16_f32 v18, v17, v17")
a("v_and_b32 v17, 0xffff0000, v18")
a("v_sub_f32 v17, 1.0, v17")
a("v_cvt_pk_bf16_f32 v17, v17, v17")
a("v_and_b32 v17, 0xffff0000, v17")
a("v_rcp_f32 v20, v17")
a("v_and_b32 v18, s13, v18")
a("v_min_f32 v20, 0x7f000000, v20")
a("s_lshl_b32 s11, %s, 8" % s(sHalf))
a("s_add_u32 s11, s11, %d" % EX)
a("v_lshl_add_u32 v27, %s, 2, s11" % v(vLane))
a("ds_write_b32 v27, v20")
a("v_mov_b32 v19, v18")
a("v_mov_b32 v22, v20")
a("s_nop 1")
a("v_permlane32_swap_b32 v18, v19")
a("v_permlane32_swap_b32 v20, v22")
qk_tile(ACC, 18, 26, sOA, 32)
qk_tile(ACC + 16, 19, 26, sOB, 40)
a("s_waitcnt vmcnt(4)")
a("s_cmp_lg_u32 %s, 0" % s(sW))
a("s_cbranch_scc1 Lepi_lo_nn")
get_nonce(vNon, vFT)
a("v_mov_b32 v24, %d" % NONL)
a("ds_write_b32 v24, %s" % v(vNon))
a.label("Lepi_lo_nn")
a("s_waitcnt lgkmcnt(0)")
a("s_barrier")
read_exchange(False)
gelu_tile(ACC + 32, 20, 32)
gelu_tile(ACC + 48, 22, 36)
a("s_lshl_b32 s13, %s, 1" % s(sCol))
a("s_add_u32 s13, s13, %s" % s(sCg))
a("s_lshl_b32 s13, s13, 2")
a("s_lshl_b32 s14, %s, 2" % s(sCol))
a("s_add_u32 s14, s14, %s" % s(sCg))
a("s_add_u32 s14, s14, 48")
a("s_cmp_eq_u32 %s, 1" % s(sSpec))
a("s_cselect_b32 s13, s14, s13")
h_base(sH0, sH1, 13)
hstore(32, sH0)
hstore(36, sH1)
fq_addr(38)
fh_addr(243)
a("s_waitcnt lgkmcnt(0)")
a("v_readfirstlane_b32 %s, %s" % (s(sNON), v(vNon)))
stamp(12)
a("s_nop 0")
a("s_waitcnt vmcnt(2)")
flag_store(vFA, vFT)
stamp(4)
a("s_waitcnt vmcnt(1)")
flag_store(243, vFT)
stamp(13)
a("s_branch Lattn")

vH0, vDd, vDr, vH1 = 225, 226, 227, 229


def d_prefetch_setup():
    srd(rWD, pWD, 1792 * 896)
    srd(rWO, pWO, 448 * 896)
    a("v_lshrrev_b32 v16, 3, %s" % v(vLane))
    a("v_and_b32 v17, 7, %s" % v(vLane))
    a("v_bfe_u32 v18, v16, 1, 1")
    a("v_lshlrev_b32 v18, 2, v18")
    a("v_xor_b32 v18, v18, v17")
    a("v_lshlrev_b32 v18, 4, v18")
    a("v_mul_u32_u24 v16, 896, v16")
    a("s_lshl_b32 s11, %s, 7" % s(sT))
    a("v_add3_u32 %s, v16, v18, s11" % v(vDd))
    a("s_and_b32 s12, %s, 3" % s(sW))
    a("s_mul_i32 %s, s12, %d" % (s(sXs), 448 * 896))
    a("s_add_u32 %s, %s, %d" % (s(sXo), s(sXs), 448 * 896))
    a("s_lshl_b32 %s, %s, 2" % (s(sTr), s(sT)))
    a("s_and_b32 s11, %s, 3" % s(sR))
    a("s_add_u32 %s, %s, s11" % (s(sTr), s(sTr)))
    if not ROT & 4:
        a("s_mov_b32 %s, 0" % s(sTr))
    a("s_mul_i32 s11, %s, %d" % (s(sTr), 16 * 896))
    a("s_add_u32 %s, %s, s11" % (s(sOC), s(sXs)))
    a("s_cmp_eq_u32 %s, 0" % s(sFin))
    a("s_cselect_b32 %s, 0x40000000, %s" % (s(sOC), s(sOC)))
    a("s_mul_i32 %s, s12, %d" % (s(sWd), DREG))
    a("s_add_u32 %s, %s, %d" % (s(sWd), s(sWd), DB))


def wd_adv(e):
    r = ["s_add_u32 %s, %s, 7168" % (s(sOC), s(sOC))]
    if e:
        r += ["s_cmp_eq_u32 %s, %s" % (s(sOC), s(sXo)), "s_cselect_b32 %s, %s, %s" % (s(sOC), s(sXs), s(sOC))]
    return r


def d_prefetch_groups():
    return [dma_lines(vDd, rWD, sOC, sWd, 1024 * n) + wd_adv(n & 1) for n in range(26)]


a.label("Lepi_hi_s")
stamp(3)
a("s_lshl_b32 s38, %s, 1" % s(sCol))
a("s_add_u32 s38, s38, %s" % s(sCg))
a("s_lshl_b32 s38, s38, 1")
a("s_sub_u32 s38, s38, %d" % (48 + 4))
tile_index(sX0)
a("s_mov_b32 %s, 0xf0000000" % s(sP))
a("s_mov_b32 %s, 0xf0000000" % s(sP + 1))
a("v_and_b32 v28, 31, %s" % v(vLane))
a("v_cmp_eq_u32 vcc, 28, v28")
a("v_mov_b32 v27, 0x3f803f80")
a("s_lshl_b32 s12, s38, 6")
a("v_cndmask_b32 v29, %s, v27, vcc" % v(vZero))
a("s_add_u32 s12, s12, %s" % s(sX0))
a("s_lshl_b32 %s, s12, 12" % s(sOA))
a("s_add_u32 %s, %s, 4096" % (s(sOB), s(sOA)))
for c in range(2):
    v_tile(ACC + 32 * c, sOA, 32)
    v_tile(ACC + 32 * c + 16, sOB, 40)
    if c == 0:
        a("s_add_u32 %s, %s, 0x40000" % (s(sOA), s(sOA)))
        a("s_add_u32 %s, %s, 0x40000" % (s(sOB), s(sOB)))
c_addr()
a("s_waitcnt vmcnt(8)")
a("s_barrier")
read_exchange(True)
a("s_add_u32 s38, s38, 32")
fq_addr(38)
fh_addr(243)
a("s_lshl_b32 s13, %s, 2" % s(sCol))
a("s_add_u32 s13, s13, %s" % s(sCg))
a("s_add_u32 s13, s13, 48")
h_base(sH0, sH1, 13)
d_prefetch_setup()
a("s_waitcnt lgkmcnt(0)")
a("v_readfirstlane_b32 %s, %s" % (s(sNON), v(vNon)))
gelu_tile(ACC + 64, 20, 32)
gelu_tile(ACC + 80, 22, 36)
hstore(32, sH0)
hstore(36, sH1)
stamp(12)
a("s_waitcnt vmcnt(2)")
flag_store(vFA, vFT, 2)
for g in d_prefetch_groups():
    for x in g:
        a(x)
a("s_waitcnt vmcnt(27)")
flag_store(243, vFT)
stamp(4)
a("s_branch Ldown")

a.label("Lepi_hi_t")
stamp(3)
c_addr()
a("s_lshl_b32 s13, %s, 1" % s(sCol))
a("s_add_u32 s13, s13, %s" % s(sCg))
a("s_lshl_b32 s13, s13, 2")
a("s_sub_u32 s13, s13, 7")
h_base(sH0, sH1, 13)
fh_addr(243)
d_prefetch_setup()
a("s_waitcnt vmcnt(0)")
a("s_barrier")
read_exchange(True)
a("s_waitcnt lgkmcnt(0)")
a("v_readfirstlane_b32 %s, %s" % (s(sNON), v(vNon)))
pf = d_prefetch_groups()
for c in range(3):
    for rt in range(2):
        n = 2 * c + rt
        gelu_tile(ACC + 32 * c + 16 * rt, 20 + 2 * rt, 32 + 4 * n, pf[(26 * n) // 6:(26 * (n + 1)) // 6] if PFMODE == 0 else ())
for c in range(3):
    for rt in range(2):
        hstore(32 + 4 * (2 * c + rt), (sH0, sH1)[rt], 1024 * c)
stamp(12)
if PFMODE == 1:
    for g in pf:
        for x in g:
            a(x)
    a("s_waitcnt vmcnt(26)")
else:
    a("s_waitcnt vmcnt(0)")
flag_store(243, vFT)
stamp(4)
a("s_branch Ldown")

Q, O, S_, KV, vIdx = 0, 32, 96, 160, 224
sKV, sQb = sOA, sOB


vKV = 231


def kvload(b, part, va=vKV):
    for i in range(2):
        a("buffer_load_dwordx4 %s, %s, %s, %s offen offset:%d sc1" % (
            v(KV + 16 * b + 8 * part + 4 * i, 4), v(va), s(rWS, 4), s(sKV), 2048 * part + 1024 * i))


def qk(n, half):
    kt, u = n >> 2, n & 3
    K = KV + 16 * (kt & 3) + 4 * half
    d = S_ + 16 * u
    return "v_mfma_f32_32x32x16_bf16 %s, %s, %s, %s" % (v(d, 16), v(K, 4), v(Q + 8 * u + 4 * half, 4), v(d, 16) if half else "0")


def pv(n, half):
    kt, u = n >> 2, n & 3
    V = KV + 16 * (kt & 3) + 8 + 4 * half
    return "v_smfmac_f32_32x32x32_bf16 %s, %s, %s, %s" % (v(O + 16 * u, 16), v(V, 4), v(S_ + 16 * u + 8 * half, 8), v(vIdx))


def slot(n, last=False, extra=None):
    u = n & 3
    extra = extra or {}
    e = ["v_exp_f32 %s, %s" % (v(S_ + 16 * u + i), v(S_ + 16 * u + i)) for i in range(16)]
    if not last:
        seq = [qk(n + 1, 0)] + e[0:3] + [qk(n + 1, 1)] + e[3:6]
    else:
        seq = e[0:6]
    seq += [pv(n - 1, 0)] + e[6:9] + [pv(n - 1, 1)] + e[9:16]
    for i, x in enumerate(seq):
        for y in extra.get(i, []):
            a(y)
        a(x)


a.label("Lattn")
a("s_setprio 2")
a("s_lshl_b32 s11, %s, 3" % s(sW))
a("v_and_b32 v16, 7, %s" % v(vLane))
a("v_add_u32 v16, s11, v16")
a("v_bfe_u32 v17, %s, 3, 1" % v(vLane))
a("v_lshlrev_b32 v17, 4, v17")
a("s_add_u32 s12, %s, 16" % s(sH))
a("v_add_u32 v17, s12, v17")
a("v_lshl_add_u32 v16, v17, 5, v16")
a("s_lshl_b32 s11, %s, 5" % s(sH))
a("s_lshl_b32 s12, %s, 1" % s(sMA))
a("s_add_u32 s11, s11, s12")
a("v_and_b32 v17, 1, %s" % v(vLane))
a("v_add_u32 v17, s11, v17")
a("v_cmp_gt_u32 vcc, 16, %s" % v(vLane))
a("s_mov_b32 s11, 0x%x" % FQ_OFF)
a("s_nop 0")
a("v_cndmask_b32 v16, v17, v16, vcc")
a("v_lshl_add_u32 %s, v16, 7, s11" % v(vFA))
for i in range(64):
    a("v_mov_b32 %s, 0" % v(O + i))
for i in range(16):
    a("v_mov_b32 %s, 0" % v(S_ + 48 + i))
for i in range(8):
    a("v_mov_b32 %s, 0" % v(KV + 48 + 8 + i))
a("v_mov_b32 %s, 0xdddd" % v(vIdx))
a("s_lshl_b32 s11, %s, 6" % s(sH))
a("s_lshl_b32 s12, %s, 4" % s(sW))
a("s_add_u32 s12, s12, s11")
a("s_lshl_b32 s12, s12, 12")
a("v_add_u32 %s, s12, %s" % (v(vKV), v(vL16)))
a("s_lshl_b32 %s, %s, 12" % (s(sKV), s(sMA)))
if not ROT & 2:
    a("s_mov_b32 %s, 0" % s(sKV))
a("s_lshl_b32 s12, %s, 2" % s(sMA))
a("s_add_u32 s11, s11, s12")
a("s_lshl_b32 s11, s11, 11")
a("s_add_u32 %s, s11, 0x%x" % (s(sQb), Q_OFF))
poll(vFA, vFT)
stamp(5)
kvload(0, 0)
for u in range(4):
    a("s_add_u32 s11, %s, %d" % (s(sW), u + 1))
    a("s_and_b32 s11, s11, 3")
    a("s_lshl_b32 s11, s11, 11")
    a("s_add_u32 s11, s11, %s" % s(sQb))
    for i in range(2):
        a("buffer_load_dwordx4 %s, %s, %s, s11 offen offset:%d sc1" % (v(Q + 8 * u + 4 * i, 4), v(vL16), s(rWS, 4), 1024 * i))
kvload(0, 1)
for b in (1, 2):
    a("s_add_u32 %s, %s, 4096" % (s(sKV), s(sKV)))
    a("s_and_b32 %s, %s, 0xffff" % (s(sKV), s(sKV)))
    kvload(b, 0)
    kvload(b, 1)
for u in range(3):
    a("s_add_u32 s11, %s, %d" % (s(sW), u + 1))
    a("s_and_b32 s11, s11, 3")
    a("s_mul_i32 s11, s11, 12288")
    a("s_add_u32 s11, s11, %d" % (PB + 4096 * u))
    a("v_add_u32 %s, s11, %s" % (v(225 + u), v(vL16)))
a("s_mov_b32 %s, 0" % s(sIt))
a("s_waitcnt vmcnt(8)")
stamp(6)
a(qk(0, 0))
a(qk(0, 1))
a("s_nop 10")
a(".p2align 5")
a.label("Lattn_loop")


def kv_extra(kt, loads=True, wait=8):
    b = (kt + 3) & 3
    ex = [{}, {}, {}, {}]
    if loads:
        ld = lambda part, i: "buffer_load_dwordx4 %s, %s, %s, %s offen offset:%d sc1" % (
            v(KV + 16 * b + 8 * part + 4 * i, 4), v(vKV), s(rWS, 4), s(sKV), 2048 * part + 1024 * i)
        ex[0] = {15: ["s_add_u32 %s, %s, 4096" % (s(sKV), s(sKV))], 17: ["s_and_b32 %s, %s, 0xffff" % (s(sKV), s(sKV))]}
        ex[1] = {15: [ld(0, 0)], 17: [ld(0, 1)]}
        ex[2] = {15: [ld(1, 0)], 17: [ld(1, 1)]}
    if wait is not None:
        ex[3] = {0: ["s_waitcnt vmcnt(%d)" % wait]}
    return ex


for kt in range(4):
    ex = kv_extra(kt)
    for u in range(4):
        slot(4 * kt + u, extra=ex[u])
a("s_add_u32 %s, %s, 1" % (s(sIt), s(sIt)))
a("s_cmp_lt_u32 %s, 3" % s(sIt))
a("s_cbranch_scc1 Lattn_loop")
for kt in range(4):
    ex = kv_extra(kt, loads=(kt == 0), wait=(8, 4, 0, None)[kt])
    for u in range(4):
        n = 4 * kt + u
        e = dict(ex[u])
        if kt == 3 and u >= 2:
            for qd in range(4):
                e.setdefault(5 + 2 * qd, []).append(
                    "ds_write_b128 %s, %s offset:%d" % (v(225 + u - 2), v(O + 16 * (u - 2) + 4 * qd, 4), 1024 * qd))
        slot(n, last=(n == 15), extra=e)
a(pv(15, 0))
a("v_mov_b32 v225, %d" % CNT)
a("v_mov_b32 v226, 1")
a("s_mul_i32 s11, %s, 12288" % s(sW))
a(pv(15, 1))
for qd in range(4):
    a("ds_write_b128 %s, %s offset:%d" % (v(227), v(O + 32 + 4 * qd, 4), 1024 * qd))
stamp(7)
a("v_add_u32 v227, s11, %s" % v(vL16))
a("s_waitcnt lgkmcnt(0)")
a("ds_add_u32 v225, v226")
a("s_mov_b32 %s, %d" % (s(sSpin), SPIN_MAX))
a.label("Lasync")
a("ds_read_b32 v226, v225")
a("s_waitcnt lgkmcnt(0)")
a("v_readfirstlane_b32 s11, v226")
a("s_sub_u32 %s, %s, 1" % (s(sSpin), s(sSpin)))
a("s_cbranch_scc1 Lasync_done")
a("s_cmp_lt_u32 s11, 256")
a("s_cbranch_scc1 Lasync")
a.label("Lasync_done")
OW = O + 48
for u in range(3):
    for qd in range(4):
        a("ds_read_b128 %s, v227 offset:%d" % (v(S_ + 16 * u + 4 * qd, 4), PB + 4096 * u + 1024 * qd))
a("s_lshl_b32 s11, %s, 2" % s(sMA))
a("s_add_u32 s11, s11, %s" % s(sW))
a("s_lshl_b32 s12, s11, 4")
a("s_add_u32 s12, s12, %s" % s(sH))
a("s_lshl_b32 s13, s12, 11")
a("s_add_u32 %s, s13, 0x%x" % (s(sOC), O_OFF))
a("s_lshl_b32 s12, s12, 7")
a("s_add_u32 s12, s12, 0x%x" % FO_OFF)
a("v_mov_b32 %s, s12" % v(vFA))
for u in range(3):
    a("s_waitcnt lgkmcnt(%d)" % (8 - 4 * u))
    for p in range(8):
        a("v_pk_add_f32 %s, %s, %s" % (v(OW + 2 * p, 2), v(OW + 2 * p, 2), v(S_ + 16 * u + 2 * p, 2)))
a("v_pk_mul_f32 v[228:229], %s, 0 op_sel_hi:[1,0]" % v(OW, 2))
a("v_pk_mul_f32 v[232:233], %s, 0 op_sel_hi:[1,0]" % v(OW + 2, 2))
for p in range(2, 8):
    t = 228 if p % 2 == 0 else 232
    a("v_pk_fma_f32 %s, %s, 0, %s op_sel_hi:[1,0,1]" % (v(t, 2), v(OW + 2 * p, 2), v(t, 2)))
a("v_subrev_u32 v226, 0x%x, %s" % (f2u(2.0 ** -40), v(OW + 12)))
a("v_pk_add_f32 v[228:229], v[228:229], v[232:233]")
a("v_cmp_lt_u32 vcc, 0x%x, v226" % (f2u(2.0 ** 40) - f2u(2.0 ** -40)))
a("v_cmp_u_f32 %s, v228, v229" % s(sP, 2))
a("s_and_b64 vcc, vcc, %s" % s(mHI, 2))
a("s_or_b64 vcc, vcc, %s" % s(sP, 2))
if FORCE_FB:
    a("s_mov_b64 vcc, -1")
a("s_cbranch_vccnz Lfallback")
a.label("Lnormalize")
a("v_rcp_f32 v225, %s" % v(OW + 12))
a("v_lshlrev_b32 v226, 16, %s" % v(Q + 24 + 6))
a("v_mul_f32 v226, v225, v226")
a("v_mov_b32 v228, v226")
a("s_nop 1")
a("v_permlane32_swap_b32 v226, v228")
a("s_nop 1")
for p in range(8):
    a("v_pk_mul_f32 %s, %s, v[228:229] op_sel_hi:[1,0]" % (v(OW + 2 * p, 2), v(OW + 2 * p, 2)))
for p in range(8):
    a("v_cvt_pk_bf16_f32 %s, %s, %s" % (v(S_ + p), v(OW + 2 * p), v(OW + 2 * p + 1)))
a("v_cndmask_b32 %s, %s, %s, %s" % (v(S_ + 6), v(S_ + 6), v(vZero), s(mHI, 2)))
a("v_cndmask_b32 %s, %s, %s, %s" % (v(S_ + 7), v(S_ + 7), v(vZero), s(mHI, 2)))
a("buffer_store_dwordx4 %s, %s, %s, %s offen sc1" % (v(S_, 4), v(vL16), s(rWS, 4), s(sOC)))
a("buffer_store_dwordx4 %s, %s, %s, %s offen offset:1024 sc1" % (v(S_ + 4, 4), v(vL16), s(rWS, 4), s(sOC)))
for i in range(32):
    a("v_mov_b32 %s, 0" % v(i))
a("s_waitcnt vmcnt(0)")
flag_store(vFA, vFT)
stamp(8)
a("s_cmp_eq_u32 %s, 0" % s(sFin))
a("s_cbranch_scc1 Lexit")
a("s_mov_b32 %s, 1" % s(sHalf))
a("s_branch Ltail")

a.label("Lfallback")
a("s_lshl_b32 %s, %s, 18" % (s(sKV), s(sH)))
a("v_mov_b32 v225, 0xff800000")
a("s_mov_b32 %s, 0" % s(sIt))
a.label("Lfb1")
kvload(0, 0, vL16)
a("s_waitcnt vmcnt(0)")
a(qk(3, 0))
a(qk(3, 1))
a("s_nop 11")
for i in range(0, 16, 2):
    a("v_max3_f32 v225, %s, %s, v225" % (v(S_ + 48 + i), v(S_ + 49 + i)))
a("s_add_u32 %s, %s, 4096" % (s(sKV), s(sKV)))
a("s_add_u32 %s, %s, 1" % (s(sIt), s(sIt)))
a("s_cmp_lt_u32 %s, 64" % s(sIt))
a("s_cbranch_scc1 Lfb1")
a("v_mov_b32 v226, v225")
a("s_nop 1")
a("v_permlane32_swap_b32 v225, v226")
a("s_nop 1")
a("v_max_f32 v225, v225, v226")
for i in range(16):
    a("v_mov_b32 %s, 0" % v(OW + i))
a("s_lshl_b32 %s, %s, 18" % (s(sKV), s(sH)))
a("s_mov_b32 %s, 0" % s(sIt))
a.label("Lfb2")
kvload(0, 0, vL16)
kvload(0, 1, vL16)
a("s_waitcnt vmcnt(0)")
a(qk(3, 0))
a(qk(3, 1))
a("s_nop 11")
for i in range(16):
    a("v_sub_f32 %s, %s, v225" % (v(S_ + 48 + i), v(S_ + 48 + i)))
for i in range(16):
    a("v_exp_f32 %s, %s" % (v(S_ + 48 + i), v(S_ + 48 + i)))
a("s_nop 1")
a(pv(3, 0))
a(pv(3, 1))
a("s_add_u32 %s, %s, 4096" % (s(sKV), s(sKV)))
a("s_add_u32 %s, %s, 1" % (s(sIt), s(sIt)))
a("s_cmp_lt_u32 %s, 64" % s(sIt))
a("s_cbranch_scc1 Lfb2")
a("s_nop 11")
a("s_branch Lnormalize")

DA, HB, WF = 0, 64, 128


def dr_setup():
    a("s_and_b32 s12, %s, 3" % s(sW))
    a("s_mul_i32 s13, s12, %d" % DREG)
    a("s_add_u32 s13, s13, %d" % DB)
    a("v_bfe_u32 v240, %s, 2, 2" % v(vLane))
    a("v_lshrrev_b32 v243, 5, %s" % v(vLane))
    a("v_lshl_add_u32 v243, v243, 2, v240")
    a("v_lshl_add_u32 v243, v243, 7, s13")
    a("v_lshrrev_b32 v240, 1, v240")
    a("v_lshlrev_b32 v240, 6, v240")
    a("v_bfe_u32 v244, %s, 4, 1" % v(vLane))
    a("v_add_u32 v244, s12, v244")
    a("v_and_b32 v245, 3, %s" % v(vLane))
    a("v_lshlrev_b32 v245, 3, v245")
    for ct in range(2):
        a("v_add_u32 v246, %d, v244" % (2 * ct))
        a("v_and_b32 v246, 3, v246")
        a("v_lshl_add_u32 v246, v246, 5, v245")
        a("v_xor_b32 v246, v246, v240")
        a("v_add_u32 %s, v246, v243" % v(vDr + ct))


a.label("Ldown")
a("s_cmp_eq_u32 %s, 0" % s(sFin))
a("s_cbranch_scc1 Lexit")
dr_setup()
a("s_mul_i32 s11, s12, 7")
a("s_lshr_b32 s11, s11, 1")
a("s_lshl_b32 s13, %s, 4" % s(sR))
a("s_add_u32 s11, s11, s13")
a("s_lshl_b32 s11, s11, 9")
a("s_add_u32 s11, s11, 0x%x" % FH_OFF)
a("s_cmp_eq_u32 s12, 3")
a("s_cselect_b32 s13, 23, 15")
a("v_min_u32 v240, s13, %s" % v(vLane))
a("v_lshl_add_u32 %s, v240, 7, s11" % v(vFA))
a("s_mul_i32 s11, %s, 229376" % s(sR))
a("s_mul_i32 s13, s12, 28672")
a("s_add_u32 s11, s11, s13")
a("s_add_u32 s11, s11, 0x%x" % H_OFF)
a("v_add_u32 %s, s11, %s" % (v(vH0), v(vL16)))
a("s_lshl_b32 %s, %s, 10" % (s(sOA), s(sTr)))
a("s_mul_i32 %s, s12, %d" % (s(sOB), 112 * 896))
a("v_add_u32 %s, 114688, %s" % (v(vH1), v(vH0)))
for i in range(64):
    a("v_mov_b32 %s, 0" % v(DA + i))
poll(vFA, vFT)
stamp(5)
vmq = []


def hload(i):
    for rt in range(2):
        a("buffer_load_dwordx4 %s, %s, %s, %s offen sc1" % (
            v(HB + 8 * (i & 7) + 4 * rt, 4), v((vH0, vH1)[rt]), s(rWS, 4), s(sOA)))
        vmq.append(("h", i))
    a("s_add_u32 %s, %s, 1024" % (s(sOA), s(sOA)))
    a("s_cmp_eq_u32 %s, 28672" % s(sOA))
    a("s_cselect_b32 %s, 0, %s" % (s(sOA), s(sOA)))


def vm_wait(tags):
    idx = [k for k, t in enumerate(vmq) if t in tags]
    return None if not idx else len(vmq) - 1 - max(idx)


def wreads(dst, off):
    for ct in range(2):
        for jj in range(2):
            a("ds_read_b64_tr_b16 %s, %s offset:%d" % (v(dst + 4 * ct + 2 * jj, 2), v(vDr + ct), off + 1024 * jj))


for i in range(8):
    hload(i)
wreads(WF, 0)
for i in range(28):
    n = vm_wait({("h", i), ("w", i + 1)})
    a("s_waitcnt vmcnt(%d) lgkmcnt(0)" % n)
    if i + 1 < 28:
        wreads(WF + 8 * ((i + 1) & 1), ((i + 1) % 13) * 2048)
    for rt in range(2):
        for ct in range(2):
            mfma(DA + 32 * rt + 16 * ct, WF + 8 * (i & 1) + 4 * ct, HB + 8 * (i & 7) + 4 * rt)
    if i <= 14:
        for e in range(2):
            for x in dma_lines(vDd, rWD, sOC, sWd, (i % 13) * 2048 + 1024 * e):
                a(x)
            for x in wd_adv(e):
                a(x)
            vmq.append(("w", i + 13))
    elif i <= 22:
        for e in range(2):
            for x in dma_lines(vDd, rWO, sOB, sWd, (i % 13) * 2048 + 1024 * e):
                a(x)
            a("s_add_u32 %s, %s, 7168" % (s(sOB), s(sOB)))
            vmq.append(("o", i))
    if i + 8 < 28:
        hload(i + 8)
stamp(7)
a("v_add_u32 v240, %s, %s" % (s(sWd), v(vL16)))
a("s_nop 10")
for o in range(4):
    for q in range(2):
        a("ds_write_b128 v240, %s offset:%d" % (v(DA + 32 + 8 * o + 4 * q, 4), (o >> 1) * 20480 + (o & 1) * 2048 + 1024 * q))
a("s_mov_b32 %s, 0" % s(sHalf))
stamp(8)
a("s_branch Ltail2")

OF, WOF, RR = 64, 128, 96
a.label("Ltail")
dr_setup()
a.label("Ltail2")
a("s_and_b32 s12, %s, 3" % s(sW))
a("s_lshl_b32 s11, %s, 1" % s(sR))
a("s_add_u32 s14, s11, %s" % s(sHalf))
a("s_lshl_b32 s11, s14, 2")
a("s_add_u32 s11, s11, s12")
a("s_lshl_b32 s13, s11, 13")
a("s_add_u32 %s, s13, 0x%x" % (s(sOA), O_OFF))
a("s_add_u32 %s, %s, 4096" % (s(sOB), s(sOA)))
a("s_lshl_b32 s11, s11, 9")
a("s_add_u32 s11, s11, 0x%x" % FO_OFF)
a("v_and_b32 v240, 3, %s" % v(vLane))
a("v_lshl_add_u32 %s, v240, 7, s11" % v(vFA))
srd(rOUT, pOUT, 2048 * 896)
a("v_and_b32 v240, 31, %s" % v(vLane))
a("s_lshl_b32 s14, s14, 5")
a("v_add_u32 v240, s14, v240")
a("v_mul_u32_u24 v240, 896, v240")
a("v_lshrrev_b32 v243, 5, %s" % v(vLane))
a("v_lshlrev_b32 v243, 4, v243")
a("s_lshl_b32 s13, %s, 7" % s(sT))
a("s_lshl_b32 s14, s12, 5")
a("s_add_u32 s13, s13, s14")
a("v_add3_u32 v247, v240, v243, s13")
a("s_mul_i32 s15, %s, 24576" % s(sHalf))
for o in range(1, 4):
    a("s_add_u32 s11, s12, %d" % o)
    a("s_and_b32 s11, s11, 3")
    a("s_mul_i32 s11, s11, 6144")
    a("s_add_u32 s11, s11, s15")
    a("s_add_u32 s11, s11, %d" % (PB + 2048 * (o - 1)))
    a("v_add_u32 %s, s11, %s" % (v(232 + o), v(vL16)))
a("s_mul_i32 s11, s12, 6144")
a("s_add_u32 s11, s11, s15")
a("v_add_u32 v232, s11, %s" % v(vL16))
for k in range(4):
    a("s_sub_u32 s11, s12, %d" % k)
    a("s_and_b32 s11, s11, 3")
    a("s_lshr_b32 s13, s11, 1")
    a("s_mul_i32 s13, s13, 20480")
    a("s_and_b32 s11, s11, 1")
    a("s_lshl_b32 s11, s11, 11")
    a("s_add_u32 s11, s11, s13")
    a("s_add_u32 s11, s11, %d" % (DB + k * DREG))
    a("v_add_u32 %s, s11, %s" % (v(236 + k), v(vL16)))
poll(vFA, vFT)
stamp(9)
for k in range(8):
    a("buffer_load_dwordx4 %s, %s, %s, %s offen offset:%d sc1" % (v(OF + 4 * k, 4), v(vL16), s(rWS, 4), s((sOA, sOB)[k >> 2]), 1024 * (k & 3)))
a("s_waitcnt lgkmcnt(0)")
a("s_barrier")
for k in range(8):
    wreads(WOF + 8 * k, 4096 + (28 * (k >> 1) + 16 * (k & 1)) * 128)
    if k in (2, 4, 6):
        a("s_waitcnt lgkmcnt(4)")
for k in range(8):
    a("s_waitcnt vmcnt(%d) lgkmcnt(0)" % (7 - k))
    for ct in range(2):
        mfma(16 * ct, WOF + 8 * k + 4 * ct, OF + 4 * k)
stamp(10)
a("s_nop 11")
for o in range(1, 4):
    for q in range(2):
        a("ds_write_b128 %s, %s offset:%d" % (v(232 + o), v(8 * o + 4 * q, 4), 1024 * q))
a("s_waitcnt lgkmcnt(0)")
a("s_barrier")
for u in range(3):
    for q in range(2):
        a("ds_read_b128 %s, v232 offset:%d" % (v(RR + 8 * u + 4 * q, 4), PB + 2048 * u + 1024 * q))
a("s_cmp_eq_u32 %s, 0" % s(sHalf))
a("s_cbranch_scc1 Lfin_sum")
for k in range(4):
    for q in range(2):
        a("ds_read_b128 %s, %s offset:%d" % (v(WOF + 8 * k + 4 * q, 4), v(236 + k), 1024 * q))
a("s_waitcnt lgkmcnt(0)")
for k in range(4):
    for p in range(4):
        a("v_pk_add_f32 %s, %s, %s" % (v(2 * p, 2), v(2 * p, 2), v(WOF + 8 * k + 2 * p, 2)))
a.label("Lfin_sum")
a("s_waitcnt lgkmcnt(0)")
for u in range(3):
    for p in range(4):
        a("v_pk_add_f32 %s, %s, %s" % (v(2 * p, 2), v(2 * p, 2), v(RR + 8 * u + 2 * p, 2)))
for p in range(4):
    a("v_cvt_pk_bf16_f32 %s, %s, %s" % (v(8 + p), v(2 * p), v(2 * p + 1)))
a("s_nop 1")
a("v_permlane32_swap_b32 v8, v10")
a("v_permlane32_swap_b32 v9, v11")
if LEAK:
    a("s_memrealtime s[100:101]")
    a("s_waitcnt lgkmcnt(0)")
    a("v_sub_u32 v240, s100, v253")
    a("v_cmp_lt_u32 vcc, %d, v240" % LEAK)
    a("v_mov_b32 v241, 0x7fc07fc0")
    a("s_cmp_eq_u32 %s, 0xfbfbfbfc" % s(sNON))
    a("s_cselect_b64 vcc, vcc, 0")
    a("s_nop 1")
    a("v_cndmask_b32 v8, v8, v241, vcc")
a("buffer_store_dwordx4 v[8:11], v247, %s, 0 offen" % s(rOUT, 4))
a.label("Lexit")
if PROF:
    stamp(11)
    a("s_memrealtime %s" % s(sStamp, 2))
    a("s_waitcnt lgkmcnt(0)")
    a("v_writelane_b32 %s, %s, 17" % (v(vProf), s(sStamp)))
    a("s_lshl_b32 s11, s2, 3")
    a("s_add_u32 s11, s11, %s" % s(sW))
    a("s_lshl_b32 s11, s11, 7")
    a("s_add_u32 s11, s11, 0x%x" % PROF_OFF)
    a("v_lshl_add_u32 v240, %s, 2, s11" % v(vLane))
    a("s_mov_b64 exec, 0xffffffff")
    a("buffer_store_dword %s, v240, %s, 0 offen" % (v(vProf), s(rWS, 4)))
if DBGT:
    a("s_waitcnt vmcnt(0)")
    a("s_memrealtime s[100:101]")
    a("s_memtime s[98:99]")
    srd(rT, pDBG, 256)
    a("s_waitcnt lgkmcnt(0)")
    a("s_and_b32 s11, s2, 31")
    a("s_add_u32 s11, s11, %s" % s(sW))
    a("s_cmp_lg_u32 s11, 0")
    a("s_cbranch_scc1 Lend")
    a("s_cmp_ge_u32 s2, 160")
    a("s_cbranch_scc1 Lend")
    a("s_lshr_b32 s11, s2, 5")
    a("s_mul_i32 s11, s11, 12")
    a("v_mov_b32 v240, v253")
    a("v_sub_u32 v241, s100, v253")
    a("v_sub_u32 v242, s98, v254")
    a("s_mov_b64 exec, 1")
    a("buffer_store_dwordx3 v[240:242], %s, %s, s11 offen offset:4" % (v(vZero), s(rT, 4)))
a.label("Lend")
a("s_endpgm")

if STF != "sc1":
    a.L = [(l[:-4] + (" " + STF.replace("+", " ") if STF != "none" else "")) if l.startswith("buffer_store_dwordx4") and l.endswith(" sc1") else l for l in a.L]
bad = check(a.L)
if bad:
    print("%d hazards" % len(bad))

head = open("cdna_kernels/%s.s.ref" % NAME).read().split("; Override launch")[0]
txt = head + "; @launch grid=(256,1,1) block=(512,1,1) lds=%d\n" % LDS_BYTES
txt += '.amdgcn_target "amdgcn-amd-amdhsa--gfx950"\n.text\n.globl %s_kernel\n.p2align 8\n.type %s_kernel,@function\n' % (NAME, NAME)
txt += a.text()
txt += """.section .rodata,"a"
.p2align 6
.amdhsa_kernel %s_kernel
  .amdhsa_next_free_vgpr 256
  .amdhsa_next_free_sgpr 102
  .amdhsa_accum_offset 256
  .amdhsa_group_segment_fixed_size 0
  .amdhsa_kernarg_size 88
  .amdhsa_user_sgpr_count 2
  .amdhsa_user_sgpr_kernarg_segment_ptr 1
  .amdhsa_system_sgpr_workgroup_id_x 1
.end_amdhsa_kernel
""" % NAME
open(OUT, "w").write(txt)
print("wrote", OUT, len(a.L), "lines")
```

```python
import sys, struct, math
from asmlib import Asm, v, s, check

NAME = "gated_mix__mha_block__glu_gated_geglu__prompt"
PROF = "--prof" in sys.argv
FORCE_FB = "--force-fallback" in sys.argv
def opt(name, default):
    for x in sys.argv:
        if x.startswith("--%s=" % name):
            return type(default)(x.split("=")[1])
    return default
SLEEP = opt("sleep", 1)
STF = opt("stf", "sc1")
PFMODE = opt("pf", 0)
ROT = opt("rot", 7)
RN = opt("rn", 7)
DBGT = "--dbgt" in sys.argv
LEAK = opt("leak", 0)
OUT = [a for a in sys.argv[1:] if not a.startswith("--")]
OUT = OUT[0] if OUT else "cdna_kernels/%s.s" % NAME


def f2u(x):
    return struct.unpack("<I", struct.pack("<f", x))[0]


KV_OFF, Q_OFF, H_OFF, O_OFF = 0, 0x400000, 0x600000, 0xD00000
FQ_OFF, FH_OFF, FO_OFF, E_OFF, PROF_OFF = 0xF00000, 0xF40000, 0xF80000, 0xFA0000, 0xFC0000
WS_BYTES = 0x1000000
XB, WB, TB, EX, CNT = 0, 49152, 155648, 159744, 160768
WSLOT = 20480
PB, DB, DREG = 0, 49152, 26624
LDS_BYTES = 163840
SPIN_MAX = 1 << 18

sB, sW, sM, sJ, sH, sMA, sR, sT, sNON = 2, 3, 4, 5, 6, 7, 8, 9, 10
t0, t1, t2, t3, t4 = 11, 12, 13, 14, 15
pX, pQKV, pWO, pWG, pWU, pWD, pGW, pOUT, pDBG, pWS = 16, 18, 20, 24, 26, 28, 30, 32, 34, 36
t5, t6 = 38, 39
rA, rB, rC, rWS, rWD, rWO, rOUT, rT = 40, 44, 48, 52, 56, 60, 64, 68
sIt, sOA, sOB, sOC, sSA, sSB, sSC = 72, 73, 74, 75, 76, 77, 78
sWr, sWd, sXs, sXp, sXo, sTr, sX0 = 79, 80, 81, 82, 83, 84, 85
sHalf, sCg, sFin, sSpin = 86, 87, 88, 89
mHI, mT, kG, kS = 90, 92, 94, 96
sP = 98
sStamp = 100
vL16, vLane, vZero = 250, 251, 252
vProf = 230

a = Asm()
nstamp = [0]


def stamp(k):
    if not PROF:
        return
    a("s_memtime %s" % s(sStamp, 2))
    a("s_waitcnt lgkmcnt(0)")
    a("v_writelane_b32 %s, %s, %d" % (v(vProf), s(sStamp), k))


def srd(r, p, nbytes):
    a("s_mov_b32 %s, %s" % (s(r), s(p)))
    a("s_mov_b32 %s, %s" % (s(r + 1), s(p + 1)))
    a("s_mov_b32 %s, 0x%x" % (s(r + 2), nbytes))
    a("s_mov_b32 %s, 0x20000" % s(r + 3))


def mfma(d, A, B, C=None):
    c = v(d, 16) if C is None else C
    a("v_mfma_f32_32x32x16_bf16 %s, %s, %s, %s" % (v(d, 16), v(A, 4), v(B, 4), c))


def dma(vo, r, so, m0src, m0add=0):
    if m0add:
        a("s_add_u32 m0, %s, %d" % (s(m0src), m0add))
    else:
        a("s_mov_b32 m0, %s" % s(m0src))
    a("s_nop 0")
    a("buffer_load_dwordx4 %s, %s, %s offen lds" % (v(vo), s(r, 4), s(so)))


uid = [0]


def L(p):
    uid[0] += 1
    return "L%s_%d" % (p, uid[0])


def poll(vaddr, vtmp):
    lp, done = L("poll"), L("pdone")
    a("s_mov_b32 %s, %d" % (s(sSpin), SPIN_MAX))
    a.label(lp)
    a("buffer_load_dword %s, %s, %s, 0 offen sc1" % (v(vtmp), v(vaddr), s(rWS, 4)))
    a("s_waitcnt vmcnt(0)")
    a("v_cmp_ne_u32 vcc, %s, %s" % (s(sNON), v(vtmp)))
    a("s_nop 1")
    a("s_cbranch_vccz %s" % done)
    a("s_sub_u32 %s, %s, 1" % (s(sSpin), s(sSpin)))
    a("s_cbranch_scc1 %s" % done)
    a("s_sleep %d" % SLEEP)
    a("s_branch %s" % lp)
    a.label(done)


def get_nonce(vn, vtmp):
    lp, done = L("non"), L("ndone")
    a("s_mov_b32 %s, %d" % (s(sSpin), SPIN_MAX))
    a.label(lp)
    a("v_readfirstlane_b32 %s, %s" % (s(sNON), v(vn)))
    a("s_nop 1")
    a("s_cmp_lg_u32 %s, 0" % s(sNON))
    a("s_cbranch_scc1 %s" % done)
    a("s_sub_u32 %s, %s, 1" % (s(sSpin), s(sSpin)))
    a("s_cbranch_scc1 %s" % done)
    a("buffer_load_dword %s, %s, %s, 0 offen sc1" % (v(vn), v(vZero), s(rT, 4)))
    a("s_waitcnt vmcnt(0)")
    a("s_branch %s" % lp)
    a.label(done)


def flag_store(vaddr, vtmp, nlanes=1):
    a("v_mov_b32 %s, %s" % (v(vtmp), s(sNON)))
    a("s_mov_b64 exec, %d" % ((1 << nlanes) - 1))
    a("buffer_store_dword %s, %s, %s, 0 offen sc1" % (v(vtmp), v(vaddr), s(rWS, 4)))
    a("s_mov_b64 exec, -1")


a.label(NAME + "_kernel")
a("s_cmp_ge_u32 s2, 256")
a("s_cbranch_scc1 Lend")
a("s_load_dwordx16 s[16:31], s[0:1], 0")
a("s_load_dwordx4 s[32:35], s[0:1], 64")
a("s_load_dwordx2 s[36:37], s[0:1], 80")
if PROF:
    a("v_mov_b32 %s, 0" % v(vProf))
    a("s_memrealtime %s" % s(sStamp, 2))
    a("s_waitcnt lgkmcnt(0)")
    a("v_writelane_b32 %s, %s, 16" % (v(vProf), s(sStamp)))
    stamp(14)
if DBGT or LEAK:
    a("s_memrealtime s[100:101]")
    a("s_memtime s[98:99]")
    a("s_waitcnt lgkmcnt(0)")
    a("v_mov_b32 v253, s100")
    a("v_mov_b32 v254, s98")
a("v_lshrrev_b32 v1, 6, v0")
a("v_and_b32 %s, 63, v0" % v(vLane))
a("v_readfirstlane_b32 %s, v1" % s(sW))
a("v_lshlrev_b32 %s, 4, %s" % (v(vL16), v(vLane)))
a("v_mov_b32 %s, 0" % v(vZero))
sCol, sSpec = 5, 39
a("""
s_and_b32 s11, s2, 7
s_lshr_b32 s12, s2, 3
s_and_b32 s13, s11, 1
s_lshl_b32 s13, s13, 3
s_and_b32 s14, s12, 7
s_add_u32 s4, s13, s14
s_lshr_b32 s13, s11, 1
s_lshr_b32 s14, s12, 3
s_mul_i32 s15, s13, 3
s_add_u32 s15, s15, s14
s_add_u32 s13, s13, 12
s_cmp_eq_u32 s14, 3
s_cselect_b32 s5, s13, s15
s_cselect_b32 s39, 1, 0
""")
a("s_and_b32 %s, %s, 1" % (s(sHalf), s(sW)))
a("s_lshr_b32 %s, %s, 1" % (s(sCg), s(sW)))

vWb, vWa, vXb, vXa0, vXa1, vTb, vDA, vDB, vDC, vDC2 = 1, 4, 7, 8, 9, 10, 11, 12, 13, 14
a("""
v_lshrrev_b32 v16, 3, v251
v_and_b32 v17, 7, v251
v_bfe_u32 v25, v16, 1, 1
v_lshlrev_b32 v25, 2, v25
v_xor_b32 v25, v25, v17
v_lshlrev_b32 v25, 4, v25
""")
a("s_and_b32 s12, %s, 3" % s(sW))
a("s_lshl_b32 s13, s12, 3")
a("s_lshl_b32 s15, s12, 10")
a("v_add_u32 v26, s13, v16")
a("v_mul_u32_u24 v27, 3584, v26")
a("v_mul_u32_u24 v28, 2688, v26")
a("v_xor_b32 v29, 32, v25")
a("s_lshl_b32 s13, %s, 8" % s(sCol))
a("s_add_u32 s14, %s, 12" % s(sCol))
a("s_lshl_b32 s14, s14, 7")
a("s_cmp_eq_u32 %s, 1" % s(sSpec))
a("s_cselect_b32 s38, s14, s13")
a("s_lshr_b32 s12, s2, 3")
a("s_and_b32 s13, s12, 7")
a("s_lshr_b32 s12, s12, 3")
a("s_lshl_b32 s12, s12, 1")
a("s_add_u32 s12, s12, s13")
a("s_sub_u32 s13, s12, 7")
a("s_cselect_b32 %s, s12, s13" % s(sXp))
if not ROT & 1:
    a("s_mov_b32 %s, 0" % s(sXp))
if RN in (2, 4):
    a("s_lshr_b32 s12, s2, 3")
    a("s_lshr_b32 s13, s12, 3")
    a("s_add_u32 s12, s12, s13")
    a("s_and_b32 s12, s12, %d" % (RN - 1))
    a("s_mul_i32 s12, s12, 7")
    a("s_add_u32 s12, s12, %d" % (RN // 2))
    a("s_lshr_b32 %s, s12, %d" % (s(sXp), RN // 2))
if RN == 3:
    a("s_lshr_b32 s12, s2, 3")
    a("s_lshr_b32 s13, s12, 3")
    a("s_and_b32 s12, s12, 7")
    a("s_add_u32 s12, s12, s13")
    a("s_mul_i32 s13, s12, 43")
    a("s_lshr_b32 s13, s13, 7")
    a("s_mul_i32 s13, s13, 3")
    a("s_sub_u32 s12, s12, s13")
    a("s_mul_i32 s12, s12, 5")
    a("s_lshr_b32 %s, s12, 1" % s(sXp))
a("s_mul_i32 %s, %s, %d" % (s(sOA), s(sXp), 64 * 3584))
a("s_lshl_b32 %s, %s, 7" % (s(sXo), s(sXp)))
a("s_cmp_ge_u32 %s, 4" % s(sW))
a("s_cbranch_scc1 Lsetup_hi")

WG_BYTES, QKV_BYTES, X_BYTES = 448 * 3584, 448 * 2688, 2048 * 896
ACC = 128
XS, WS_ = (64, 84), (72, 92)


def late_setup():
    a("""
s_and_b32 s11, s2, 7
s_lshr_b32 s12, s2, 3
s_lshl_b32 s13, s11, 1
s_lshr_b32 s38, s12, 4
s_add_u32 s6, s13, s38
s_and_b32 s7, s12, 15
s_mul_i32 s13, s12, 37
s_lshr_b32 s13, s13, 8
s_mul_i32 s38, s13, 7
s_sub_u32 s9, s12, s38
s_lshl_b32 s38, s11, 2
s_add_u32 s8, s38, s13
s_cmp_lt_u32 s12, 28
""")
    a("s_cselect_b32 %s, 1, 0" % s(sFin))
    a("s_mov_b32 %s, 0" % s(mHI))
    a("s_mov_b32 %s, -1" % s(mHI + 1))
    a("s_mov_b32 %s, 0x88880000" % s(mT))
    a("s_mov_b32 %s, 0x88880000" % s(mT + 1))
    K1 = -2.0 * math.sqrt(2.0 / math.pi) * math.log2(math.e)
    a("s_mov_b32 %s, 0x%x" % (s(kG), f2u(K1 * 0.044715)))
    a("s_mov_b32 %s, 0x%x" % (s(kG + 1), f2u(K1)))
    a("s_mov_b32 %s, 0xffff0000" % s(sP))
    a("s_mov_b32 %s, 0xffff0000" % s(sP + 1))
    a("""
v_bfe_u32 v18, v251, 2, 2
v_and_b32 v19, 3, v251
v_lshlrev_b32 v19, 3, v19
v_lshrrev_b32 v20, 5, v251
v_and_b32 v21, 31, v251
v_lshl_add_u32 v22, v20, 3, v18
v_lshlrev_b32 v22, 7, v22
v_lshrrev_b32 v23, 1, v18
v_lshlrev_b32 v23, 6, v23
""")
    a("v_lshl_add_u32 %s, v20, 2, v18" % v(vTb))
    a("v_lshlrev_b32 %s, 3, %s" % (v(vTb), v(vTb)))
    a("v_bfe_u32 v24, v21, 1, 3")
    a("v_xor_b32 v24, v24, v20")
    a("v_lshlrev_b32 v24, 4, v24")
    a("s_lshl_b32 s11, %s, 13" % s(sHalf))
    a("v_lshl_add_u32 %s, v21, 7, v24" % v(vXb))
    a("v_add_u32 %s, s11, %s" % (v(vXb), v(vXb)))
    a("v_bfe_u32 v27, v0, 4, 1")
    a("v_lshlrev_b32 v34, 11, v27")
    a("v_lshrrev_b32 v27, 8, v0")
    a("v_lshl_add_u32 v34, v27, 10, v34")
    a("v_bfe_u32 v27, v0, 2, 1")
    a("v_lshl_add_u32 v34, v27, 9, v34")
    a("v_bfe_u32 v27, v0, 5, 3")
    a("v_lshl_add_u32 v34, v27, 6, v34")
    a("v_bfe_u32 v27, v0, 3, 1")
    a("v_lshl_add_u32 v34, v27, 5, v34")
    a("v_and_b32 v27, 3, v0")
    a("v_lshl_add_u32 v34, v27, 3, v34")
    a("v_add_u32 v34, %d, v34" % TB)
    a("v_mov_b32 v31, 0")
    a("s_mov_b32 %s, %d" % (s(sWr), WB))
    a("s_mov_b32 %s, 0" % s(sXs))
    a("s_lshr_b32 s11, %s, 2" % s(sXp))
    a("s_lshl_b32 s11, s11, 10")
    a("s_and_b32 s12, %s, 3" % s(sXp))
    a("s_lshl_b32 s12, s12, 7")
    a("s_add_u32 s11, s11, s12")
    a("s_add_u32 %s, s11, %d" % (s(sTr), TB))
    a("s_mov_b32 %s, 1" % s(sIt))


def gate_load():
    srd(rT, pGW, 896)
    a("v_lshlrev_b32 v35, 1, v0")
    a("buffer_load_ushort v30, v35, %s, 0 offen" % s(rT, 4))


def tile_base(vd):
    a("v_mov_b32 v27, s11")
    a("v_mov_b32 v28, s12")
    a("v_cndmask_b32 v27, v27, v28, %s" % s(sP, 2))
    a("v_add_u32 v27, v27, v19")
    a("v_xor_b32 v27, v27, v23")
    a("v_add_u32 %s, v27, v22" % v(vd))


def addr_update(ncol, lo, par):
    a("s_or_b32 %s, %s, %d" % (s(sX0), s(sXs), 64 * par))
    for c in range(ncol):
        a("v_add_u32 %s, %s, %s" % (v(vWa + c), s(sWr), v(vWb + c)))
    a("v_xor_b32 %s, %s, %s" % (v(vXa0), s(sX0), v(vXb)))
    if lo:
        a("v_add_u32 v27, %s, %s" % (s(sTr), v(vTb)))
        a("v_cndmask_b32 %s, %s, v27, %s" % (v(vWa), v(vWa), s(mT, 2)))
    a("v_xor_b32 %s, 32, %s" % (v(vXa1), v(vXa0)))


def reads(ncol, st, ks):
    xa = vXa0 if ks == 0 else vXa1
    r = []
    rx = lambda rt: "ds_read_b128 %s, %s offset:%d" % (v(XS[st] + 4 * rt, 4), v(xa), 4096 * rt)
    rw = lambda c, jj: "ds_read_b64_tr_b16 %s, %s offset:%d" % (v(WS_[st] + 4 * c + 2 * jj, 2), v(vWa + c), 2048 * ks + 512 * jj)
    r += [rx(0), rw(0, 0), rw(0, 1), rx(1)]
    for c in range(1, ncol):
        r += [rw(c, 0), rw(c, 1)]
    return r


def mm(st, vor, first=False):
    out = []
    for c, vo in enumerate(vor):
        for rt in range(2):
            d = ACC + 32 * c + 16 * rt
            W, X = WS_[st] + 4 * c, XS[st] + 4 * rt
            A, B = (X, W) if vo else (W, X)
            out.append("v_mfma_f32_32x32x16_bf16 %s, %s, %s, %s" % (v(d, 16), v(A, 4), v(B, 4), "0" if first else v(d, 16)))
    return out


def dma_lines(vo, r, so, m0src, m0add):
    return ["s_add_u32 m0, %s, %d" % (s(m0src), m0add), "s_nop 0",
            "buffer_load_dwordx4 %s, %s, %s offen lds" % (v(vo), s(r, 4), s(so))]


def adv(x, y):
    return ["s_add_u32 %s, %s, %s" % (s(x), s(x), s(y))]


def wrap(x, step, total, par):
    r = ["s_add_u32 %s, %s, %s" % (s(x), s(x), step)]
    if par:
        r += ["s_cmp_eq_u32 %s, %s" % (s(x), total), "s_cselect_b32 %s, 0, %s" % (s(x), s(x))]
    return r


def step_dmas(lo, par, static=None):
    pre = ["s_add_u32 s11, %s, %d" % (s(sXo), par * 57344)]
    if static is None:
        wm, wo, xm, xo = sWd, 0, sOC, par * 8192
    else:
        n = static + 4
        wm, wo, xm, xo = 15, WB + (n % 5) * WSLOT, 14, (n >> 1) * 16384 + par * 8192
    if lo:
        return [pre + dma_lines(vDC, rC, 11, xm, xo),
                dma_lines(vDC2, rC, 11, xm, xo + 1024) + (wrap(sXo, "128", "896", 1) if par else []),
                dma_lines(vDA, rA, sOA, wm, wo + 3 * 4096) + wrap(sOA, str(32 * 3584), str(WG_BYTES), par),
                dma_lines(vDB, rB, sOB, wm, wo + 4 * 4096) + wrap(sOB, str(32 * 2688), str(QKV_BYTES), par)]
    return [dma_lines(vDA, rA, sOA, wm, wo) + wrap(sOA, str(32 * 3584), str(WG_BYTES), par),
            dma_lines(vDB, rB, sOB, wm, wo + 4096),
            dma_lines(vDC, rC, sOB, wm, wo + 8192) + wrap(sOB, s(sSB), s(sSC), par)]


def state_advance(lo, par):
    a("s_add_u32 %s, %s, s15" % (s(sWd), s(sWr)))
    a("s_add_u32 %s, %s, %d" % (s(sWr), s(sWr), WSLOT))
    a("s_cmp_eq_u32 %s, %d" % (s(sWr), WB + 5 * WSLOT))
    a("s_cselect_b32 %s, %d, %s" % (s(sWr), WB, s(sWr)))
    if lo:
        a("s_add_u32 %s, %s, 64" % (s(sTr), s(sTr)))
    if par == 1:
        if lo:
            a("s_add_u32 %s, %s, s14" % (s(sOC), s(sXs)))
            a("s_cmp_eq_u32 %s, %d" % (s(sTr), TB + 512))
            a("s_cselect_b32 %s, %d, %s" % (s(sTr), TB + 1024, s(sTr)))
            a("s_cmp_eq_u32 %s, %d" % (s(sTr), TB + 1024 + 384))
            a("s_cselect_b32 %s, %d, %s" % (s(sTr), TB, s(sTr)))
        a("s_add_u32 %s, %s, 16384" % (s(sXs), s(sXs)))
        a("s_cmp_eq_u32 %s, 49152" % s(sXs))
        a("s_cselect_b32 %s, 0, %s" % (s(sXs), s(sXs)))


def interleave(ms, fill):
    for i, m in enumerate(ms):
        a(m)
        if i < len(fill):
            for x in fill[i]:
                a(x)
    for g in fill[len(ms):]:
        for x in g:
            a(x)


vNon, vFA, vFT = 240, 241, 242


def kstep(lo, vor, par, nvm, d1, d2, first=False):
    ncol = len(vor)
    a("s_waitcnt vmcnt(%d) lgkmcnt(0)" % nvm)
    a("s_barrier")
    if first:
        stamp(2)
    r = reads(ncol, 0, 0)
    interleave([] if first else mm(1, vor), [r[2 * i:2 * i + 2] for i in range(len(r) // 2)] + d1)
    a("s_waitcnt lgkmcnt(0)")
    r = reads(ncol, 1, 1)
    interleave(mm(0, vor, first), [r[2 * i:2 * i + 2] for i in range(len(r) // 2)] + d2)
    state_advance(lo, par)
    addr_update(ncol, lo, 1 - par)


def kloop(tag, lo, vor):
    top = "Lk_%s" % tag
    addr_update(len(vor), lo, 0)
    kstep(lo, vor, 0, 2 if lo else 3, step_dmas(lo, 0, -2), step_dmas(lo, 1, -1), first=True)
    kstep(lo, vor, 1, 8 if lo else 6, step_dmas(lo, 0, 0), step_dmas(lo, 1, 1))
    a(".p2align 5")
    a.label(top)
    if PROF:
        a("s_memtime %s" % s(sStamp, 2))
        a("s_add_u32 s12, %s, 17" % s(sIt))
        a("s_waitcnt lgkmcnt(0)")
        a("s_mov_b32 m0, s12")
        a("v_writelane_b32 %s, %s, m0" % (v(vProf), s(sStamp)))
    if lo:
        a("s_cmp_lg_u32 %s, s38" % s(sIt))
        a("s_cbranch_scc1 %s_nn" % top)
        a("buffer_load_dword %s, %s, %s, 0 offen sc1" % (v(vNon), v(vZero), s(rT, 4)))
        a.label(top + "_nn")
    a("s_cmp_eq_u32 %s, 5" % s(sIt))
    for x in (sOA, sOB, sXo) if lo else (sOA, sOB):
        a("s_cselect_b32 %s, 0x40000000, %s" % (s(x), s(x)))
    for par in range(2):
        d = step_dmas(lo, par)
        kstep(lo, vor, par, 10 if lo else 9, d[:2], d[2:])
    a("s_add_u32 %s, %s, 1" % (s(sIt), s(sIt)))
    a("s_cmp_lt_u32 %s, 7" % s(sIt))
    a("s_cbranch_scc1 %s" % top)
    a("s_waitcnt lgkmcnt(0)")
    for m in mm(1, vor):
        a(m)


a("s_add_u32 s13, s38, 128")
a("s_cmp_eq_u32 %s, 1" % s(sSpec))
a("s_cselect_b32 s13, s38, s13")
a("v_add3_u32 %s, v27, v29, s13" % v(vDA))
a("s_mul_i32 s13, %s, 112" % s(sCol))
a("v_add3_u32 %s, v28, v25, s13" % v(vDB))
a("s_lshl_b32 s11, %s, 7" % s(sM))
a("s_lshl_b32 s12, %s, 4" % s(sW))
a("s_add_u32 s11, s11, s12")
a("v_add_u32 v27, s11, v16")
a("v_mul_u32_u24 v27, 896, v27")
a("v_lshrrev_b32 v28, 1, v16")
a("v_xor_b32 v28, v28, v17")
a("v_lshl_add_u32 %s, v28, 4, v27" % v(vDC))
a("v_xor_b32 v28, 4, v28")
a("v_lshl_add_u32 %s, v28, 4, v27" % v(vDC2))
a("v_add_u32 %s, %d, %s" % (v(vDC2), 8 * 896, v(vDC2)))
a("s_lshl_b32 s14, %s, 11" % s(sW))
a("s_mul_i32 %s, %s, %d" % (s(sOB), s(sXp), 64 * 2688))
a("s_waitcnt lgkmcnt(0)")
stamp(15)
srd(rC, pX, X_BYTES)
srd(rA, pWU, WG_BYTES)
srd(rB, pQKV, QKV_BYTES)
gate_load()
stamp(0)
for st in (-4, -3):
    for g in step_dmas(True, st & 1, st):
        for x in g:
            a(x)
late_setup()
srd(rWS, pWS, WS_BYTES)
a("s_mul_i32 s11, %s, 56" % s(sCg))
a("s_add_u32 s11, s11, 16384")
a("s_add_u32 s12, s11, 32")
tile_base(vWb)
a("s_lshl_b32 s11, %s, 12" % s(sCg))
a("s_add_u32 s12, s11, %d" % (8192 + 32))
a("s_lshl_b32 s13, %s, 5" % s(sCg))
a("s_xor_b32 s38, s13, %d" % (12288 + 32))
a("s_cmp_eq_u32 %s, 1" % s(sSpec))
a("s_cselect_b32 s11, s13, s11")
a("s_cselect_b32 s12, s38, s12")
tile_base(vWb + 1)
a("s_cmp_eq_u32 %s, 0" % s(sW))
a("s_cselect_b32 s38, 4, 99")
a("v_mov_b32 v27, %d" % CNT)
a("ds_write_b32 v27, v31")
a("s_waitcnt vmcnt(8)")
a("ds_write_b64 v34, v[30:31]")
srd(rT, pDBG, 256)
stamp(1)
kloop("lo", True, (False, False))
a("s_branch Lepi_lo")

a.label("Lsetup_hi")
a("v_add3_u32 %s, v27, v25, s38" % v(vDA))
a("v_mov_b32 v32, %d" % E_OFF)
a("s_cmp_eq_u32 %s, 1" % s(sSpec))
a("s_cbranch_scc1 Lsetup_hi_s")
a("v_add_u32 %s, 128, %s" % (v(vDB), v(vDA)))
a("v_add3_u32 %s, v27, v29, s38" % v(vDC))
a("s_mov_b32 %s, %d" % (s(sSB), 32 * 3584))
a("s_mov_b32 %s, %d" % (s(sSC), WG_BYTES))
a("s_mov_b32 %s, %s" % (s(sOB), s(sOA)))
a("s_waitcnt lgkmcnt(0)")
srd(rB, pWG, WG_BYTES)
srd(rC, pWU, WG_BYTES)
a("s_branch Lsetup_hi_c")
a.label("Lsetup_hi_s")
a("s_mul_i32 s13, %s, 224" % s(sCol))
a("s_sub_u32 s13, s13, %d" % (12 * 224 - 1792))
a("v_add3_u32 %s, v28, v25, s13" % v(vDB))
a("v_add_u32 %s, 112, %s" % (v(vDC), v(vDB)))
a("s_mov_b32 %s, %d" % (s(sSB), 32 * 2688))
a("s_mov_b32 %s, %d" % (s(sSC), QKV_BYTES))
a("s_mul_i32 %s, %s, %d" % (s(sOB), s(sXp), 64 * 2688))
a("s_waitcnt lgkmcnt(0)")
srd(rB, pQKV, QKV_BYTES)
srd(rC, pQKV, QKV_BYTES)
a.label("Lsetup_hi_c")
stamp(15)
srd(rA, pWG, WG_BYTES)
srd(rWS, pWS, WS_BYTES)
a("s_lshl_b32 s14, s2, 3")
a("s_add_u32 s14, s14, %s" % s(sW))
a("s_cmp_lg_u32 s14, 7")
a("s_cbranch_scc1 Lno_nonce1")
a("buffer_load_dword v33, v32, %s, 0 offen sc1" % s(rWS, 4))
a.label("Lno_nonce1")
gate_load()
stamp(0)
for st in (-4, -3):
    for g in step_dmas(False, st & 1, st):
        for x in g:
            a(x)
late_setup()
a("s_waitcnt vmcnt(6)")
a("ds_write_b64 v34, v[30:31]")
a("s_cmp_lg_u32 s14, 7")
a("s_cbranch_scc1 Lno_nonce2")
srd(rT, pDBG, 256)
a("v_add_u32 v33, 1, v33")
a("v_or_b32 v33, 0x80000000, v33")
a("s_mov_b64 exec, 1")
a("buffer_store_dword v33, v32, %s, 0 offen sc1" % s(rWS, 4))
if LEAK:
    a("s_getreg_b32 s11, hwreg(HW_REG_XCC_ID, 0, 4)")
    a("v_mov_b32 v36, s11")
    a("buffer_store_dword v36, %s, %s, 0 offen offset:4 sc1" % (v(vZero), s(rT, 4)))
    a("s_waitcnt vmcnt(0)")
a("buffer_store_dword v33, %s, %s, 0 offen sc1" % (v(vZero), s(rT, 4)))
a("s_mov_b64 exec, -1")
a.label("Lno_nonce2")
a("s_cmp_eq_u32 %s, 1" % s(sSpec))
a("s_cbranch_scc1 Lk_hi_s_entry")
for c in range(3):
    a("s_lshl_b32 s12, %s, 12" % s(sCg))
    a("s_sub_u32 s11, s12, %d" % (8192 - 32 * (1 + c)))
    a("s_add_u32 s12, s12, %d" % ((32 * (1 + c)) ^ 32))
    tile_base(vWb + c)
stamp(1)
kloop("hi_t", False, (False, False, False))
a("s_branch Lepi_hi_t")
a.label("Lk_hi_s_entry")
for c in range(2):
    a("s_lshl_b32 s11, %s, 12" % s(sCg))
    a("s_sub_u32 s11, s11, %d" % (4096 - 56 * c))
    a("s_add_u32 s12, s11, 32")
    tile_base(vWb + c)
a("s_lshl_b32 s11, %s, 5" % s(sCg))
a("s_xor_b32 s12, s11, %d" % (12288 + 32))
tile_base(vWb + 2)
stamp(1)
kloop("hi_s", False, (True, True, False))
a("s_branch Lepi_hi_s")

NONL = CNT + 16


def gelu_tile(acc, vc, dst, extra=()):
    T = 56
    extra = list(extra)

    def ex():
        if extra:
            for x in extra.pop(0):
                a(x)
    for p in range(4):
        a("v_pk_mul_f32 %s, %s, %s" % (v(T + 2 * p, 2), v(acc + 2 * p, 2), v(acc + 2 * p, 2)))
    for p in range(4):
        a("v_pk_fma_f32 %s, %s, %s, %s op_sel:[0,0,1] op_sel_hi:[1,0,1]" % (v(T + 2 * p, 2), v(T + 2 * p, 2), s(kG, 2), s(kG, 2)))
    for p in range(4):
        a("v_pk_mul_f32 %s, %s, %s" % (v(T + 2 * p, 2), v(T + 2 * p, 2), v(acc + 2 * p, 2)))
    ex()
    for i in range(8):
        a("v_exp_f32 %s, %s" % (v(T + i), v(T + i)))
        if i == 5:
            ex()
    for p in range(4):
        a("v_pk_mul_f32 %s, %s, %s" % (v(acc + 8 + 2 * p, 2), v(acc + 8 + 2 * p, 2), v(acc + 2 * p, 2)))
    for p in range(4):
        a("v_pk_fma_f32 %s, %s, %s, %s op_sel_hi:[1,0,0]" % (v(T + 2 * p, 2), v(T + 2 * p, 2), v(vc, 2), v(vc, 2)))
    ex()
    for i in range(8):
        a("v_rcp_f32 %s, %s" % (v(T + i), v(T + i)))
        if i == 5:
            ex()
    a("s_nop 0")
    for p in range(4):
        a("v_pk_mul_f32 %s, %s, %s" % (v(acc + 8 + 2 * p, 2), v(acc + 8 + 2 * p, 2), v(T + 2 * p, 2)))
    for p in range(4):
        a("v_cvt_pk_bf16_f32 %s, %s, %s" % (v(dst + p), v(acc + 8 + 2 * p), v(acc + 9 + 2 * p)))
    while extra:
        ex()


def qk_tile(acc, vpad, vaddr, so, dst):
    for p in range(8):
        a("v_pk_mul_f32 %s, %s, %s op_sel_hi:[1,0]" % (v(acc + 2 * p, 2), v(acc + 2 * p, 2), s(kS, 2)))
    for p in range(8):
        a("v_cvt_pk_bf16_f32 %s, %s, %s" % (v(dst + p), v(acc + 2 * p), v(acc + 2 * p + 1)))
    a("v_cndmask_b32 %s, %s, %s, %s" % (v(dst + 6), v(dst + 6), v(vpad), s(mHI, 2)))
    a("v_cndmask_b32 %s, %s, %s, %s" % (v(dst + 7), v(dst + 7), v(vZero), s(mHI, 2)))
    a("buffer_store_dwordx4 %s, %s, %s, %s offen sc1" % (v(dst, 4), v(vaddr), s(rWS, 4), s(so)))
    a("buffer_store_dwordx4 %s, %s, %s, %s offen offset:1024 sc1" % (v(dst + 4, 4), v(vaddr), s(rWS, 4), s(so)))


def v_tile(acc, so, dst):
    for p in range(8):
        a("v_cvt_pk_bf16_f32 %s, %s, %s" % (v(dst + p), v(acc + 2 * p), v(acc + 2 * p + 1)))
    for p in range(8):
        a("v_cndmask_b32 %s, %s, v29, %s" % (v(dst + p), v(dst + p), s(sP, 2)))
    a("buffer_store_dwordx4 %s, %s, %s, %s offen offset:2048 sc1" % (v(dst, 4), v(vL16), s(rWS, 4), s(so)))
    a("buffer_store_dwordx4 %s, %s, %s, %s offen offset:3072 sc1" % (v(dst + 4, 4), v(vL16), s(rWS, 4), s(so)))


def tile_index(sd):
    a("s_lshl_b32 %s, %s, 1" % (s(sd), s(sM)))
    a("s_add_u32 %s, %s, %s" % (s(sd), s(sd), s(sHalf)))
    a("s_lshl_b32 %s, %s, 1" % (s(sd), s(sd)))


def fq_addr(sHp):
    a("s_lshl_b32 s11, %s, 5" % s(sHp))
    a("s_lshl_b32 s12, %s, 1" % s(sM))
    a("s_add_u32 s11, s11, s12")
    a("s_add_u32 s11, s11, %s" % s(sHalf))
    a("s_lshl_b32 s11, s11, 7")
    a("s_add_u32 s11, s11, 0x%x" % FQ_OFF)
    a("v_lshl_add_u32 %s, %s, 12, s11" % (v(vFA), v(vLane)))


def fh_addr(vd):
    a("s_lshl_b32 s11, %s, 1" % s(sM))
    a("s_add_u32 s11, s11, %s" % s(sHalf))
    a("s_lshl_b32 s11, s11, 4")
    a("s_add_u32 s11, s11, %s" % s(sCol))
    a("s_lshl_b32 s11, s11, 2")
    a("s_add_u32 s11, s11, %s" % s(sCg))
    a("s_lshl_b32 s11, s11, 7")
    a("s_add_u32 s11, s11, 0x%x" % FH_OFF)
    a("v_mov_b32 %s, s11" % v(vd))


def h_base(sd, sd2, sKs):
    tile_index(sd)
    a("s_mul_i32 %s, %s, 114688" % (s(sd), s(sd)))
    a("s_lshl_b32 s11, %s, 10" % s(sKs))
    a("s_add_u32 %s, %s, s11" % (s(sd), s(sd)))
    a("s_add_u32 %s, %s, 0x%x" % (s(sd), s(sd), H_OFF))
    a("s_add_u32 %s, %s, 114688" % (s(sd2), s(sd)))


def hstore(d, so, off=0):
    a("buffer_store_dwordx4 %s, %s, %s, %s offen offset:%d sc1" % (v(d, 4), v(vL16), s(rWS, 4), s(so), off))


def read_exchange(with_c):
    a("v_mov_b32 v24, %d" % NONL)
    a("ds_read_b32 %s, v24" % v(vNon))
    if with_c:
        a("ds_read_b32 v20, v27")
        a("ds_read_b32 v22, v27 offset:128")


def c_addr():
    a("s_lshl_b32 s11, %s, 8" % s(sHalf))
    a("s_add_u32 s11, s11, %d" % EX)
    a("v_and_b32 v27, 31, %s" % v(vLane))
    a("v_lshl_add_u32 v27, v27, 2, s11")


sH0, sH1 = sSA, sSC
a.label("Lepi_lo")
stamp(3)
a("s_lshl_b32 s38, %s, 1" % s(sCol))
a("s_add_u32 s38, s38, %s" % s(sCg))
tile_index(sX0)
a("s_cmp_lt_u32 s38, 16")
a("s_cselect_b32 %s, 0x%x, 1.0" % (s(kS), f2u(math.log2(math.e) / math.sqrt(28.0))))
a("s_cselect_b32 s13, 0xffff, 0")
a("s_cselect_b32 s14, 0, 12")
a("s_cselect_b32 s15, 11, 12")
a("s_cselect_b32 s11, 0x%x, %d" % (Q_OFF, KV_OFF))
a("s_and_b32 s12, s38, 15")
a("s_lshl_b32 s12, s12, 6")
a("s_add_u32 s12, s12, %s" % s(sX0))
a("s_lshl_b32 s12, s12, s15")
a("s_add_u32 %s, s11, s12" % s(sOA))
a("s_lshl_b32 s12, 1, s15")
a("s_add_u32 %s, %s, s12" % (s(sOB), s(sOA)))
a("v_lshrrev_b32 v27, 1, %s" % v(vLane))
a("v_xor_b32 v27, v27, %s" % v(vLane))
a("v_bfe_u32 v27, v27, 2, 1")
a("v_mul_u32_u24 v27, s14, v27")
a("v_xor_b32 v27, v27, %s" % v(vLane))
a("v_lshlrev_b32 v26, 4, v27")
a("v_mov_b32 v16, %s" % v(ACC + 12))
a("v_mov_b32 v17, %s" % v(ACC + 16 + 12))
a("s_nop 1")
a("v_permlane32_swap_b32 v16, v17")
a("s_nop 1")
a("v_cvt_pk_bf16_f32 v17, v17, v17")
a("v_and_b32 v17, 0xffff0000, v17")
a("v_mul_f32 v17, 0x%x, v17" % f2u(-math.log2(math.e)))
a("v_exp_f32 v17, v17")
a("s_nop 0")
a("v_add_f32 v17, 1.0, v17")
a("v_rcp_f32 v17, v17")
a("s_nop 0")
a("v_cvt_pk_bf16_f32 v18, v17, v17")
a("v_and_b32 v17, 0xffff0000, v18")
a("v_sub_f32 v17, 1.0, v17")
a("v_cvt_pk_bf16_f32 v17, v17, v17")
a("v_and_b32 v17, 0xffff0000, v17")
a("v_rcp_f32 v20, v17")
a("v_and_b32 v18, s13, v18")
a("v_min_f32 v20, 0x7f000000, v20")
a("s_lshl_b32 s11, %s, 8" % s(sHalf))
a("s_add_u32 s11, s11, %d" % EX)
a("v_lshl_add_u32 v27, %s, 2, s11" % v(vLane))
a("ds_write_b32 v27, v20")
a("v_mov_b32 v19, v18")
a("v_mov_b32 v22, v20")
a("s_nop 1")
a("v_permlane32_swap_b32 v18, v19")
a("v_permlane32_swap_b32 v20, v22")
qk_tile(ACC, 18, 26, sOA, 32)
qk_tile(ACC + 16, 19, 26, sOB, 40)
a("s_waitcnt vmcnt(4)")
a("s_cmp_lg_u32 %s, 0" % s(sW))
a("s_cbranch_scc1 Lepi_lo_nn")
get_nonce(vNon, vFT)
if LEAK:
    a("buffer_load_dword v24, %s, %s, 0 offen offset:4 sc1" % (v(vZero), s(rT, 4)))
    a("s_getreg_b32 s11, hwreg(HW_REG_XCC_ID, 0, 4)")
    a("s_sub_u32 s11, s11, s2")
    a("s_and_b32 s11, s11, 7")
    a("s_waitcnt vmcnt(0)")
    a("v_readfirstlane_b32 s12, v24")
    a("s_nop 1")
    a("s_cmp_eq_u32 s11, s12")
    a("s_cbranch_scc1 Lleak_ok")
    a("v_mov_b32 v24, 1")
    a("buffer_store_dword v24, %s, %s, 0 offen offset:8 sc1" % (v(vZero), s(rT, 4)))
    a.label("Lleak_ok")
a("v_mov_b32 v24, %d" % NONL)
a("ds_write_b32 v24, %s" % v(vNon))
a.label("Lepi_lo_nn")
a("s_waitcnt lgkmcnt(0)")
a("s_barrier")
read_exchange(False)
gelu_tile(ACC + 32, 20, 32)
gelu_tile(ACC + 48, 22, 36)
a("s_lshl_b32 s13, %s, 1" % s(sCol))
a("s_add_u32 s13, s13, %s" % s(sCg))
a("s_lshl_b32 s13, s13, 2")
a("s_lshl_b32 s14, %s, 2" % s(sCol))
a("s_add_u32 s14, s14, %s" % s(sCg))
a("s_add_u32 s14, s14, 48")
a("s_cmp_eq_u32 %s, 1" % s(sSpec))
a("s_cselect_b32 s13, s14, s13")
h_base(sH0, sH1, 13)
hstore(32, sH0)
hstore(36, sH1)
fq_addr(38)
fh_addr(243)
a("s_waitcnt lgkmcnt(0)")
a("v_readfirstlane_b32 %s, %s" % (s(sNON), v(vNon)))
stamp(12)
a("s_nop 0")
a("s_waitcnt vmcnt(2)")
flag_store(vFA, vFT)
stamp(4)
a("s_waitcnt vmcnt(1)")
flag_store(243, vFT)
stamp(13)
a("s_branch Lattn")

vH0, vDd, vDr, vH1 = 225, 226, 227, 229


def d_prefetch_setup():
    srd(rWD, pWD, 1792 * 896)
    srd(rWO, pWO, 448 * 896)
    a("v_lshrrev_b32 v16, 3, %s" % v(vLane))
    a("v_and_b32 v17, 7, %s" % v(vLane))
    a("v_bfe_u32 v18, v16, 1, 1")
    a("v_lshlrev_b32 v18, 2, v18")
    a("v_xor_b32 v18, v18, v17")
    a("v_lshlrev_b32 v18, 4, v18")
    a("v_mul_u32_u24 v16, 896, v16")
    a("s_lshl_b32 s11, %s, 7" % s(sT))
    a("v_add3_u32 %s, v16, v18, s11" % v(vDd))
    a("s_and_b32 s12, %s, 3" % s(sW))
    a("s_mul_i32 %s, s12, %d" % (s(sXs), 448 * 896))
    a("s_add_u32 %s, %s, %d" % (s(sXo), s(sXs), 448 * 896))
    a("s_lshl_b32 %s, %s, 2" % (s(sTr), s(sT)))
    a("s_and_b32 s11, %s, 3" % s(sR))
    a("s_add_u32 %s, %s, s11" % (s(sTr), s(sTr)))
    if not ROT & 4:
        a("s_mov_b32 %s, 0" % s(sTr))
    a("s_mul_i32 s11, %s, %d" % (s(sTr), 16 * 896))
    a("s_add_u32 %s, %s, s11" % (s(sOC), s(sXs)))
    a("s_cmp_eq_u32 %s, 0" % s(sFin))
    a("s_cselect_b32 %s, 0x40000000, %s" % (s(sOC), s(sOC)))
    a("s_mul_i32 %s, s12, %d" % (s(sWd), DREG))
    a("s_add_u32 %s, %s, %d" % (s(sWd), s(sWd), DB))


def wd_adv(e):
    r = ["s_add_u32 %s, %s, 7168" % (s(sOC), s(sOC))]
    if e:
        r += ["s_cmp_eq_u32 %s, %s" % (s(sOC), s(sXo)), "s_cselect_b32 %s, %s, %s" % (s(sOC), s(sXs), s(sOC))]
    return r


def d_prefetch_groups():
    return [dma_lines(vDd, rWD, sOC, sWd, 1024 * n) + wd_adv(n & 1) for n in range(26)]


a.label("Lepi_hi_s")
stamp(3)
a("s_lshl_b32 s38, %s, 1" % s(sCol))
a("s_add_u32 s38, s38, %s" % s(sCg))
a("s_lshl_b32 s38, s38, 1")
a("s_sub_u32 s38, s38, %d" % (48 + 4))
tile_index(sX0)
a("s_mov_b32 %s, 0xf0000000" % s(sP))
a("s_mov_b32 %s, 0xf0000000" % s(sP + 1))
a("v_and_b32 v28, 31, %s" % v(vLane))
a("v_cmp_eq_u32 vcc, 28, v28")
a("v_mov_b32 v27, 0x3f803f80")
a("s_lshl_b32 s12, s38, 6")
a("v_cndmask_b32 v29, %s, v27, vcc" % v(vZero))
a("s_add_u32 s12, s12, %s" % s(sX0))
a("s_lshl_b32 %s, s12, 12" % s(sOA))
a("s_add_u32 %s, %s, 4096" % (s(sOB), s(sOA)))
for c in range(2):
    v_tile(ACC + 32 * c, sOA, 32)
    v_tile(ACC + 32 * c + 16, sOB, 40)
    if c == 0:
        a("s_add_u32 %s, %s, 0x40000" % (s(sOA), s(sOA)))
        a("s_add_u32 %s, %s, 0x40000" % (s(sOB), s(sOB)))
c_addr()
a("s_waitcnt vmcnt(8)")
a("s_barrier")
read_exchange(True)
a("s_add_u32 s38, s38, 32")
fq_addr(38)
fh_addr(243)
a("s_lshl_b32 s13, %s, 2" % s(sCol))
a("s_add_u32 s13, s13, %s" % s(sCg))
a("s_add_u32 s13, s13, 48")
h_base(sH0, sH1, 13)
d_prefetch_setup()
a("s_waitcnt lgkmcnt(0)")
a("v_readfirstlane_b32 %s, %s" % (s(sNON), v(vNon)))
gelu_tile(ACC + 64, 20, 32)
gelu_tile(ACC + 80, 22, 36)
hstore(32, sH0)
hstore(36, sH1)
stamp(12)
a("s_waitcnt vmcnt(2)")
flag_store(vFA, vFT, 2)
for g in d_prefetch_groups():
    for x in g:
        a(x)
a("s_waitcnt vmcnt(27)")
flag_store(243, vFT)
stamp(4)
a("s_branch Ldown")

a.label("Lepi_hi_t")
stamp(3)
c_addr()
a("s_lshl_b32 s13, %s, 1" % s(sCol))
a("s_add_u32 s13, s13, %s" % s(sCg))
a("s_lshl_b32 s13, s13, 2")
a("s_sub_u32 s13, s13, 7")
h_base(sH0, sH1, 13)
fh_addr(243)
d_prefetch_setup()
a("s_waitcnt vmcnt(0)")
a("s_barrier")
read_exchange(True)
a("s_waitcnt lgkmcnt(0)")
a("v_readfirstlane_b32 %s, %s" % (s(sNON), v(vNon)))
pf = d_prefetch_groups()
for c in range(3):
    for rt in range(2):
        n = 2 * c + rt
        gelu_tile(ACC + 32 * c + 16 * rt, 20 + 2 * rt, 32 + 4 * n, pf[(26 * n) // 6:(26 * (n + 1)) // 6] if PFMODE == 0 else ())
for c in range(3):
    for rt in range(2):
        hstore(32 + 4 * (2 * c + rt), (sH0, sH1)[rt], 1024 * c)
stamp(12)
if PFMODE == 1:
    for g in pf:
        for x in g:
            a(x)
    a("s_waitcnt vmcnt(26)")
else:
    a("s_waitcnt vmcnt(0)")
flag_store(243, vFT)
stamp(4)
a("s_branch Ldown")

Q, O, S_, KV, vIdx = 0, 32, 96, 160, 224
sKV, sQb = sOA, sOB


vKV = 231


def kvload(b, part, va=vKV):
    for i in range(2):
        a("buffer_load_dwordx4 %s, %s, %s, %s offen offset:%d sc1" % (
            v(KV + 16 * b + 8 * part + 4 * i, 4), v(va), s(rWS, 4), s(sKV), 2048 * part + 1024 * i))


def qk(n, half):
    kt, u = n >> 2, n & 3
    K = KV + 16 * (kt & 3) + 4 * half
    d = S_ + 16 * u
    return "v_mfma_f32_32x32x16_bf16 %s, %s, %s, %s" % (v(d, 16), v(K, 4), v(Q + 8 * u + 4 * half, 4), v(d, 16) if half else "0")


def pv(n, half):
    kt, u = n >> 2, n & 3
    V = KV + 16 * (kt & 3) + 8 + 4 * half
    return "v_smfmac_f32_32x32x32_bf16 %s, %s, %s, %s" % (v(O + 16 * u, 16), v(V, 4), v(S_ + 16 * u + 8 * half, 8), v(vIdx))


def slot(n, last=False, extra=None):
    u = n & 3
    extra = extra or {}
    e = ["v_exp_f32 %s, %s" % (v(S_ + 16 * u + i), v(S_ + 16 * u + i)) for i in range(16)]
    if not last:
        seq = [qk(n + 1, 0)] + e[0:3] + [qk(n + 1, 1)] + e[3:6]
    else:
        seq = e[0:6]
    seq += [pv(n - 1, 0)] + e[6:9] + [pv(n - 1, 1)] + e[9:16]
    for i, x in enumerate(seq):
        for y in extra.get(i, []):
            a(y)
        a(x)


a.label("Lattn")
a("s_setprio 2")
a("s_lshl_b32 s11, %s, 3" % s(sW))
a("v_and_b32 v16, 7, %s" % v(vLane))
a("v_add_u32 v16, s11, v16")
a("v_bfe_u32 v17, %s, 3, 1" % v(vLane))
a("v_lshlrev_b32 v17, 4, v17")
a("s_add_u32 s12, %s, 16" % s(sH))
a("v_add_u32 v17, s12, v17")
a("v_lshl_add_u32 v16, v17, 5, v16")
a("s_lshl_b32 s11, %s, 5" % s(sH))
a("s_lshl_b32 s12, %s, 1" % s(sMA))
a("s_add_u32 s11, s11, s12")
a("v_and_b32 v17, 1, %s" % v(vLane))
a("v_add_u32 v17, s11, v17")
a("v_cmp_gt_u32 vcc, 16, %s" % v(vLane))
a("s_mov_b32 s11, 0x%x" % FQ_OFF)
a("s_nop 0")
a("v_cndmask_b32 v16, v17, v16, vcc")
a("v_lshl_add_u32 %s, v16, 7, s11" % v(vFA))
for i in range(64):
    a("v_mov_b32 %s, 0" % v(O + i))
for i in range(16):
    a("v_mov_b32 %s, 0" % v(S_ + 48 + i))
for i in range(8):
    a("v_mov_b32 %s, 0" % v(KV + 48 + 8 + i))
a("v_mov_b32 %s, 0xdddd" % v(vIdx))
a("s_lshl_b32 s11, %s, 6" % s(sH))
a("s_lshl_b32 s12, %s, 4" % s(sW))
a("s_add_u32 s12, s12, s11")
a("s_lshl_b32 s12, s12, 12")
a("v_add_u32 %s, s12, %s" % (v(vKV), v(vL16)))
a("s_lshl_b32 %s, %s, 12" % (s(sKV), s(sMA)))
if not ROT & 2:
    a("s_mov_b32 %s, 0" % s(sKV))
a("s_lshl_b32 s12, %s, 2" % s(sMA))
a("s_add_u32 s11, s11, s12")
a("s_lshl_b32 s11, s11, 11")
a("s_add_u32 %s, s11, 0x%x" % (s(sQb), Q_OFF))
poll(vFA, vFT)
stamp(5)
kvload(0, 0)
for u in range(4):
    a("s_add_u32 s11, %s, %d" % (s(sW), u + 1))
    a("s_and_b32 s11, s11, 3")
    a("s_lshl_b32 s11, s11, 11")
    a("s_add_u32 s11, s11, %s" % s(sQb))
    for i in range(2):
        a("buffer_load_dwordx4 %s, %s, %s, s11 offen offset:%d sc1" % (v(Q + 8 * u + 4 * i, 4), v(vL16), s(rWS, 4), 1024 * i))
kvload(0, 1)
for b in (1, 2):
    a("s_add_u32 %s, %s, 4096" % (s(sKV), s(sKV)))
    a("s_and_b32 %s, %s, 0xffff" % (s(sKV), s(sKV)))
    kvload(b, 0)
    kvload(b, 1)
for u in range(3):
    a("s_add_u32 s11, %s, %d" % (s(sW), u + 1))
    a("s_and_b32 s11, s11, 3")
    a("s_mul_i32 s11, s11, 12288")
    a("s_add_u32 s11, s11, %d" % (PB + 4096 * u))
    a("v_add_u32 %s, s11, %s" % (v(225 + u), v(vL16)))
a("s_mov_b32 %s, 0" % s(sIt))
a("s_waitcnt vmcnt(8)")
stamp(6)
a(qk(0, 0))
a(qk(0, 1))
a("s_nop 10")
a(".p2align 5")
a.label("Lattn_loop")


def kv_extra(kt, loads=True, wait=8):
    b = (kt + 3) & 3
    ex = [{}, {}, {}, {}]
    if loads:
        ld = lambda part, i: "buffer_load_dwordx4 %s, %s, %s, %s offen offset:%d sc1" % (
            v(KV + 16 * b + 8 * part + 4 * i, 4), v(vKV), s(rWS, 4), s(sKV), 2048 * part + 1024 * i)
        ex[0] = {15: ["s_add_u32 %s, %s, 4096" % (s(sKV), s(sKV))], 17: ["s_and_b32 %s, %s, 0xffff" % (s(sKV), s(sKV))]}
        ex[1] = {15: [ld(0, 0)], 17: [ld(0, 1)]}
        ex[2] = {15: [ld(1, 0)], 17: [ld(1, 1)]}
    if wait is not None:
        ex[3] = {0: ["s_waitcnt vmcnt(%d)" % wait]}
    return ex


for kt in range(4):
    ex = kv_extra(kt)
    for u in range(4):
        slot(4 * kt + u, extra=ex[u])
a("s_add_u32 %s, %s, 1" % (s(sIt), s(sIt)))
a("s_cmp_lt_u32 %s, 3" % s(sIt))
a("s_cbranch_scc1 Lattn_loop")
for kt in range(4):
    ex = kv_extra(kt, loads=(kt == 0), wait=(8, 4, 0, None)[kt])
    for u in range(4):
        n = 4 * kt + u
        e = dict(ex[u])
        if kt == 3 and u >= 2:
            for qd in range(4):
                e.setdefault(5 + 2 * qd, []).append(
                    "ds_write_b128 %s, %s offset:%d" % (v(225 + u - 2), v(O + 16 * (u - 2) + 4 * qd, 4), 1024 * qd))
        slot(n, last=(n == 15), extra=e)
a(pv(15, 0))
a("v_mov_b32 v225, %d" % CNT)
a("v_mov_b32 v226, 1")
a("s_mul_i32 s11, %s, 12288" % s(sW))
a(pv(15, 1))
for qd in range(4):
    a("ds_write_b128 %s, %s offset:%d" % (v(227), v(O + 32 + 4 * qd, 4), 1024 * qd))
stamp(7)
a("v_add_u32 v227, s11, %s" % v(vL16))
a("s_waitcnt lgkmcnt(0)")
a("ds_add_u32 v225, v226")
a("s_mov_b32 %s, %d" % (s(sSpin), SPIN_MAX))
a.label("Lasync")
a("ds_read_b32 v226, v225")
a("s_waitcnt lgkmcnt(0)")
a("v_readfirstlane_b32 s11, v226")
a("s_sub_u32 %s, %s, 1" % (s(sSpin), s(sSpin)))
a("s_cbranch_scc1 Lasync_done")
a("s_cmp_lt_u32 s11, 256")
a("s_cbranch_scc1 Lasync")
a.label("Lasync_done")
OW = O + 48
for u in range(3):
    for qd in range(4):
        a("ds_read_b128 %s, v227 offset:%d" % (v(S_ + 16 * u + 4 * qd, 4), PB + 4096 * u + 1024 * qd))
a("s_lshl_b32 s11, %s, 2" % s(sMA))
a("s_add_u32 s11, s11, %s" % s(sW))
a("s_lshl_b32 s12, s11, 4")
a("s_add_u32 s12, s12, %s" % s(sH))
a("s_lshl_b32 s13, s12, 11")
a("s_add_u32 %s, s13, 0x%x" % (s(sOC), O_OFF))
a("s_lshl_b32 s12, s12, 7")
a("s_add_u32 s12, s12, 0x%x" % FO_OFF)
a("v_mov_b32 %s, s12" % v(vFA))
for u in range(3):
    a("s_waitcnt lgkmcnt(%d)" % (8 - 4 * u))
    for p in range(8):
        a("v_pk_add_f32 %s, %s, %s" % (v(OW + 2 * p, 2), v(OW + 2 * p, 2), v(S_ + 16 * u + 2 * p, 2)))
a("v_pk_mul_f32 v[228:229], %s, 0 op_sel_hi:[1,0]" % v(OW, 2))
a("v_pk_mul_f32 v[232:233], %s, 0 op_sel_hi:[1,0]" % v(OW + 2, 2))
for p in range(2, 8):
    t = 228 if p % 2 == 0 else 232
    a("v_pk_fma_f32 %s, %s, 0, %s op_sel_hi:[1,0,1]" % (v(t, 2), v(OW + 2 * p, 2), v(t, 2)))
a("v_subrev_u32 v226, 0x%x, %s" % (f2u(2.0 ** -40), v(OW + 12)))
a("v_pk_add_f32 v[228:229], v[228:229], v[232:233]")
a("v_cmp_lt_u32 vcc, 0x%x, v226" % (f2u(2.0 ** 40) - f2u(2.0 ** -40)))
a("v_cmp_u_f32 %s, v228, v229" % s(sP, 2))
a("s_and_b64 vcc, vcc, %s" % s(mHI, 2))
a("s_or_b64 vcc, vcc, %s" % s(sP, 2))
if FORCE_FB:
    a("s_mov_b64 vcc, -1")
a("s_cbranch_vccnz Lfallback")
a.label("Lnormalize")
a("v_rcp_f32 v225, %s" % v(OW + 12))
a("v_lshlrev_b32 v226, 16, %s" % v(Q + 24 + 6))
a("v_mul_f32 v226, v225, v226")
a("v_mov_b32 v228, v226")
a("s_nop 1")
a("v_permlane32_swap_b32 v226, v228")
a("s_nop 1")
for p in range(8):
    a("v_pk_mul_f32 %s, %s, v[228:229] op_sel_hi:[1,0]" % (v(OW + 2 * p, 2), v(OW + 2 * p, 2)))
for p in range(8):
    a("v_cvt_pk_bf16_f32 %s, %s, %s" % (v(S_ + p), v(OW + 2 * p), v(OW + 2 * p + 1)))
a("v_cndmask_b32 %s, %s, %s, %s" % (v(S_ + 6), v(S_ + 6), v(vZero), s(mHI, 2)))
a("v_cndmask_b32 %s, %s, %s, %s" % (v(S_ + 7), v(S_ + 7), v(vZero), s(mHI, 2)))
a("buffer_store_dwordx4 %s, %s, %s, %s offen sc1" % (v(S_, 4), v(vL16), s(rWS, 4), s(sOC)))
a("buffer_store_dwordx4 %s, %s, %s, %s offen offset:1024 sc1" % (v(S_ + 4, 4), v(vL16), s(rWS, 4), s(sOC)))
for i in range(32):
    a("v_mov_b32 %s, 0" % v(i))
a("s_waitcnt vmcnt(0)")
flag_store(vFA, vFT)
stamp(8)
a("s_cmp_eq_u32 %s, 0" % s(sFin))
a("s_cbranch_scc1 Lexit")
a("s_mov_b32 %s, 1" % s(sHalf))
a("s_branch Ltail")

a.label("Lfallback")
a("s_lshl_b32 %s, %s, 18" % (s(sKV), s(sH)))
a("v_mov_b32 v225, 0xff800000")
a("s_mov_b32 %s, 0" % s(sIt))
a.label("Lfb1")
kvload(0, 0, vL16)
a("s_waitcnt vmcnt(0)")
a(qk(3, 0))
a(qk(3, 1))
a("s_nop 11")
for i in range(0, 16, 2):
    a("v_max3_f32 v225, %s, %s, v225" % (v(S_ + 48 + i), v(S_ + 49 + i)))
a("s_add_u32 %s, %s, 4096" % (s(sKV), s(sKV)))
a("s_add_u32 %s, %s, 1" % (s(sIt), s(sIt)))
a("s_cmp_lt_u32 %s, 64" % s(sIt))
a("s_cbranch_scc1 Lfb1")
a("v_mov_b32 v226, v225")
a("s_nop 1")
a("v_permlane32_swap_b32 v225, v226")
a("s_nop 1")
a("v_max_f32 v225, v225, v226")
for i in range(16):
    a("v_mov_b32 %s, 0" % v(OW + i))
a("s_lshl_b32 %s, %s, 18" % (s(sKV), s(sH)))
a("s_mov_b32 %s, 0" % s(sIt))
a.label("Lfb2")
kvload(0, 0, vL16)
kvload(0, 1, vL16)
a("s_waitcnt vmcnt(0)")
a(qk(3, 0))
a(qk(3, 1))
a("s_nop 11")
for i in range(16):
    a("v_sub_f32 %s, %s, v225" % (v(S_ + 48 + i), v(S_ + 48 + i)))
for i in range(16):
    a("v_exp_f32 %s, %s" % (v(S_ + 48 + i), v(S_ + 48 + i)))
a("s_nop 1")
a(pv(3, 0))
a(pv(3, 1))
a("s_add_u32 %s, %s, 4096" % (s(sKV), s(sKV)))
a("s_add_u32 %s, %s, 1" % (s(sIt), s(sIt)))
a("s_cmp_lt_u32 %s, 64" % s(sIt))
a("s_cbranch_scc1 Lfb2")
a("s_nop 11")
a("s_branch Lnormalize")

DA, HB, WF = 0, 64, 128


def dr_setup():
    a("s_and_b32 s12, %s, 3" % s(sW))
    a("s_mul_i32 s13, s12, %d" % DREG)
    a("s_add_u32 s13, s13, %d" % DB)
    a("v_bfe_u32 v240, %s, 2, 2" % v(vLane))
    a("v_lshrrev_b32 v243, 5, %s" % v(vLane))
    a("v_lshl_add_u32 v243, v243, 2, v240")
    a("v_lshl_add_u32 v243, v243, 7, s13")
    a("v_lshrrev_b32 v240, 1, v240")
    a("v_lshlrev_b32 v240, 6, v240")
    a("v_bfe_u32 v244, %s, 4, 1" % v(vLane))
    a("v_add_u32 v244, s12, v244")
    a("v_and_b32 v245, 3, %s" % v(vLane))
    a("v_lshlrev_b32 v245, 3, v245")
    for ct in range(2):
        a("v_add_u32 v246, %d, v244" % (2 * ct))
        a("v_and_b32 v246, 3, v246")
        a("v_lshl_add_u32 v246, v246, 5, v245")
        a("v_xor_b32 v246, v246, v240")
        a("v_add_u32 %s, v246, v243" % v(vDr + ct))


a.label("Ldown")
a("s_cmp_eq_u32 %s, 0" % s(sFin))
a("s_cbranch_scc1 Lexit")
dr_setup()
a("s_mul_i32 s11, s12, 7")
a("s_lshr_b32 s11, s11, 1")
a("s_lshl_b32 s13, %s, 4" % s(sR))
a("s_add_u32 s11, s11, s13")
a("s_lshl_b32 s11, s11, 9")
a("s_add_u32 s11, s11, 0x%x" % FH_OFF)
a("s_cmp_eq_u32 s12, 3")
a("s_cselect_b32 s13, 23, 15")
a("v_min_u32 v240, s13, %s" % v(vLane))
a("v_lshl_add_u32 %s, v240, 7, s11" % v(vFA))
a("s_mul_i32 s11, %s, 229376" % s(sR))
a("s_mul_i32 s13, s12, 28672")
a("s_add_u32 s11, s11, s13")
a("s_add_u32 s11, s11, 0x%x" % H_OFF)
a("v_add_u32 %s, s11, %s" % (v(vH0), v(vL16)))
a("s_lshl_b32 %s, %s, 10" % (s(sOA), s(sTr)))
a("s_mul_i32 %s, s12, %d" % (s(sOB), 112 * 896))
a("v_add_u32 %s, 114688, %s" % (v(vH1), v(vH0)))
for i in range(64):
    a("v_mov_b32 %s, 0" % v(DA + i))
poll(vFA, vFT)
stamp(5)
vmq = []


def hload(i):
    for rt in range(2):
        a("buffer_load_dwordx4 %s, %s, %s, %s offen sc1" % (
            v(HB + 8 * (i & 7) + 4 * rt, 4), v((vH0, vH1)[rt]), s(rWS, 4), s(sOA)))
        vmq.append(("h", i))
    a("s_add_u32 %s, %s, 1024" % (s(sOA), s(sOA)))
    a("s_cmp_eq_u32 %s, 28672" % s(sOA))
    a("s_cselect_b32 %s, 0, %s" % (s(sOA), s(sOA)))


def vm_wait(tags):
    idx = [k for k, t in enumerate(vmq) if t in tags]
    return None if not idx else len(vmq) - 1 - max(idx)


def wreads(dst, off):
    for ct in range(2):
        for jj in range(2):
            a("ds_read_b64_tr_b16 %s, %s offset:%d" % (v(dst + 4 * ct + 2 * jj, 2), v(vDr + ct), off + 1024 * jj))


for i in range(8):
    hload(i)
wreads(WF, 0)
for i in range(28):
    n = vm_wait({("h", i), ("w", i + 1)})
    a("s_waitcnt vmcnt(%d) lgkmcnt(0)" % n)
    if i + 1 < 28:
        wreads(WF + 8 * ((i + 1) & 1), ((i + 1) % 13) * 2048)
    for rt in range(2):
        for ct in range(2):
            mfma(DA + 32 * rt + 16 * ct, WF + 8 * (i & 1) + 4 * ct, HB + 8 * (i & 7) + 4 * rt)
    if i <= 14:
        for e in range(2):
            for x in dma_lines(vDd, rWD, sOC, sWd, (i % 13) * 2048 + 1024 * e):
                a(x)
            for x in wd_adv(e):
                a(x)
            vmq.append(("w", i + 13))
    elif i <= 22:
        for e in range(2):
            for x in dma_lines(vDd, rWO, sOB, sWd, (i % 13) * 2048 + 1024 * e):
                a(x)
            a("s_add_u32 %s, %s, 7168" % (s(sOB), s(sOB)))
            vmq.append(("o", i))
    if i + 8 < 28:
        hload(i + 8)
stamp(7)
a("v_add_u32 v240, %s, %s" % (s(sWd), v(vL16)))
a("s_nop 10")
for o in range(4):
    for q in range(2):
        a("ds_write_b128 v240, %s offset:%d" % (v(DA + 32 + 8 * o + 4 * q, 4), (o >> 1) * 20480 + (o & 1) * 2048 + 1024 * q))
a("s_mov_b32 %s, 0" % s(sHalf))
stamp(8)
a("s_branch Ltail2")

OF, WOF, RR = 64, 128, 96
a.label("Ltail")
dr_setup()
a.label("Ltail2")
a("s_and_b32 s12, %s, 3" % s(sW))
a("s_lshl_b32 s11, %s, 1" % s(sR))
a("s_add_u32 s14, s11, %s" % s(sHalf))
a("s_lshl_b32 s11, s14, 2")
a("s_add_u32 s11, s11, s12")
a("s_lshl_b32 s13, s11, 13")
a("s_add_u32 %s, s13, 0x%x" % (s(sOA), O_OFF))
a("s_add_u32 %s, %s, 4096" % (s(sOB), s(sOA)))
a("s_lshl_b32 s11, s11, 9")
a("s_add_u32 s11, s11, 0x%x" % FO_OFF)
a("v_and_b32 v240, 3, %s" % v(vLane))
a("v_lshl_add_u32 %s, v240, 7, s11" % v(vFA))
srd(rOUT, pOUT, 2048 * 896)
a("v_and_b32 v240, 31, %s" % v(vLane))
a("s_lshl_b32 s14, s14, 5")
a("v_add_u32 v240, s14, v240")
a("v_mul_u32_u24 v240, 896, v240")
a("v_lshrrev_b32 v243, 5, %s" % v(vLane))
a("v_lshlrev_b32 v243, 4, v243")
a("s_lshl_b32 s13, %s, 7" % s(sT))
a("s_lshl_b32 s14, s12, 5")
a("s_add_u32 s13, s13, s14")
a("v_add3_u32 v247, v240, v243, s13")
a("s_mul_i32 s15, %s, 24576" % s(sHalf))
for o in range(1, 4):
    a("s_add_u32 s11, s12, %d" % o)
    a("s_and_b32 s11, s11, 3")
    a("s_mul_i32 s11, s11, 6144")
    a("s_add_u32 s11, s11, s15")
    a("s_add_u32 s11, s11, %d" % (PB + 2048 * (o - 1)))
    a("v_add_u32 %s, s11, %s" % (v(232 + o), v(vL16)))
a("s_mul_i32 s11, s12, 6144")
a("s_add_u32 s11, s11, s15")
a("v_add_u32 v232, s11, %s" % v(vL16))
for k in range(4):
    a("s_sub_u32 s11, s12, %d" % k)
    a("s_and_b32 s11, s11, 3")
    a("s_lshr_b32 s13, s11, 1")
    a("s_mul_i32 s13, s13, 20480")
    a("s_and_b32 s11, s11, 1")
    a("s_lshl_b32 s11, s11, 11")
    a("s_add_u32 s11, s11, s13")
    a("s_add_u32 s11, s11, %d" % (DB + k * DREG))
    a("v_add_u32 %s, s11, %s" % (v(236 + k), v(vL16)))
poll(vFA, vFT)
stamp(9)
for k in range(8):
    a("buffer_load_dwordx4 %s, %s, %s, %s offen offset:%d sc1" % (v(OF + 4 * k, 4), v(vL16), s(rWS, 4), s((sOA, sOB)[k >> 2]), 1024 * (k & 3)))
a("s_waitcnt lgkmcnt(0)")
a("s_barrier")
for k in range(8):
    wreads(WOF + 8 * k, 4096 + (28 * (k >> 1) + 16 * (k & 1)) * 128)
    if k in (2, 4, 6):
        a("s_waitcnt lgkmcnt(4)")
for k in range(8):
    a("s_waitcnt vmcnt(%d) lgkmcnt(0)" % (7 - k))
    for ct in range(2):
        mfma(16 * ct, WOF + 8 * k + 4 * ct, OF + 4 * k)
stamp(10)
a("s_nop 11")
for o in range(1, 4):
    for q in range(2):
        a("ds_write_b128 %s, %s offset:%d" % (v(232 + o), v(8 * o + 4 * q, 4), 1024 * q))
a("s_waitcnt lgkmcnt(0)")
a("s_barrier")
for u in range(3):
    for q in range(2):
        a("ds_read_b128 %s, v232 offset:%d" % (v(RR + 8 * u + 4 * q, 4), PB + 2048 * u + 1024 * q))
a("s_cmp_eq_u32 %s, 0" % s(sHalf))
a("s_cbranch_scc1 Lfin_sum")
for k in range(4):
    for q in range(2):
        a("ds_read_b128 %s, %s offset:%d" % (v(WOF + 8 * k + 4 * q, 4), v(236 + k), 1024 * q))
a("s_waitcnt lgkmcnt(0)")
for k in range(4):
    for p in range(4):
        a("v_pk_add_f32 %s, %s, %s" % (v(2 * p, 2), v(2 * p, 2), v(WOF + 8 * k + 2 * p, 2)))
a.label("Lfin_sum")
a("s_waitcnt lgkmcnt(0)")
for u in range(3):
    for p in range(4):
        a("v_pk_add_f32 %s, %s, %s" % (v(2 * p, 2), v(2 * p, 2), v(RR + 8 * u + 2 * p, 2)))
for p in range(4):
    a("v_cvt_pk_bf16_f32 %s, %s, %s" % (v(8 + p), v(2 * p), v(2 * p + 1)))
a("s_nop 1")
a("v_permlane32_swap_b32 v8, v10")
a("v_permlane32_swap_b32 v9, v11")
if LEAK:
    a("s_memrealtime s[100:101]")
    a("s_waitcnt lgkmcnt(0)")
    a("v_sub_u32 v240, s100, v253")
    a("v_cmp_lt_u32 vcc, %d, v240" % LEAK)
    a("v_mov_b32 v241, 0x7fc07fc0")
    srd(rT, pDBG, 256)
    a("buffer_load_dword v242, %s, %s, 0 offen offset:8 sc1" % (v(vZero), s(rT, 4)))
    a("s_waitcnt vmcnt(0)")
    a("v_readfirstlane_b32 s12, v242")
    a("s_nop 1")
    a("s_cmp_eq_u32 s12, 0")
    a("s_cselect_b64 vcc, vcc, 0")
    a("s_nop 1")
    a("v_cndmask_b32 v8, v8, v241, vcc")
a("buffer_store_dwordx4 v[8:11], v247, %s, 0 offen" % s(rOUT, 4))
a.label("Lexit")
if PROF:
    stamp(11)
    a("s_memrealtime %s" % s(sStamp, 2))
    a("s_waitcnt lgkmcnt(0)")
    a("v_writelane_b32 %s, %s, 17" % (v(vProf), s(sStamp)))
    a("s_lshl_b32 s11, s2, 3")
    a("s_add_u32 s11, s11, %s" % s(sW))
    a("s_lshl_b32 s11, s11, 7")
    a("s_add_u32 s11, s11, 0x%x" % PROF_OFF)
    a("v_lshl_add_u32 v240, %s, 2, s11" % v(vLane))
    a("s_mov_b64 exec, 0xffffffff")
    a("buffer_store_dword %s, v240, %s, 0 offen" % (v(vProf), s(rWS, 4)))
if DBGT:
    a("s_waitcnt vmcnt(0)")
    a("s_memrealtime s[100:101]")
    a("s_memtime s[98:99]")
    srd(rT, pDBG, 256)
    a("s_waitcnt lgkmcnt(0)")
    a("s_and_b32 s11, s2, 31")
    a("s_add_u32 s11, s11, %s" % s(sW))
    a("s_cmp_lg_u32 s11, 0")
    a("s_cbranch_scc1 Lend")
    a("s_cmp_ge_u32 s2, 160")
    a("s_cbranch_scc1 Lend")
    a("s_lshr_b32 s11, s2, 5")
    a("s_mul_i32 s11, s11, 12")
    a("v_mov_b32 v240, v253")
    a("v_sub_u32 v241, s100, v253")
    a("v_sub_u32 v242, s98, v254")
    a("s_mov_b64 exec, 1")
    a("buffer_store_dwordx3 v[240:242], %s, %s, s11 offen offset:4" % (v(vZero), s(rT, 4)))
a.label("Lend")
a("s_endpgm")

if STF != "sc1":
    a.L = [(l[:-4] + (" " + STF.replace("+", " ") if STF != "none" else "")) if l.startswith("buffer_store_dwordx4") and l.endswith(" sc1") else l for l in a.L]
bad = check(a.L)
if bad:
    print("%d hazards" % len(bad))

head = open("cdna_kernels/%s.s.ref" % NAME).read().split("; Override launch")[0]
txt = head + "; @launch grid=(256,1,1) block=(512,1,1) lds=%d\n" % LDS_BYTES
txt += '.amdgcn_target "amdgcn-amd-amdhsa--gfx950"\n.text\n.globl %s_kernel\n.p2align 8\n.type %s_kernel,@function\n' % (NAME, NAME)
txt += a.text()
txt += """.section .rodata,"a"
.p2align 6
.amdhsa_kernel %s_kernel
  .amdhsa_next_free_vgpr 256
  .amdhsa_next_free_sgpr 102
  .amdhsa_accum_offset 256
  .amdhsa_group_segment_fixed_size 0
  .amdhsa_kernarg_size 88
  .amdhsa_user_sgpr_count 2
  .amdhsa_user_sgpr_kernarg_segment_ptr 1
  .amdhsa_system_sgpr_workgroup_id_x 1
.end_amdhsa_kernel
""" % NAME
open(OUT, "w").write(txt)
print("wrote", OUT, len(a.L), "lines")
```

```python
import sys, struct, math
from asmlib import Asm, v, s, check

NAME = "gated_mix__mha_block__glu_gated_geglu__prompt"
PROF = "--prof" in sys.argv
FORCE_FB = "--force-fallback" in sys.argv
def opt(name, default):
    for x in sys.argv:
        if x.startswith("--%s=" % name):
            return type(default)(x.split("=")[1])
    return default
SLEEP = opt("sleep", 1)
STF = opt("stf", "sc1")
PFMODE = opt("pf", 0)
ROT = opt("rot", 7)
RN = opt("rn", 7)
DBGT = "--dbgt" in sys.argv
LEAK = opt("leak", 0)
OUT = [a for a in sys.argv[1:] if not a.startswith("--")]
OUT = OUT[0] if OUT else "cdna_kernels/%s.s" % NAME


def f2u(x):
    return struct.unpack("<I", struct.pack("<f", x))[0]


KV_OFF, Q_OFF, H_OFF, O_OFF = 0, 0x400000, 0x600000, 0xD00000
FQ_OFF, FH_OFF, FO_OFF, E_OFF, PROF_OFF = 0xF00000, 0xF40000, 0xF80000, 0xFA0000, 0xFC0000
WS_BYTES = 0x1000000
XB, WB, TB, EX, CNT = 0, 49152, 155648, 159744, 160768
WSLOT = 20480
PB, DB, DREG = 0, 49152, 26624
LDS_BYTES = 163840
SPIN_MAX = 1 << 18

sB, sW, sM, sJ, sH, sMA, sR, sT, sNON = 2, 3, 4, 5, 6, 7, 8, 9, 10
t0, t1, t2, t3, t4 = 11, 12, 13, 14, 15
pX, pQKV, pWO, pWG, pWU, pWD, pGW, pOUT, pDBG, pWS = 16, 18, 20, 24, 26, 28, 30, 32, 34, 36
t5, t6 = 38, 39
rA, rB, rC, rWS, rWD, rWO, rOUT, rT = 40, 44, 48, 52, 56, 60, 64, 68
sIt, sOA, sOB, sOC, sSA, sSB, sSC = 72, 73, 74, 75, 76, 77, 78
sWr, sWd, sXs, sXp, sXo, sTr, sX0 = 79, 80, 81, 82, 83, 84, 85
sHalf, sCg, sFin, sSpin = 86, 87, 88, 89
mHI, mT, kG, kS = 90, 92, 94, 96
sP = 98
sStamp = 100
vL16, vLane, vZero = 250, 251, 252
vProf = 230

a = Asm()
nstamp = [0]


def stamp(k):
    if not PROF:
        return
    a("s_memtime %s" % s(sStamp, 2))
    a("s_waitcnt lgkmcnt(0)")
    a("v_writelane_b32 %s, %s, %d" % (v(vProf), s(sStamp), k))


def srd(r, p, nbytes):
    a("s_mov_b32 %s, %s" % (s(r), s(p)))
    a("s_mov_b32 %s, %s" % (s(r + 1), s(p + 1)))
    a("s_mov_b32 %s, 0x%x" % (s(r + 2), nbytes))
    a("s_mov_b32 %s, 0x20000" % s(r + 3))


def mfma(d, A, B, C=None):
    c = v(d, 16) if C is None else C
    a("v_mfma_f32_32x32x16_bf16 %s, %s, %s, %s" % (v(d, 16), v(A, 4), v(B, 4), c))


def dma(vo, r, so, m0src, m0add=0):
    if m0add:
        a("s_add_u32 m0, %s, %d" % (s(m0src), m0add))
    else:
        a("s_mov_b32 m0, %s" % s(m0src))
    a("s_nop 0")
    a("buffer_load_dwordx4 %s, %s, %s offen lds" % (v(vo), s(r, 4), s(so)))


uid = [0]


def L(p):
    uid[0] += 1
    return "L%s_%d" % (p, uid[0])


def poll(vaddr, vtmp):
    lp, done = L("poll"), L("pdone")
    a("s_mov_b32 %s, %d" % (s(sSpin), SPIN_MAX))
    a.label(lp)
    a("buffer_load_dword %s, %s, %s, 0 offen sc1" % (v(vtmp), v(vaddr), s(rWS, 4)))
    a("s_waitcnt vmcnt(0)")
    a("v_cmp_ne_u32 vcc, %s, %s" % (s(sNON), v(vtmp)))
    a("s_nop 1")
    a("s_cbranch_vccz %s" % done)
    a("s_sub_u32 %s, %s, 1" % (s(sSpin), s(sSpin)))
    a("s_cbranch_scc1 %s" % done)
    a("s_sleep %d" % SLEEP)
    a("s_branch %s" % lp)
    a.label(done)


def get_nonce(vn, vtmp):
    lp, done = L("non"), L("ndone")
    a("s_mov_b32 %s, %d" % (s(sSpin), SPIN_MAX))
    a.label(lp)
    a("v_readfirstlane_b32 %s, %s" % (s(sNON), v(vn)))
    a("s_nop 1")
    a("s_cmp_lg_u32 %s, 0" % s(sNON))
    a("s_cbranch_scc1 %s" % done)
    a("s_sub_u32 %s, %s, 1" % (s(sSpin), s(sSpin)))
    a("s_cbranch_scc1 %s" % done)
    a("buffer_load_dword %s, %s, %s, 0 offen sc1" % (v(vn), v(vZero), s(rT, 4)))
    a("s_waitcnt vmcnt(0)")
    a("s_branch %s" % lp)
    a.label(done)


def flag_store(vaddr, vtmp, nlanes=1):
    a("v_mov_b32 %s, %s" % (v(vtmp), s(sNON)))
    a("s_mov_b64 exec, %d" % ((1 << nlanes) - 1))
    a("buffer_store_dword %s, %s, %s, 0 offen sc1" % (v(vtmp), v(vaddr), s(rWS, 4)))
    a("s_mov_b64 exec, -1")


a.label(NAME + "_kernel")
a("s_cmp_ge_u32 s2, 256")
a("s_cbranch_scc1 Lend")
if "--badmap" in sys.argv:
    a("s_lshr_b32 s11, s2, 5")
    a("s_and_b32 s2, s2, 31")
    a("s_lshl_b32 s2, s2, 3")
    a("s_or_b32 s2, s2, s11")
a("s_load_dwordx16 s[16:31], s[0:1], 0")
a("s_load_dwordx4 s[32:35], s[0:1], 64")
a("s_load_dwordx2 s[36:37], s[0:1], 80")
if PROF:
    a("v_mov_b32 %s, 0" % v(vProf))
    a("s_memrealtime %s" % s(sStamp, 2))
    a("s_waitcnt lgkmcnt(0)")
    a("v_writelane_b32 %s, %s, 16" % (v(vProf), s(sStamp)))
    stamp(14)
if DBGT or LEAK:
    a("s_memrealtime s[100:101]")
    a("s_memtime s[98:99]")
    a("s_waitcnt lgkmcnt(0)")
    a("v_mov_b32 v253, s100")
    a("v_mov_b32 v254, s98")
a("v_lshrrev_b32 v1, 6, v0")
a("v_and_b32 %s, 63, v0" % v(vLane))
a("v_readfirstlane_b32 %s, v1" % s(sW))
a("v_lshlrev_b32 %s, 4, %s" % (v(vL16), v(vLane)))
a("v_mov_b32 %s, 0" % v(vZero))
sCol, sSpec = 5, 39
a("""
s_and_b32 s11, s2, 7
s_lshr_b32 s12, s2, 3
s_and_b32 s13, s11, 1
s_lshl_b32 s13, s13, 3
s_and_b32 s14, s12, 7
s_add_u32 s4, s13, s14
s_lshr_b32 s13, s11, 1
s_lshr_b32 s14, s12, 3
s_mul_i32 s15, s13, 3
s_add_u32 s15, s15, s14
s_add_u32 s13, s13, 12
s_cmp_eq_u32 s14, 3
s_cselect_b32 s5, s13, s15
s_cselect_b32 s39, 1, 0
""")
a("s_and_b32 %s, %s, 1" % (s(sHalf), s(sW)))
a("s_lshr_b32 %s, %s, 1" % (s(sCg), s(sW)))

vWb, vWa, vXb, vXa0, vXa1, vTb, vDA, vDB, vDC, vDC2 = 1, 4, 7, 8, 9, 10, 11, 12, 13, 14
a("""
v_lshrrev_b32 v16, 3, v251
v_and_b32 v17, 7, v251
v_bfe_u32 v25, v16, 1, 1
v_lshlrev_b32 v25, 2, v25
v_xor_b32 v25, v25, v17
v_lshlrev_b32 v25, 4, v25
""")
a("s_and_b32 s12, %s, 3" % s(sW))
a("s_lshl_b32 s13, s12, 3")
a("s_lshl_b32 s15, s12, 10")
a("v_add_u32 v26, s13, v16")
a("v_mul_u32_u24 v27, 3584, v26")
a("v_mul_u32_u24 v28, 2688, v26")
a("v_xor_b32 v29, 32, v25")
a("s_lshl_b32 s13, %s, 8" % s(sCol))
a("s_add_u32 s14, %s, 12" % s(sCol))
a("s_lshl_b32 s14, s14, 7")
a("s_cmp_eq_u32 %s, 1" % s(sSpec))
a("s_cselect_b32 s38, s14, s13")
a("s_lshr_b32 s12, s2, 3")
a("s_and_b32 s13, s12, 7")
a("s_lshr_b32 s12, s12, 3")
a("s_lshl_b32 s12, s12, 1")
a("s_add_u32 s12, s12, s13")
a("s_sub_u32 s13, s12, 7")
a("s_cselect_b32 %s, s12, s13" % s(sXp))
if not ROT & 1:
    a("s_mov_b32 %s, 0" % s(sXp))
if RN in (2, 4):
    a("s_lshr_b32 s12, s2, 3")
    a("s_lshr_b32 s13, s12, 3")
    a("s_add_u32 s12, s12, s13")
    a("s_and_b32 s12, s12, %d" % (RN - 1))
    a("s_mul_i32 s12, s12, 7")
    a("s_add_u32 s12, s12, %d" % (RN // 2))
    a("s_lshr_b32 %s, s12, %d" % (s(sXp), RN // 2))
if RN == 3:
    a("s_lshr_b32 s12, s2, 3")
    a("s_lshr_b32 s13, s12, 3")
    a("s_and_b32 s12, s12, 7")
    a("s_add_u32 s12, s12, s13")
    a("s_mul_i32 s13, s12, 43")
    a("s_lshr_b32 s13, s13, 7")
    a("s_mul_i32 s13, s13, 3")
    a("s_sub_u32 s12, s12, s13")
    a("s_mul_i32 s12, s12, 5")
    a("s_lshr_b32 %s, s12, 1" % s(sXp))
a("s_mul_i32 %s, %s, %d" % (s(sOA), s(sXp), 64 * 3584))
a("s_lshl_b32 %s, %s, 7" % (s(sXo), s(sXp)))
a("s_cmp_ge_u32 %s, 4" % s(sW))
a("s_cbranch_scc1 Lsetup_hi")

WG_BYTES, QKV_BYTES, X_BYTES = 448 * 3584, 448 * 2688, 2048 * 896
ACC = 128
XS, WS_ = (64, 84), (72, 92)


def late_setup():
    a("""
s_and_b32 s11, s2, 7
s_lshr_b32 s12, s2, 3
s_lshl_b32 s13, s11, 1
s_lshr_b32 s38, s12, 4
s_add_u32 s6, s13, s38
s_and_b32 s7, s12, 15
s_mul_i32 s13, s12, 37
s_lshr_b32 s13, s13, 8
s_mul_i32 s38, s13, 7
s_sub_u32 s9, s12, s38
s_lshl_b32 s38, s11, 2
s_add_u32 s8, s38, s13
s_cmp_lt_u32 s12, 28
""")
    a("s_cselect_b32 %s, 1, 0" % s(sFin))
    a("s_mov_b32 %s, 0" % s(mHI))
    a("s_mov_b32 %s, -1" % s(mHI + 1))
    a("s_mov_b32 %s, 0x88880000" % s(mT))
    a("s_mov_b32 %s, 0x88880000" % s(mT + 1))
    K1 = -2.0 * math.sqrt(2.0 / math.pi) * math.log2(math.e)
    a("s_mov_b32 %s, 0x%x" % (s(kG), f2u(K1 * 0.044715)))
    a("s_mov_b32 %s, 0x%x" % (s(kG + 1), f2u(K1)))
    a("s_mov_b32 %s, 0xffff0000" % s(sP))
    a("s_mov_b32 %s, 0xffff0000" % s(sP + 1))
    a("""
v_bfe_u32 v18, v251, 2, 2
v_and_b32 v19, 3, v251
v_lshlrev_b32 v19, 3, v19
v_lshrrev_b32 v20, 5, v251
v_and_b32 v21, 31, v251
v_lshl_add_u32 v22, v20, 3, v18
v_lshlrev_b32 v22, 7, v22
v_lshrrev_b32 v23, 1, v18
v_lshlrev_b32 v23, 6, v23
""")
    a("v_lshl_add_u32 %s, v20, 2, v18" % v(vTb))
    a("v_lshlrev_b32 %s, 3, %s" % (v(vTb), v(vTb)))
    a("v_bfe_u32 v24, v21, 1, 3")
    a("v_xor_b32 v24, v24, v20")
    a("v_lshlrev_b32 v24, 4, v24")
    a("s_lshl_b32 s11, %s, 13" % s(sHalf))
    a("v_lshl_add_u32 %s, v21, 7, v24" % v(vXb))
    a("v_add_u32 %s, s11, %s" % (v(vXb), v(vXb)))
    a("v_bfe_u32 v27, v0, 4, 1")
    a("v_lshlrev_b32 v34, 11, v27")
    a("v_lshrrev_b32 v27, 8, v0")
    a("v_lshl_add_u32 v34, v27, 10, v34")
    a("v_bfe_u32 v27, v0, 2, 1")
    a("v_lshl_add_u32 v34, v27, 9, v34")
    a("v_bfe_u32 v27, v0, 5, 3")
    a("v_lshl_add_u32 v34, v27, 6, v34")
    a("v_bfe_u32 v27, v0, 3, 1")
    a("v_lshl_add_u32 v34, v27, 5, v34")
    a("v_and_b32 v27, 3, v0")
    a("v_lshl_add_u32 v34, v27, 3, v34")
    a("v_add_u32 v34, %d, v34" % TB)
    a("v_mov_b32 v31, 0")
    a("s_mov_b32 %s, %d" % (s(sWr), WB))
    a("s_mov_b32 %s, 0" % s(sXs))
    a("s_lshr_b32 s11, %s, 2" % s(sXp))
    a("s_lshl_b32 s11, s11, 10")
    a("s_and_b32 s12, %s, 3" % s(sXp))
    a("s_lshl_b32 s12, s12, 7")
    a("s_add_u32 s11, s11, s12")
    a("s_add_u32 %s, s11, %d" % (s(sTr), TB))
    a("s_mov_b32 %s, 1" % s(sIt))


def gate_load():
    srd(rT, pGW, 896)
    a("v_lshlrev_b32 v35, 1, v0")
    a("buffer_load_ushort v30, v35, %s, 0 offen" % s(rT, 4))


def tile_base(vd):
    a("v_mov_b32 v27, s11")
    a("v_mov_b32 v28, s12")
    a("v_cndmask_b32 v27, v27, v28, %s" % s(sP, 2))
    a("v_add_u32 v27, v27, v19")
    a("v_xor_b32 v27, v27, v23")
    a("v_add_u32 %s, v27, v22" % v(vd))


def addr_update(ncol, lo, par):
    a("s_or_b32 %s, %s, %d" % (s(sX0), s(sXs), 64 * par))
    for c in range(ncol):
        a("v_add_u32 %s, %s, %s" % (v(vWa + c), s(sWr), v(vWb + c)))
    a("v_xor_b32 %s, %s, %s" % (v(vXa0), s(sX0), v(vXb)))
    if lo:
        a("v_add_u32 v27, %s, %s" % (s(sTr), v(vTb)))
        a("v_cndmask_b32 %s, %s, v27, %s" % (v(vWa), v(vWa), s(mT, 2)))
    a("v_xor_b32 %s, 32, %s" % (v(vXa1), v(vXa0)))


def reads(ncol, st, ks):
    xa = vXa0 if ks == 0 else vXa1
    r = []
    rx = lambda rt: "ds_read_b128 %s, %s offset:%d" % (v(XS[st] + 4 * rt, 4), v(xa), 4096 * rt)
    rw = lambda c, jj: "ds_read_b64_tr_b16 %s, %s offset:%d" % (v(WS_[st] + 4 * c + 2 * jj, 2), v(vWa + c), 2048 * ks + 512 * jj)
    r += [rx(0), rw(0, 0), rw(0, 1), rx(1)]
    for c in range(1, ncol):
        r += [rw(c, 0), rw(c, 1)]
    return r


def mm(st, vor, first=False):
    out = []
    for c, vo in enumerate(vor):
        for rt in range(2):
            d = ACC + 32 * c + 16 * rt
            W, X = WS_[st] + 4 * c, XS[st] + 4 * rt
            A, B = (X, W) if vo else (W, X)
            out.append("v_mfma_f32_32x32x16_bf16 %s, %s, %s, %s" % (v(d, 16), v(A, 4), v(B, 4), "0" if first else v(d, 16)))
    return out


def dma_lines(vo, r, so, m0src, m0add):
    return ["s_add_u32 m0, %s, %d" % (s(m0src), m0add), "s_nop 0",
            "buffer_load_dwordx4 %s, %s, %s offen lds" % (v(vo), s(r, 4), s(so))]


def adv(x, y):
    return ["s_add_u32 %s, %s, %s" % (s(x), s(x), s(y))]


def wrap(x, step, total, par):
    r = ["s_add_u32 %s, %s, %s" % (s(x), s(x), step)]
    if par:
        r += ["s_cmp_eq_u32 %s, %s" % (s(x), total), "s_cselect_b32 %s, 0, %s" % (s(x), s(x))]
    return r


def step_dmas(lo, par, static=None):
    pre = ["s_add_u32 s11, %s, %d" % (s(sXo), par * 57344)]
    if static is None:
        wm, wo, xm, xo = sWd, 0, sOC, par * 8192
    else:
        n = static + 4
        wm, wo, xm, xo = 15, WB + (n % 5) * WSLOT, 14, (n >> 1) * 16384 + par * 8192
    if lo:
        return [pre + dma_lines(vDC, rC, 11, xm, xo),
                dma_lines(vDC2, rC, 11, xm, xo + 1024) + (wrap(sXo, "128", "896", 1) if par else []),
                dma_lines(vDA, rA, sOA, wm, wo + 3 * 4096) + wrap(sOA, str(32 * 3584), str(WG_BYTES), par),
                dma_lines(vDB, rB, sOB, wm, wo + 4 * 4096) + wrap(sOB, str(32 * 2688), str(QKV_BYTES), par)]
    return [dma_lines(vDA, rA, sOA, wm, wo) + wrap(sOA, str(32 * 3584), str(WG_BYTES), par),
            dma_lines(vDB, rB, sOB, wm, wo + 4096),
            dma_lines(vDC, rC, sOB, wm, wo + 8192) + wrap(sOB, s(sSB), s(sSC), par)]


def state_advance(lo, par):
    a("s_add_u32 %s, %s, s15" % (s(sWd), s(sWr)))
    a("s_add_u32 %s, %s, %d" % (s(sWr), s(sWr), WSLOT))
    a("s_cmp_eq_u32 %s, %d" % (s(sWr), WB + 5 * WSLOT))
    a("s_cselect_b32 %s, %d, %s" % (s(sWr), WB, s(sWr)))
    if lo:
        a("s_add_u32 %s, %s, 64" % (s(sTr), s(sTr)))
    if par == 1:
        if lo:
            a("s_add_u32 %s, %s, s14" % (s(sOC), s(sXs)))
            a("s_cmp_eq_u32 %s, %d" % (s(sTr), TB + 512))
            a("s_cselect_b32 %s, %d, %s" % (s(sTr), TB + 1024, s(sTr)))
            a("s_cmp_eq_u32 %s, %d" % (s(sTr), TB + 1024 + 384))
            a("s_cselect_b32 %s, %d, %s" % (s(sTr), TB, s(sTr)))
        a("s_add_u32 %s, %s, 16384" % (s(sXs), s(sXs)))
        a("s_cmp_eq_u32 %s, 49152" % s(sXs))
        a("s_cselect_b32 %s, 0, %s" % (s(sXs), s(sXs)))


def interleave(ms, fill):
    for i, m in enumerate(ms):
        a(m)
        if i < len(fill):
            for x in fill[i]:
                a(x)
    for g in fill[len(ms):]:
        for x in g:
            a(x)


vNon, vFA, vFT = 240, 241, 242


def kstep(lo, vor, par, nvm, d1, d2, first=False):
    ncol = len(vor)
    a("s_waitcnt vmcnt(%d) lgkmcnt(0)" % nvm)
    a("s_barrier")
    if first:
        stamp(2)
    r = reads(ncol, 0, 0)
    interleave([] if first else mm(1, vor), [r[2 * i:2 * i + 2] for i in range(len(r) // 2)] + d1)
    a("s_waitcnt lgkmcnt(0)")
    r = reads(ncol, 1, 1)
    interleave(mm(0, vor, first), [r[2 * i:2 * i + 2] for i in range(len(r) // 2)] + d2)
    state_advance(lo, par)
    addr_update(ncol, lo, 1 - par)


def kloop(tag, lo, vor):
    top = "Lk_%s" % tag
    addr_update(len(vor), lo, 0)
    kstep(lo, vor, 0, 2 if lo else 3, step_dmas(lo, 0, -2), step_dmas(lo, 1, -1), first=True)
    kstep(lo, vor, 1, 8 if lo else 6, step_dmas(lo, 0, 0), step_dmas(lo, 1, 1))
    a(".p2align 5")
    a.label(top)
    if PROF:
        a("s_memtime %s" % s(sStamp, 2))
        a("s_add_u32 s12, %s, 17" % s(sIt))
        a("s_waitcnt lgkmcnt(0)")
        a("s_mov_b32 m0, s12")
        a("v_writelane_b32 %s, %s, m0" % (v(vProf), s(sStamp)))
    if lo:
        a("s_cmp_lg_u32 %s, s38" % s(sIt))
        a("s_cbranch_scc1 %s_nn" % top)
        a("buffer_load_dword %s, %s, %s, 0 offen sc1" % (v(vNon), v(vZero), s(rT, 4)))
        a.label(top + "_nn")
    a("s_cmp_eq_u32 %s, 5" % s(sIt))
    for x in (sOA, sOB, sXo) if lo else (sOA, sOB):
        a("s_cselect_b32 %s, 0x40000000, %s" % (s(x), s(x)))
    for par in range(2):
        d = step_dmas(lo, par)
        kstep(lo, vor, par, 10 if lo else 9, d[:2], d[2:])
    a("s_add_u32 %s, %s, 1" % (s(sIt), s(sIt)))
    a("s_cmp_lt_u32 %s, 7" % s(sIt))
    a("s_cbranch_scc1 %s" % top)
    a("s_waitcnt lgkmcnt(0)")
    for m in mm(1, vor):
        a(m)


a("s_add_u32 s13, s38, 128")
a("s_cmp_eq_u32 %s, 1" % s(sSpec))
a("s_cselect_b32 s13, s38, s13")
a("v_add3_u32 %s, v27, v29, s13" % v(vDA))
a("s_mul_i32 s13, %s, 112" % s(sCol))
a("v_add3_u32 %s, v28, v25, s13" % v(vDB))
a("s_lshl_b32 s11, %s, 7" % s(sM))
a("s_lshl_b32 s12, %s, 4" % s(sW))
a("s_add_u32 s11, s11, s12")
a("v_add_u32 v27, s11, v16")
a("v_mul_u32_u24 v27, 896, v27")
a("v_lshrrev_b32 v28, 1, v16")
a("v_xor_b32 v28, v28, v17")
a("v_lshl_add_u32 %s, v28, 4, v27" % v(vDC))
a("v_xor_b32 v28, 4, v28")
a("v_lshl_add_u32 %s, v28, 4, v27" % v(vDC2))
a("v_add_u32 %s, %d, %s" % (v(vDC2), 8 * 896, v(vDC2)))
a("s_lshl_b32 s14, %s, 11" % s(sW))
a("s_mul_i32 %s, %s, %d" % (s(sOB), s(sXp), 64 * 2688))
a("s_waitcnt lgkmcnt(0)")
stamp(15)
srd(rC, pX, X_BYTES)
srd(rA, pWU, WG_BYTES)
srd(rB, pQKV, QKV_BYTES)
gate_load()
stamp(0)
for st in (-4, -3):
    for g in step_dmas(True, st & 1, st):
        for x in g:
            a(x)
late_setup()
srd(rWS, pWS, WS_BYTES)
a("s_mul_i32 s11, %s, 56" % s(sCg))
a("s_add_u32 s11, s11, 16384")
a("s_add_u32 s12, s11, 32")
tile_base(vWb)
a("s_lshl_b32 s11, %s, 12" % s(sCg))
a("s_add_u32 s12, s11, %d" % (8192 + 32))
a("s_lshl_b32 s13, %s, 5" % s(sCg))
a("s_xor_b32 s38, s13, %d" % (12288 + 32))
a("s_cmp_eq_u32 %s, 1" % s(sSpec))
a("s_cselect_b32 s11, s13, s11")
a("s_cselect_b32 s12, s38, s12")
tile_base(vWb + 1)
a("s_cmp_eq_u32 %s, 0" % s(sW))
a("s_cselect_b32 s38, 4, 99")
a("v_mov_b32 v27, %d" % CNT)
a("ds_write_b32 v27, v31")
a("s_waitcnt vmcnt(8)")
a("ds_write_b64 v34, v[30:31]")
srd(rT, pDBG, 256)
stamp(1)
kloop("lo", True, (False, False))
a("s_branch Lepi_lo")

a.label("Lsetup_hi")
a("v_add3_u32 %s, v27, v25, s38" % v(vDA))
a("v_mov_b32 v32, %d" % E_OFF)
a("s_cmp_eq_u32 %s, 1" % s(sSpec))
a("s_cbranch_scc1 Lsetup_hi_s")
a("v_add_u32 %s, 128, %s" % (v(vDB), v(vDA)))
a("v_add3_u32 %s, v27, v29, s38" % v(vDC))
a("s_mov_b32 %s, %d" % (s(sSB), 32 * 3584))
a("s_mov_b32 %s, %d" % (s(sSC), WG_BYTES))
a("s_mov_b32 %s, %s" % (s(sOB), s(sOA)))
a("s_waitcnt lgkmcnt(0)")
srd(rB, pWG, WG_BYTES)
srd(rC, pWU, WG_BYTES)
a("s_branch Lsetup_hi_c")
a.label("Lsetup_hi_s")
a("s_mul_i32 s13, %s, 224" % s(sCol))
a("s_sub_u32 s13, s13, %d" % (12 * 224 - 1792))
a("v_add3_u32 %s, v28, v25, s13" % v(vDB))
a("v_add_u32 %s, 112, %s" % (v(vDC), v(vDB)))
a("s_mov_b32 %s, %d" % (s(sSB), 32 * 2688))
a("s_mov_b32 %s, %d" % (s(sSC), QKV_BYTES))
a("s_mul_i32 %s, %s, %d" % (s(sOB), s(sXp), 64 * 2688))
a("s_waitcnt lgkmcnt(0)")
srd(rB, pQKV, QKV_BYTES)
srd(rC, pQKV, QKV_BYTES)
a.label("Lsetup_hi_c")
stamp(15)
srd(rA, pWG, WG_BYTES)
srd(rWS, pWS, WS_BYTES)
a("s_lshl_b32 s14, s2, 3")
a("s_add_u32 s14, s14, %s" % s(sW))
a("s_cmp_lg_u32 s14, 7")
a("s_cbranch_scc1 Lno_nonce1")
a("buffer_load_dword v33, v32, %s, 0 offen sc1" % s(rWS, 4))
a.label("Lno_nonce1")
gate_load()
stamp(0)
for st in (-4, -3):
    for g in step_dmas(False, st & 1, st):
        for x in g:
            a(x)
late_setup()
a("s_waitcnt vmcnt(6)")
a("ds_write_b64 v34, v[30:31]")
a("s_cmp_lg_u32 s14, 7")
a("s_cbranch_scc1 Lno_nonce2")
srd(rT, pDBG, 256)
a("v_add_u32 v33, 1, v33")
a("v_or_b32 v33, 0x80000000, v33")
a("s_mov_b64 exec, 1")
a("buffer_store_dword v33, v32, %s, 0 offen sc1" % s(rWS, 4))
if LEAK:
    a("s_getreg_b32 s11, hwreg(HW_REG_XCC_ID, 0, 4)")
    a("v_mov_b32 v36, s11")
    a("buffer_store_dword v36, %s, %s, 0 offen offset:4 sc1" % (v(vZero), s(rT, 4)))
    a("s_waitcnt vmcnt(0)")
a("buffer_store_dword v33, %s, %s, 0 offen sc1" % (v(vZero), s(rT, 4)))
a("s_mov_b64 exec, -1")
a.label("Lno_nonce2")
a("s_cmp_eq_u32 %s, 1" % s(sSpec))
a("s_cbranch_scc1 Lk_hi_s_entry")
for c in range(3):
    a("s_lshl_b32 s12, %s, 12" % s(sCg))
    a("s_sub_u32 s11, s12, %d" % (8192 - 32 * (1 + c)))
    a("s_add_u32 s12, s12, %d" % ((32 * (1 + c)) ^ 32))
    tile_base(vWb + c)
stamp(1)
kloop("hi_t", False, (False, False, False))
a("s_branch Lepi_hi_t")
a.label("Lk_hi_s_entry")
for c in range(2):
    a("s_lshl_b32 s11, %s, 12" % s(sCg))
    a("s_sub_u32 s11, s11, %d" % (4096 - 56 * c))
    a("s_add_u32 s12, s11, 32")
    tile_base(vWb + c)
a("s_lshl_b32 s11, %s, 5" % s(sCg))
a("s_xor_b32 s12, s11, %d" % (12288 + 32))
tile_base(vWb + 2)
stamp(1)
kloop("hi_s", False, (True, True, False))
a("s_branch Lepi_hi_s")

NONL = CNT + 16


def gelu_tile(acc, vc, dst, extra=()):
    T = 56
    extra = list(extra)

    def ex():
        if extra:
            for x in extra.pop(0):
                a(x)
    for p in range(4):
        a("v_pk_mul_f32 %s, %s, %s" % (v(T + 2 * p, 2), v(acc + 2 * p, 2), v(acc + 2 * p, 2)))
    for p in range(4):
        a("v_pk_fma_f32 %s, %s, %s, %s op_sel:[0,0,1] op_sel_hi:[1,0,1]" % (v(T + 2 * p, 2), v(T + 2 * p, 2), s(kG, 2), s(kG, 2)))
    for p in range(4):
        a("v_pk_mul_f32 %s, %s, %s" % (v(T + 2 * p, 2), v(T + 2 * p, 2), v(acc + 2 * p, 2)))
    ex()
    for i in range(8):
        a("v_exp_f32 %s, %s" % (v(T + i), v(T + i)))
        if i == 5:
            ex()
    for p in range(4):
        a("v_pk_mul_f32 %s, %s, %s" % (v(acc + 8 + 2 * p, 2), v(acc + 8 + 2 * p, 2), v(acc + 2 * p, 2)))
    for p in range(4):
        a("v_pk_fma_f32 %s, %s, %s, %s op_sel_hi:[1,0,0]" % (v(T + 2 * p, 2), v(T + 2 * p, 2), v(vc, 2), v(vc, 2)))
    ex()
    for i in range(8):
        a("v_rcp_f32 %s, %s" % (v(T + i), v(T + i)))
        if i == 5:
            ex()
    a("s_nop 0")
    for p in range(4):
        a("v_pk_mul_f32 %s, %s, %s" % (v(acc + 8 + 2 * p, 2), v(acc + 8 + 2 * p, 2), v(T + 2 * p, 2)))
    for p in range(4):
        a("v_cvt_pk_bf16_f32 %s, %s, %s" % (v(dst + p), v(acc + 8 + 2 * p), v(acc + 9 + 2 * p)))
    while extra:
        ex()


def qk_tile(acc, vpad, vaddr, so, dst):
    for p in range(8):
        a("v_pk_mul_f32 %s, %s, %s op_sel_hi:[1,0]" % (v(acc + 2 * p, 2), v(acc + 2 * p, 2), s(kS, 2)))
    for p in range(8):
        a("v_cvt_pk_bf16_f32 %s, %s, %s" % (v(dst + p), v(acc + 2 * p), v(acc + 2 * p + 1)))
    a("v_cndmask_b32 %s, %s, %s, %s" % (v(dst + 6), v(dst + 6), v(vpad), s(mHI, 2)))
    a("v_cndmask_b32 %s, %s, %s, %s" % (v(dst + 7), v(dst + 7), v(vZero), s(mHI, 2)))
    a("buffer_store_dwordx4 %s, %s, %s, %s offen sc1" % (v(dst, 4), v(vaddr), s(rWS, 4), s(so)))
    a("buffer_store_dwordx4 %s, %s, %s, %s offen offset:1024 sc1" % (v(dst + 4, 4), v(vaddr), s(rWS, 4), s(so)))


def v_tile(acc, so, dst):
    for p in range(8):
        a("v_cvt_pk_bf16_f32 %s, %s, %s" % (v(dst + p), v(acc + 2 * p), v(acc + 2 * p + 1)))
    for p in range(8):
        a("v_cndmask_b32 %s, %s, v29, %s" % (v(dst + p), v(dst + p), s(sP, 2)))
    a("buffer_store_dwordx4 %s, %s, %s, %s offen offset:2048 sc1" % (v(dst, 4), v(vL16), s(rWS, 4), s(so)))
    a("buffer_store_dwordx4 %s, %s, %s, %s offen offset:3072 sc1" % (v(dst + 4, 4), v(vL16), s(rWS, 4), s(so)))


def tile_index(sd):
    a("s_lshl_b32 %s, %s, 1" % (s(sd), s(sM)))
    a("s_add_u32 %s, %s, %s" % (s(sd), s(sd), s(sHalf)))
    a("s_lshl_b32 %s, %s, 1" % (s(sd), s(sd)))


def fq_addr(sHp):
    a("s_lshl_b32 s11, %s, 5" % s(sHp))
    a("s_lshl_b32 s12, %s, 1" % s(sM))
    a("s_add_u32 s11, s11, s12")
    a("s_add_u32 s11, s11, %s" % s(sHalf))
    a("s_lshl_b32 s11, s11, 7")
    a("s_add_u32 s11, s11, 0x%x" % FQ_OFF)
    a("v_lshl_add_u32 %s, %s, 12, s11" % (v(vFA), v(vLane)))


def fh_addr(vd):
    a("s_lshl_b32 s11, %s, 1" % s(sM))
    a("s_add_u32 s11, s11, %s" % s(sHalf))
    a("s_lshl_b32 s11, s11, 4")
    a("s_add_u32 s11, s11, %s" % s(sCol))
    a("s_lshl_b32 s11, s11, 2")
    a("s_add_u32 s11, s11, %s" % s(sCg))
    a("s_lshl_b32 s11, s11, 7")
    a("s_add_u32 s11, s11, 0x%x" % FH_OFF)
    a("v_mov_b32 %s, s11" % v(vd))


def h_base(sd, sd2, sKs):
    tile_index(sd)
    a("s_mul_i32 %s, %s, 114688" % (s(sd), s(sd)))
    a("s_lshl_b32 s11, %s, 10" % s(sKs))
    a("s_add_u32 %s, %s, s11" % (s(sd), s(sd)))
    a("s_add_u32 %s, %s, 0x%x" % (s(sd), s(sd), H_OFF))
    a("s_add_u32 %s, %s, 114688" % (s(sd2), s(sd)))


def hstore(d, so, off=0):
    a("buffer_store_dwordx4 %s, %s, %s, %s offen offset:%d sc1" % (v(d, 4), v(vL16), s(rWS, 4), s(so), off))


def read_exchange(with_c):
    a("v_mov_b32 v24, %d" % NONL)
    a("ds_read_b32 %s, v24" % v(vNon))
    if with_c:
        a("ds_read_b32 v20, v27")
        a("ds_read_b32 v22, v27 offset:128")


def c_addr():
    a("s_lshl_b32 s11, %s, 8" % s(sHalf))
    a("s_add_u32 s11, s11, %d" % EX)
    a("v_and_b32 v27, 31, %s" % v(vLane))
    a("v_lshl_add_u32 v27, v27, 2, s11")


sH0, sH1 = sSA, sSC
a.label("Lepi_lo")
stamp(3)
a("s_lshl_b32 s38, %s, 1" % s(sCol))
a("s_add_u32 s38, s38, %s" % s(sCg))
tile_index(sX0)
a("s_cmp_lt_u32 s38, 16")
a("s_cselect_b32 %s, 0x%x, 1.0" % (s(kS), f2u(math.log2(math.e) / math.sqrt(28.0))))
a("s_cselect_b32 s13, 0xffff, 0")
a("s_cselect_b32 s14, 0, 12")
a("s_cselect_b32 s15, 11, 12")
a("s_cselect_b32 s11, 0x%x, %d" % (Q_OFF, KV_OFF))
a("s_and_b32 s12, s38, 15")
a("s_lshl_b32 s12, s12, 6")
a("s_add_u32 s12, s12, %s" % s(sX0))
a("s_lshl_b32 s12, s12, s15")
a("s_add_u32 %s, s11, s12" % s(sOA))
a("s_lshl_b32 s12, 1, s15")
a("s_add_u32 %s, %s, s12" % (s(sOB), s(sOA)))
a("v_lshrrev_b32 v27, 1, %s" % v(vLane))
a("v_xor_b32 v27, v27, %s" % v(vLane))
a("v_bfe_u32 v27, v27, 2, 1")
a("v_mul_u32_u24 v27, s14, v27")
a("v_xor_b32 v27, v27, %s" % v(vLane))
a("v_lshlrev_b32 v26, 4, v27")
a("v_mov_b32 v16, %s" % v(ACC + 12))
a("v_mov_b32 v17, %s" % v(ACC + 16 + 12))
a("s_nop 1")
a("v_permlane32_swap_b32 v16, v17")
a("s_nop 1")
a("v_cvt_pk_bf16_f32 v17, v17, v17")
a("v_and_b32 v17, 0xffff0000, v17")
a("v_mul_f32 v17, 0x%x, v17" % f2u(-math.log2(math.e)))
a("v_exp_f32 v17, v17")
a("s_nop 0")
a("v_add_f32 v17, 1.0, v17")
a("v_rcp_f32 v17, v17")
a("s_nop 0")
a("v_cvt_pk_bf16_f32 v18, v17, v17")
a("v_and_b32 v17, 0xffff0000, v18")
a("v_sub_f32 v17, 1.0, v17")
a("v_cvt_pk_bf16_f32 v17, v17, v17")
a("v_and_b32 v17, 0xffff0000, v17")
a("v_rcp_f32 v20, v17")
a("v_and_b32 v18, s13, v18")
a("v_min_f32 v20, 0x7f000000, v20")
a("s_lshl_b32 s11, %s, 8" % s(sHalf))
a("s_add_u32 s11, s11, %d" % EX)
a("v_lshl_add_u32 v27, %s, 2, s11" % v(vLane))
a("ds_write_b32 v27, v20")
a("v_mov_b32 v19, v18")
a("v_mov_b32 v22, v20")
a("s_nop 1")
a("v_permlane32_swap_b32 v18, v19")
a("v_permlane32_swap_b32 v20, v22")
qk_tile(ACC, 18, 26, sOA, 32)
qk_tile(ACC + 16, 19, 26, sOB, 40)
a("s_waitcnt vmcnt(4)")
a("s_cmp_lg_u32 %s, 0" % s(sW))
a("s_cbranch_scc1 Lepi_lo_nn")
get_nonce(vNon, vFT)
if LEAK:
    a("buffer_load_dword v24, %s, %s, 0 offen offset:4 sc1" % (v(vZero), s(rT, 4)))
    a("s_getreg_b32 s11, hwreg(HW_REG_XCC_ID, 0, 4)")
    a("s_sub_u32 s11, s11, s2")
    a("s_and_b32 s11, s11, 7")
    a("s_waitcnt vmcnt(0)")
    a("v_readfirstlane_b32 s12, v24")
    a("s_nop 1")
    a("s_cmp_eq_u32 s11, s12")
    a("s_cbranch_scc1 Lleak_ok")
    a("v_mov_b32 v24, 1")
    a("buffer_store_dword v24, %s, %s, 0 offen offset:8 sc1" % (v(vZero), s(rT, 4)))
    a.label("Lleak_ok")
a("v_mov_b32 v24, %d" % NONL)
a("ds_write_b32 v24, %s" % v(vNon))
a.label("Lepi_lo_nn")
a("s_waitcnt lgkmcnt(0)")
a("s_barrier")
read_exchange(False)
gelu_tile(ACC + 32, 20, 32)
gelu_tile(ACC + 48, 22, 36)
a("s_lshl_b32 s13, %s, 1" % s(sCol))
a("s_add_u32 s13, s13, %s" % s(sCg))
a("s_lshl_b32 s13, s13, 2")
a("s_lshl_b32 s14, %s, 2" % s(sCol))
a("s_add_u32 s14, s14, %s" % s(sCg))
a("s_add_u32 s14, s14, 48")
a("s_cmp_eq_u32 %s, 1" % s(sSpec))
a("s_cselect_b32 s13, s14, s13")
h_base(sH0, sH1, 13)
hstore(32, sH0)
hstore(36, sH1)
fq_addr(38)
fh_addr(243)
a("s_waitcnt lgkmcnt(0)")
a("v_readfirstlane_b32 %s, %s" % (s(sNON), v(vNon)))
stamp(12)
a("s_nop 0")
a("s_waitcnt vmcnt(2)")
flag_store(vFA, vFT)
stamp(4)
a("s_waitcnt vmcnt(1)")
flag_store(243, vFT)
stamp(13)
a("s_branch Lattn")

vH0, vDd, vDr, vH1 = 225, 226, 227, 229


def d_prefetch_setup():
    srd(rWD, pWD, 1792 * 896)
    srd(rWO, pWO, 448 * 896)
    a("v_lshrrev_b32 v16, 3, %s" % v(vLane))
    a("v_and_b32 v17, 7, %s" % v(vLane))
    a("v_bfe_u32 v18, v16, 1, 1")
    a("v_lshlrev_b32 v18, 2, v18")
    a("v_xor_b32 v18, v18, v17")
    a("v_lshlrev_b32 v18, 4, v18")
    a("v_mul_u32_u24 v16, 896, v16")
    a("s_lshl_b32 s11, %s, 7" % s(sT))
    a("v_add3_u32 %s, v16, v18, s11" % v(vDd))
    a("s_and_b32 s12, %s, 3" % s(sW))
    a("s_mul_i32 %s, s12, %d" % (s(sXs), 448 * 896))
    a("s_add_u32 %s, %s, %d" % (s(sXo), s(sXs), 448 * 896))
    a("s_lshl_b32 %s, %s, 2" % (s(sTr), s(sT)))
    a("s_and_b32 s11, %s, 3" % s(sR))
    a("s_add_u32 %s, %s, s11" % (s(sTr), s(sTr)))
    if not ROT & 4:
        a("s_mov_b32 %s, 0" % s(sTr))
    a("s_mul_i32 s11, %s, %d" % (s(sTr), 16 * 896))
    a("s_add_u32 %s, %s, s11" % (s(sOC), s(sXs)))
    a("s_cmp_eq_u32 %s, 0" % s(sFin))
    a("s_cselect_b32 %s, 0x40000000, %s" % (s(sOC), s(sOC)))
    a("s_mul_i32 %s, s12, %d" % (s(sWd), DREG))
    a("s_add_u32 %s, %s, %d" % (s(sWd), s(sWd), DB))


def wd_adv(e):
    r = ["s_add_u32 %s, %s, 7168" % (s(sOC), s(sOC))]
    if e:
        r += ["s_cmp_eq_u32 %s, %s" % (s(sOC), s(sXo)), "s_cselect_b32 %s, %s, %s" % (s(sOC), s(sXs), s(sOC))]
    return r


def d_prefetch_groups():
    return [dma_lines(vDd, rWD, sOC, sWd, 1024 * n) + wd_adv(n & 1) for n in range(26)]


a.label("Lepi_hi_s")
stamp(3)
a("s_lshl_b32 s38, %s, 1" % s(sCol))
a("s_add_u32 s38, s38, %s" % s(sCg))
a("s_lshl_b32 s38, s38, 1")
a("s_sub_u32 s38, s38, %d" % (48 + 4))
tile_index(sX0)
a("s_mov_b32 %s, 0xf0000000" % s(sP))
a("s_mov_b32 %s, 0xf0000000" % s(sP + 1))
a("v_and_b32 v28, 31, %s" % v(vLane))
a("v_cmp_eq_u32 vcc, 28, v28")
a("v_mov_b32 v27, 0x3f803f80")
a("s_lshl_b32 s12, s38, 6")
a("v_cndmask_b32 v29, %s, v27, vcc" % v(vZero))
a("s_add_u32 s12, s12, %s" % s(sX0))
a("s_lshl_b32 %s, s12, 12" % s(sOA))
a("s_add_u32 %s, %s, 4096" % (s(sOB), s(sOA)))
for c in range(2):
    v_tile(ACC + 32 * c, sOA, 32)
    v_tile(ACC + 32 * c + 16, sOB, 40)
    if c == 0:
        a("s_add_u32 %s, %s, 0x40000" % (s(sOA), s(sOA)))
        a("s_add_u32 %s, %s, 0x40000" % (s(sOB), s(sOB)))
c_addr()
a("s_waitcnt vmcnt(8)")
a("s_barrier")
read_exchange(True)
a("s_add_u32 s38, s38, 32")
fq_addr(38)
fh_addr(243)
a("s_lshl_b32 s13, %s, 2" % s(sCol))
a("s_add_u32 s13, s13, %s" % s(sCg))
a("s_add_u32 s13, s13, 48")
h_base(sH0, sH1, 13)
d_prefetch_setup()
a("s_waitcnt lgkmcnt(0)")
a("v_readfirstlane_b32 %s, %s" % (s(sNON), v(vNon)))
gelu_tile(ACC + 64, 20, 32)
gelu_tile(ACC + 80, 22, 36)
hstore(32, sH0)
hstore(36, sH1)
stamp(12)
a("s_waitcnt vmcnt(2)")
flag_store(vFA, vFT, 2)
for g in d_prefetch_groups():
    for x in g:
        a(x)
a("s_waitcnt vmcnt(27)")
flag_store(243, vFT)
stamp(4)
a("s_branch Ldown")

a.label("Lepi_hi_t")
stamp(3)
c_addr()
a("s_lshl_b32 s13, %s, 1" % s(sCol))
a("s_add_u32 s13, s13, %s" % s(sCg))
a("s_lshl_b32 s13, s13, 2")
a("s_sub_u32 s13, s13, 7")
h_base(sH0, sH1, 13)
fh_addr(243)
d_prefetch_setup()
a("s_waitcnt vmcnt(0)")
a("s_barrier")
read_exchange(True)
a("s_waitcnt lgkmcnt(0)")
a("v_readfirstlane_b32 %s, %s" % (s(sNON), v(vNon)))
pf = d_prefetch_groups()
for c in range(3):
    for rt in range(2):
        n = 2 * c + rt
        gelu_tile(ACC + 32 * c + 16 * rt, 20 + 2 * rt, 32 + 4 * n, pf[(26 * n) // 6:(26 * (n + 1)) // 6] if PFMODE == 0 else ())
for c in range(3):
    for rt in range(2):
        hstore(32 + 4 * (2 * c + rt), (sH0, sH1)[rt], 1024 * c)
stamp(12)
if PFMODE == 1:
    for g in pf:
        for x in g:
            a(x)
    a("s_waitcnt vmcnt(26)")
else:
    a("s_waitcnt vmcnt(0)")
flag_store(243, vFT)
stamp(4)
a("s_branch Ldown")

Q, O, S_, KV, vIdx = 0, 32, 96, 160, 224
sKV, sQb = sOA, sOB


vKV = 231


def kvload(b, part, va=vKV):
    for i in range(2):
        a("buffer_load_dwordx4 %s, %s, %s, %s offen offset:%d sc1" % (
            v(KV + 16 * b + 8 * part + 4 * i, 4), v(va), s(rWS, 4), s(sKV), 2048 * part + 1024 * i))


def qk(n, half):
    kt, u = n >> 2, n & 3
    K = KV + 16 * (kt & 3) + 4 * half
    d = S_ + 16 * u
    return "v_mfma_f32_32x32x16_bf16 %s, %s, %s, %s" % (v(d, 16), v(K, 4), v(Q + 8 * u + 4 * half, 4), v(d, 16) if half else "0")


def pv(n, half):
    kt, u = n >> 2, n & 3
    V = KV + 16 * (kt & 3) + 8 + 4 * half
    return "v_smfmac_f32_32x32x32_bf16 %s, %s, %s, %s" % (v(O + 16 * u, 16), v(V, 4), v(S_ + 16 * u + 8 * half, 8), v(vIdx))


def slot(n, last=False, extra=None):
    u = n & 3
    extra = extra or {}
    e = ["v_exp_f32 %s, %s" % (v(S_ + 16 * u + i), v(S_ + 16 * u + i)) for i in range(16)]
    if not last:
        seq = [qk(n + 1, 0)] + e[0:3] + [qk(n + 1, 1)] + e[3:6]
    else:
        seq = e[0:6]
    seq += [pv(n - 1, 0)] + e[6:9] + [pv(n - 1, 1)] + e[9:16]
    for i, x in enumerate(seq):
        for y in extra.get(i, []):
            a(y)
        a(x)


a.label("Lattn")
a("s_setprio 2")
a("s_lshl_b32 s11, %s, 3" % s(sW))
a("v_and_b32 v16, 7, %s" % v(vLane))
a("v_add_u32 v16, s11, v16")
a("v_bfe_u32 v17, %s, 3, 1" % v(vLane))
a("v_lshlrev_b32 v17, 4, v17")
a("s_add_u32 s12, %s, 16" % s(sH))
a("v_add_u32 v17, s12, v17")
a("v_lshl_add_u32 v16, v17, 5, v16")
a("s_lshl_b32 s11, %s, 5" % s(sH))
a("s_lshl_b32 s12, %s, 1" % s(sMA))
a("s_add_u32 s11, s11, s12")
a("v_and_b32 v17, 1, %s" % v(vLane))
a("v_add_u32 v17, s11, v17")
a("v_cmp_gt_u32 vcc, 16, %s" % v(vLane))
a("s_mov_b32 s11, 0x%x" % FQ_OFF)
a("s_nop 0")
a("v_cndmask_b32 v16, v17, v16, vcc")
a("v_lshl_add_u32 %s, v16, 7, s11" % v(vFA))
for i in range(64):
    a("v_mov_b32 %s, 0" % v(O + i))
for i in range(16):
    a("v_mov_b32 %s, 0" % v(S_ + 48 + i))
for i in range(8):
    a("v_mov_b32 %s, 0" % v(KV + 48 + 8 + i))
a("v_mov_b32 %s, 0xdddd" % v(vIdx))
a("s_lshl_b32 s11, %s, 6" % s(sH))
a("s_lshl_b32 s12, %s, 4" % s(sW))
a("s_add_u32 s12, s12, s11")
a("s_lshl_b32 s12, s12, 12")
a("v_add_u32 %s, s12, %s" % (v(vKV), v(vL16)))
a("s_lshl_b32 %s, %s, 12" % (s(sKV), s(sMA)))
if not ROT & 2:
    a("s_mov_b32 %s, 0" % s(sKV))
a("s_lshl_b32 s12, %s, 2" % s(sMA))
a("s_add_u32 s11, s11, s12")
a("s_lshl_b32 s11, s11, 11")
a("s_add_u32 %s, s11, 0x%x" % (s(sQb), Q_OFF))
poll(vFA, vFT)
stamp(5)
kvload(0, 0)
for u in range(4):
    a("s_add_u32 s11, %s, %d" % (s(sW), u + 1))
    a("s_and_b32 s11, s11, 3")
    a("s_lshl_b32 s11, s11, 11")
    a("s_add_u32 s11, s11, %s" % s(sQb))
    for i in range(2):
        a("buffer_load_dwordx4 %s, %s, %s, s11 offen offset:%d sc1" % (v(Q + 8 * u + 4 * i, 4), v(vL16), s(rWS, 4), 1024 * i))
kvload(0, 1)
for b in (1, 2):
    a("s_add_u32 %s, %s, 4096" % (s(sKV), s(sKV)))
    a("s_and_b32 %s, %s, 0xffff" % (s(sKV), s(sKV)))
    kvload(b, 0)
    kvload(b, 1)
for u in range(3):
    a("s_add_u32 s11, %s, %d" % (s(sW), u + 1))
    a("s_and_b32 s11, s11, 3")
    a("s_mul_i32 s11, s11, 12288")
    a("s_add_u32 s11, s11, %d" % (PB + 4096 * u))
    a("v_add_u32 %s, s11, %s" % (v(225 + u), v(vL16)))
a("s_mov_b32 %s, 0" % s(sIt))
a("s_waitcnt vmcnt(8)")
stamp(6)
a(qk(0, 0))
a(qk(0, 1))
a("s_nop 10")
a(".p2align 5")
a.label("Lattn_loop")


def kv_extra(kt, loads=True, wait=8):
    b = (kt + 3) & 3
    ex = [{}, {}, {}, {}]
    if loads:
        ld = lambda part, i: "buffer_load_dwordx4 %s, %s, %s, %s offen offset:%d sc1" % (
            v(KV + 16 * b + 8 * part + 4 * i, 4), v(vKV), s(rWS, 4), s(sKV), 2048 * part + 1024 * i)
        ex[0] = {15: ["s_add_u32 %s, %s, 4096" % (s(sKV), s(sKV))], 17: ["s_and_b32 %s, %s, 0xffff" % (s(sKV), s(sKV))]}
        ex[1] = {15: [ld(0, 0)], 17: [ld(0, 1)]}
        ex[2] = {15: [ld(1, 0)], 17: [ld(1, 1)]}
    if wait is not None:
        ex[3] = {0: ["s_waitcnt vmcnt(%d)" % wait]}
    return ex


for kt in range(4):
    ex = kv_extra(kt)
    for u in range(4):
        slot(4 * kt + u, extra=ex[u])
a("s_add_u32 %s, %s, 1" % (s(sIt), s(sIt)))
a("s_cmp_lt_u32 %s, 3" % s(sIt))
a("s_cbranch_scc1 Lattn_loop")
for kt in range(4):
    ex = kv_extra(kt, loads=(kt == 0), wait=(8, 4, 0, None)[kt])
    for u in range(4):
        n = 4 * kt + u
        e = dict(ex[u])
        if kt == 3 and u >= 2:
            for qd in range(4):
                e.setdefault(5 + 2 * qd, []).append(
                    "ds_write_b128 %s, %s offset:%d" % (v(225 + u - 2), v(O + 16 * (u - 2) + 4 * qd, 4), 1024 * qd))
        slot(n, last=(n == 15), extra=e)
a(pv(15, 0))
a("v_mov_b32 v225, %d" % CNT)
a("v_mov_b32 v226, 1")
a("s_mul_i32 s11, %s, 12288" % s(sW))
a(pv(15, 1))
for qd in range(4):
    a("ds_write_b128 %s, %s offset:%d" % (v(227), v(O + 32 + 4 * qd, 4), 1024 * qd))
stamp(7)
a("v_add_u32 v227, s11, %s" % v(vL16))
a("s_waitcnt lgkmcnt(0)")
a("ds_add_u32 v225, v226")
a("s_mov_b32 %s, %d" % (s(sSpin), SPIN_MAX))
a.label("Lasync")
a("ds_read_b32 v226, v225")
a("s_waitcnt lgkmcnt(0)")
a("v_readfirstlane_b32 s11, v226")
a("s_sub_u32 %s, %s, 1" % (s(sSpin), s(sSpin)))
a("s_cbranch_scc1 Lasync_done")
a("s_cmp_lt_u32 s11, 256")
a("s_cbranch_scc1 Lasync")
a.label("Lasync_done")
OW = O + 48
for u in range(3):
    for qd in range(4):
        a("ds_read_b128 %s, v227 offset:%d" % (v(S_ + 16 * u + 4 * qd, 4), PB + 4096 * u + 1024 * qd))
a("s_lshl_b32 s11, %s, 2" % s(sMA))
a("s_add_u32 s11, s11, %s" % s(sW))
a("s_lshl_b32 s12, s11, 4")
a("s_add_u32 s12, s12, %s" % s(sH))
a("s_lshl_b32 s13, s12, 11")
a("s_add_u32 %s, s13, 0x%x" % (s(sOC), O_OFF))
a("s_lshl_b32 s12, s12, 7")
a("s_add_u32 s12, s12, 0x%x" % FO_OFF)
a("v_mov_b32 %s, s12" % v(vFA))
for u in range(3):
    a("s_waitcnt lgkmcnt(%d)" % (8 - 4 * u))
    for p in range(8):
        a("v_pk_add_f32 %s, %s, %s" % (v(OW + 2 * p, 2), v(OW + 2 * p, 2), v(S_ + 16 * u + 2 * p, 2)))
a("v_pk_mul_f32 v[228:229], %s, 0 op_sel_hi:[1,0]" % v(OW, 2))
a("v_pk_mul_f32 v[232:233], %s, 0 op_sel_hi:[1,0]" % v(OW + 2, 2))
for p in range(2, 8):
    t = 228 if p % 2 == 0 else 232
    a("v_pk_fma_f32 %s, %s, 0, %s op_sel_hi:[1,0,1]" % (v(t, 2), v(OW + 2 * p, 2), v(t, 2)))
a("v_subrev_u32 v226, 0x%x, %s" % (f2u(2.0 ** -40), v(OW + 12)))
a("v_pk_add_f32 v[228:229], v[228:229], v[232:233]")
a("v_cmp_lt_u32 vcc, 0x%x, v226" % (f2u(2.0 ** 40) - f2u(2.0 ** -40)))
a("v_cmp_u_f32 %s, v228, v229" % s(sP, 2))
a("s_and_b64 vcc, vcc, %s" % s(mHI, 2))
a("s_or_b64 vcc, vcc, %s" % s(sP, 2))
if FORCE_FB:
    a("s_mov_b64 vcc, -1")
a("s_cbranch_vccnz Lfallback")
a.label("Lnormalize")
a("v_rcp_f32 v225, %s" % v(OW + 12))
a("v_lshlrev_b32 v226, 16, %s" % v(Q + 24 + 6))
a("v_mul_f32 v226, v225, v226")
a("v_mov_b32 v228, v226")
a("s_nop 1")
a("v_permlane32_swap_b32 v226, v228")
a("s_nop 1")
for p in range(8):
    a("v_pk_mul_f32 %s, %s, v[228:229] op_sel_hi:[1,0]" % (v(OW + 2 * p, 2), v(OW + 2 * p, 2)))
for p in range(8):
    a("v_cvt_pk_bf16_f32 %s, %s, %s" % (v(S_ + p), v(OW + 2 * p), v(OW + 2 * p + 1)))
a("v_cndmask_b32 %s, %s, %s, %s" % (v(S_ + 6), v(S_ + 6), v(vZero), s(mHI, 2)))
a("v_cndmask_b32 %s, %s, %s, %s" % (v(S_ + 7), v(S_ + 7), v(vZero), s(mHI, 2)))
a("buffer_store_dwordx4 %s, %s, %s, %s offen sc1" % (v(S_, 4), v(vL16), s(rWS, 4), s(sOC)))
a("buffer_store_dwordx4 %s, %s, %s, %s offen offset:1024 sc1" % (v(S_ + 4, 4), v(vL16), s(rWS, 4), s(sOC)))
for i in range(32):
    a("v_mov_b32 %s, 0" % v(i))
a("s_waitcnt vmcnt(0)")
flag_store(vFA, vFT)
stamp(8)
a("s_cmp_eq_u32 %s, 0" % s(sFin))
a("s_cbranch_scc1 Lexit")
a("s_mov_b32 %s, 1" % s(sHalf))
a("s_branch Ltail")

a.label("Lfallback")
a("s_lshl_b32 %s, %s, 18" % (s(sKV), s(sH)))
a("v_mov_b32 v225, 0xff800000")
a("s_mov_b32 %s, 0" % s(sIt))
a.label("Lfb1")
kvload(0, 0, vL16)
a("s_waitcnt vmcnt(0)")
a(qk(3, 0))
a(qk(3, 1))
a("s_nop 11")
for i in range(0, 16, 2):
    a("v_max3_f32 v225, %s, %s, v225" % (v(S_ + 48 + i), v(S_ + 49 + i)))
a("s_add_u32 %s, %s, 4096" % (s(sKV), s(sKV)))
a("s_add_u32 %s, %s, 1" % (s(sIt), s(sIt)))
a("s_cmp_lt_u32 %s, 64" % s(sIt))
a("s_cbranch_scc1 Lfb1")
a("v_mov_b32 v226, v225")
a("s_nop 1")
a("v_permlane32_swap_b32 v225, v226")
a("s_nop 1")
a("v_max_f32 v225, v225, v226")
for i in range(16):
    a("v_mov_b32 %s, 0" % v(OW + i))
a("s_lshl_b32 %s, %s, 18" % (s(sKV), s(sH)))
a("s_mov_b32 %s, 0" % s(sIt))
a.label("Lfb2")
kvload(0, 0, vL16)
kvload(0, 1, vL16)
a("s_waitcnt vmcnt(0)")
a(qk(3, 0))
a(qk(3, 1))
a("s_nop 11")
for i in range(16):
    a("v_sub_f32 %s, %s, v225" % (v(S_ + 48 + i), v(S_ + 48 + i)))
for i in range(16):
    a("v_exp_f32 %s, %s" % (v(S_ + 48 + i), v(S_ + 48 + i)))
a("s_nop 1")
a(pv(3, 0))
a(pv(3, 1))
a("s_add_u32 %s, %s, 4096" % (s(sKV), s(sKV)))
a("s_add_u32 %s, %s, 1" % (s(sIt), s(sIt)))
a("s_cmp_lt_u32 %s, 64" % s(sIt))
a("s_cbranch_scc1 Lfb2")
a("s_nop 11")
a("s_branch Lnormalize")

DA, HB, WF = 0, 64, 128


def dr_setup():
    a("s_and_b32 s12, %s, 3" % s(sW))
    a("s_mul_i32 s13, s12, %d" % DREG)
    a("s_add_u32 s13, s13, %d" % DB)
    a("v_bfe_u32 v240, %s, 2, 2" % v(vLane))
    a("v_lshrrev_b32 v243, 5, %s" % v(vLane))
    a("v_lshl_add_u32 v243, v243, 2, v240")
    a("v_lshl_add_u32 v243, v243, 7, s13")
    a("v_lshrrev_b32 v240, 1, v240")
    a("v_lshlrev_b32 v240, 6, v240")
    a("v_bfe_u32 v244, %s, 4, 1" % v(vLane))
    a("v_add_u32 v244, s12, v244")
    a("v_and_b32 v245, 3, %s" % v(vLane))
    a("v_lshlrev_b32 v245, 3, v245")
    for ct in range(2):
        a("v_add_u32 v246, %d, v244" % (2 * ct))
        a("v_and_b32 v246, 3, v246")
        a("v_lshl_add_u32 v246, v246, 5, v245")
        a("v_xor_b32 v246, v246, v240")
        a("v_add_u32 %s, v246, v243" % v(vDr + ct))


a.label("Ldown")
a("s_cmp_eq_u32 %s, 0" % s(sFin))
a("s_cbranch_scc1 Lexit")
dr_setup()
a("s_mul_i32 s11, s12, 7")
a("s_lshr_b32 s11, s11, 1")
a("s_lshl_b32 s13, %s, 4" % s(sR))
a("s_add_u32 s11, s11, s13")
a("s_lshl_b32 s11, s11, 9")
a("s_add_u32 s11, s11, 0x%x" % FH_OFF)
a("s_cmp_eq_u32 s12, 3")
a("s_cselect_b32 s13, 23, 15")
a("v_min_u32 v240, s13, %s" % v(vLane))
a("v_lshl_add_u32 %s, v240, 7, s11" % v(vFA))
a("s_mul_i32 s11, %s, 229376" % s(sR))
a("s_mul_i32 s13, s12, 28672")
a("s_add_u32 s11, s11, s13")
a("s_add_u32 s11, s11, 0x%x" % H_OFF)
a("v_add_u32 %s, s11, %s" % (v(vH0), v(vL16)))
a("s_lshl_b32 %s, %s, 10" % (s(sOA), s(sTr)))
a("s_mul_i32 %s, s12, %d" % (s(sOB), 112 * 896))
a("v_add_u32 %s, 114688, %s" % (v(vH1), v(vH0)))
for i in range(64):
    a("v_mov_b32 %s, 0" % v(DA + i))
poll(vFA, vFT)
stamp(5)
vmq = []


def hload(i):
    for rt in range(2):
        a("buffer_load_dwordx4 %s, %s, %s, %s offen sc1" % (
            v(HB + 8 * (i & 7) + 4 * rt, 4), v((vH0, vH1)[rt]), s(rWS, 4), s(sOA)))
        vmq.append(("h", i))
    a("s_add_u32 %s, %s, 1024" % (s(sOA), s(sOA)))
    a("s_cmp_eq_u32 %s, 28672" % s(sOA))
    a("s_cselect_b32 %s, 0, %s" % (s(sOA), s(sOA)))


def vm_wait(tags):
    idx = [k for k, t in enumerate(vmq) if t in tags]
    return None if not idx else len(vmq) - 1 - max(idx)


def wreads(dst, off):
    for ct in range(2):
        for jj in range(2):
            a("ds_read_b64_tr_b16 %s, %s offset:%d" % (v(dst + 4 * ct + 2 * jj, 2), v(vDr + ct), off + 1024 * jj))


for i in range(8):
    hload(i)
wreads(WF, 0)
for i in range(28):
    n = vm_wait({("h", i), ("w", i + 1)})
    a("s_waitcnt vmcnt(%d) lgkmcnt(0)" % n)
    if i + 1 < 28:
        wreads(WF + 8 * ((i + 1) & 1), ((i + 1) % 13) * 2048)
    for rt in range(2):
        for ct in range(2):
            mfma(DA + 32 * rt + 16 * ct, WF + 8 * (i & 1) + 4 * ct, HB + 8 * (i & 7) + 4 * rt)
    if i <= 14:
        for e in range(2):
            for x in dma_lines(vDd, rWD, sOC, sWd, (i % 13) * 2048 + 1024 * e):
                a(x)
            for x in wd_adv(e):
                a(x)
            vmq.append(("w", i + 13))
    elif i <= 22:
        for e in range(2):
            for x in dma_lines(vDd, rWO, sOB, sWd, (i % 13) * 2048 + 1024 * e):
                a(x)
            a("s_add_u32 %s, %s, 7168" % (s(sOB), s(sOB)))
            vmq.append(("o", i))
    if i + 8 < 28:
        hload(i + 8)
stamp(7)
a("v_add_u32 v240, %s, %s" % (s(sWd), v(vL16)))
a("s_nop 10")
for o in range(4):
    for q in range(2):
        a("ds_write_b128 v240, %s offset:%d" % (v(DA + 32 + 8 * o + 4 * q, 4), (o >> 1) * 20480 + (o & 1) * 2048 + 1024 * q))
a("s_mov_b32 %s, 0" % s(sHalf))
stamp(8)
a("s_branch Ltail2")

OF, WOF, RR = 64, 128, 96
a.label("Ltail")
dr_setup()
a.label("Ltail2")
a("s_and_b32 s12, %s, 3" % s(sW))
a("s_lshl_b32 s11, %s, 1" % s(sR))
a("s_add_u32 s14, s11, %s" % s(sHalf))
a("s_lshl_b32 s11, s14, 2")
a("s_add_u32 s11, s11, s12")
a("s_lshl_b32 s13, s11, 13")
a("s_add_u32 %s, s13, 0x%x" % (s(sOA), O_OFF))
a("s_add_u32 %s, %s, 4096" % (s(sOB), s(sOA)))
a("s_lshl_b32 s11, s11, 9")
a("s_add_u32 s11, s11, 0x%x" % FO_OFF)
a("v_and_b32 v240, 3, %s" % v(vLane))
a("v_lshl_add_u32 %s, v240, 7, s11" % v(vFA))
srd(rOUT, pOUT, 2048 * 896)
a("v_and_b32 v240, 31, %s" % v(vLane))
a("s_lshl_b32 s14, s14, 5")
a("v_add_u32 v240, s14, v240")
a("v_mul_u32_u24 v240, 896, v240")
a("v_lshrrev_b32 v243, 5, %s" % v(vLane))
a("v_lshlrev_b32 v243, 4, v243")
a("s_lshl_b32 s13, %s, 7" % s(sT))
a("s_lshl_b32 s14, s12, 5")
a("s_add_u32 s13, s13, s14")
a("v_add3_u32 v247, v240, v243, s13")
a("s_mul_i32 s15, %s, 24576" % s(sHalf))
for o in range(1, 4):
    a("s_add_u32 s11, s12, %d" % o)
    a("s_and_b32 s11, s11, 3")
    a("s_mul_i32 s11, s11, 6144")
    a("s_add_u32 s11, s11, s15")
    a("s_add_u32 s11, s11, %d" % (PB + 2048 * (o - 1)))
    a("v_add_u32 %s, s11, %s" % (v(232 + o), v(vL16)))
a("s_mul_i32 s11, s12, 6144")
a("s_add_u32 s11, s11, s15")
a("v_add_u32 v232, s11, %s" % v(vL16))
for k in range(4):
    a("s_sub_u32 s11, s12, %d" % k)
    a("s_and_b32 s11, s11, 3")
    a("s_lshr_b32 s13, s11, 1")
    a("s_mul_i32 s13, s13, 20480")
    a("s_and_b32 s11, s11, 1")
    a("s_lshl_b32 s11, s11, 11")
    a("s_add_u32 s11, s11, s13")
    a("s_add_u32 s11, s11, %d" % (DB + k * DREG))
    a("v_add_u32 %s, s11, %s" % (v(236 + k), v(vL16)))
poll(vFA, vFT)
stamp(9)
for k in range(8):
    a("buffer_load_dwordx4 %s, %s, %s, %s offen offset:%d sc1" % (v(OF + 4 * k, 4), v(vL16), s(rWS, 4), s((sOA, sOB)[k >> 2]), 1024 * (k & 3)))
a("s_waitcnt lgkmcnt(0)")
a("s_barrier")
for k in range(8):
    wreads(WOF + 8 * k, 4096 + (28 * (k >> 1) + 16 * (k & 1)) * 128)
    if k in (2, 4, 6):
        a("s_waitcnt lgkmcnt(4)")
for k in range(8):
    a("s_waitcnt vmcnt(%d) lgkmcnt(0)" % (7 - k))
    for ct in range(2):
        mfma(16 * ct, WOF + 8 * k + 4 * ct, OF + 4 * k)
stamp(10)
a("s_nop 11")
for o in range(1, 4):
    for q in range(2):
        a("ds_write_b128 %s, %s offset:%d" % (v(232 + o), v(8 * o + 4 * q, 4), 1024 * q))
a("s_waitcnt lgkmcnt(0)")
a("s_barrier")
for u in range(3):
    for q in range(2):
        a("ds_read_b128 %s, v232 offset:%d" % (v(RR + 8 * u + 4 * q, 4), PB + 2048 * u + 1024 * q))
a("s_cmp_eq_u32 %s, 0" % s(sHalf))
a("s_cbranch_scc1 Lfin_sum")
for k in range(4):
    for q in range(2):
        a("ds_read_b128 %s, %s offset:%d" % (v(WOF + 8 * k + 4 * q, 4), v(236 + k), 1024 * q))
a("s_waitcnt lgkmcnt(0)")
for k in range(4):
    for p in range(4):
        a("v_pk_add_f32 %s, %s, %s" % (v(2 * p, 2), v(2 * p, 2), v(WOF + 8 * k + 2 * p, 2)))
a.label("Lfin_sum")
a("s_waitcnt lgkmcnt(0)")
for u in range(3):
    for p in range(4):
        a("v_pk_add_f32 %s, %s, %s" % (v(2 * p, 2), v(2 * p, 2), v(RR + 8 * u + 2 * p, 2)))
for p in range(4):
    a("v_cvt_pk_bf16_f32 %s, %s, %s" % (v(8 + p), v(2 * p), v(2 * p + 1)))
a("s_nop 1")
a("v_permlane32_swap_b32 v8, v10")
a("v_permlane32_swap_b32 v9, v11")
if LEAK:
    a("s_memrealtime s[100:101]")
    a("s_waitcnt lgkmcnt(0)")
    a("v_sub_u32 v240, s100, v253")
    a("v_cmp_lt_u32 vcc, %d, v240" % LEAK)
    a("v_mov_b32 v241, 0x7fc07fc0")
    srd(rT, pDBG, 256)
    a("buffer_load_dword v242, %s, %s, 0 offen offset:8 sc1" % (v(vZero), s(rT, 4)))
    a("s_waitcnt vmcnt(0)")
    a("v_readfirstlane_b32 s12, v242")
    a("s_nop 1")
    a("s_cmp_eq_u32 s12, 0")
    a("s_cselect_b64 vcc, vcc, 0")
    a("s_nop 1")
    a("v_cndmask_b32 v8, v8, v241, vcc")
a("buffer_store_dwordx4 v[8:11], v247, %s, 0 offen" % s(rOUT, 4))
a.label("Lexit")
if PROF:
    stamp(11)
    a("s_memrealtime %s" % s(sStamp, 2))
    a("s_waitcnt lgkmcnt(0)")
    a("v_writelane_b32 %s, %s, 17" % (v(vProf), s(sStamp)))
    a("s_lshl_b32 s11, s2, 3")
    a("s_add_u32 s11, s11, %s" % s(sW))
    a("s_lshl_b32 s11, s11, 7")
    a("s_add_u32 s11, s11, 0x%x" % PROF_OFF)
    a("v_lshl_add_u32 v240, %s, 2, s11" % v(vLane))
    a("s_mov_b64 exec, 0xffffffff")
    a("buffer_store_dword %s, v240, %s, 0 offen" % (v(vProf), s(rWS, 4)))
if DBGT:
    a("s_waitcnt vmcnt(0)")
    a("s_memrealtime s[100:101]")
    a("s_memtime s[98:99]")
    srd(rT, pDBG, 256)
    a("s_waitcnt lgkmcnt(0)")
    a("s_and_b32 s11, s2, 31")
    a("s_add_u32 s11, s11, %s" % s(sW))
    a("s_cmp_lg_u32 s11, 0")
    a("s_cbranch_scc1 Lend")
    a("s_cmp_ge_u32 s2, 160")
    a("s_cbranch_scc1 Lend")
    a("s_lshr_b32 s11, s2, 5")
    a("s_mul_i32 s11, s11, 12")
    a("v_mov_b32 v240, v253")
    a("v_sub_u32 v241, s100, v253")
    a("v_sub_u32 v242, s98, v254")
    a("s_mov_b64 exec, 1")
    a("buffer_store_dwordx3 v[240:242], %s, %s, s11 offen offset:4" % (v(vZero), s(rT, 4)))
a.label("Lend")
a("s_endpgm")

if STF != "sc1":
    a.L = [(l[:-4] + (" " + STF.replace("+", " ") if STF != "none" else "")) if l.startswith("buffer_store_dwordx4") and l.endswith(" sc1") else l for l in a.L]
bad = check(a.L)
if bad:
    print("%d hazards" % len(bad))

head = open("cdna_kernels/%s.s.ref" % NAME).read().split("; Override launch")[0]
txt = head + "; @launch grid=(256,1,1) block=(512,1,1) lds=%d\n" % LDS_BYTES
txt += '.amdgcn_target "amdgcn-amd-amdhsa--gfx950"\n.text\n.globl %s_kernel\n.p2align 8\n.type %s_kernel,@function\n' % (NAME, NAME)
txt += a.text()
txt += """.section .rodata,"a"
.p2align 6
.amdhsa_kernel %s_kernel
  .amdhsa_next_free_vgpr 256
  .amdhsa_next_free_sgpr 102
  .amdhsa_accum_offset 256
  .amdhsa_group_segment_fixed_size 0
  .amdhsa_kernarg_size 88
  .amdhsa_user_sgpr_count 2
  .amdhsa_user_sgpr_kernarg_segment_ptr 1
  .amdhsa_system_sgpr_workgroup_id_x 1
.end_amdhsa_kernel
""" % NAME
open(OUT, "w").write(txt)
print("wrote", OUT, len(a.L), "lines")
```

```python
import sys, struct, math
from asmlib import Asm, v, s, check

NAME = "gated_mix__mha_block__glu_gated_geglu__prompt"
PROF = "--prof" in sys.argv
FORCE_FB = "--force-fallback" in sys.argv
def opt(name, default):
    for x in sys.argv:
        if x.startswith("--%s=" % name):
            return type(default)(x.split("=")[1])
    return default
SLEEP = opt("sleep", 1)
STF = opt("stf", "sc1")
PFMODE = opt("pf", 0)
ROT = opt("rot", 6)
RN = opt("rn", 7)
KPRIO = opt("kprio", 0)
NC = opt("nc", 2)
WARM = opt("warm", 1)
GOPOS = opt("go", 1)
EARLY = opt("early", 1)
TOUCH = opt("touch", 0)
DYN = opt("dyn", 0)
SWIN = opt("swin", 8)
HD = opt("hd", 8)
WD = opt("wd", 13)
DPOS_LO = [int(x) for x in opt("dlo", "1,3,4,6").split(",")]
DPOS_HI = [int(x) for x in opt("dhi", "2,4,6").split(",")]
CODEPF = opt("codepf", 1)
DBGT = "--dbgt" in sys.argv
LEAK = opt("leak", 0)
OUT = [a for a in sys.argv[1:] if not a.startswith("--")]
OUT = OUT[0] if OUT else "cdna_kernels/%s.s" % NAME


def f2u(x):
    return struct.unpack("<I", struct.pack("<f", x))[0]


KV_OFF, Q_OFF, H_OFF, O_OFF = 0, 0x400000, 0x600000, 0xD00000
FQ_OFF, FH_OFF, FO_OFF, E_OFF, PROF_OFF = 0xF00000, 0xF40000, 0xF80000, 0xFA0000, 0xFC0000
WS_BYTES = 0x1000000
XB, WB, TB, EX, CNT = 0, 49152, 155648, 159744, 160768
GO = CNT + 32
WSLOT = 20480
PB, DB, DREG = 0, 49152, 26624
LDS_BYTES = 163840
SPIN_MAX = 1 << 18

sB, sW, sM, sJ, sH, sMA, sR, sT, sNON = 2, 3, 4, 5, 6, 7, 8, 9, 10
t0, t1, t2, t3, t4 = 11, 12, 13, 14, 15
pX, pQKV, pWO, pWG, pWU, pWD, pGW, pOUT, pDBG, pWS = 16, 18, 20, 24, 26, 28, 30, 32, 34, 36
t5, t6 = 38, 39
rA, rB, rC, rWS, rWD, rWO, rOUT, rT = 40, 44, 48, 52, 56, 60, 64, 68
sIt, sOA, sOB, sOC, sSA, sSB, sSC = 72, 73, 74, 75, 76, 77, 78
sWr, sWd, sXs, sXp, sXo, sTr, sX0 = 79, 80, 81, 82, 83, 84, 85
sHalf, sCg, sFin, sSpin = 86, 87, 88, 89
mHI, mT, kG, kS = 90, 92, 94, 96
sP = 98
sStamp = 100
sTj, sWB = 97, 89
vL16, vLane, vZero = 250, 251, 252
vProf = 230

a = Asm()
nstamp = [0]


def stamp(k):
    if not PROF:
        return
    a("s_memtime %s" % s(sStamp, 2))
    a("s_waitcnt lgkmcnt(0)")
    a("v_writelane_b32 %s, %s, %d" % (v(vProf), s(sStamp), k))


def srd(r, p, nbytes):
    a("s_mov_b32 %s, %s" % (s(r), s(p)))
    a("s_mov_b32 %s, %s" % (s(r + 1), s(p + 1)))
    a("s_mov_b32 %s, 0x%x" % (s(r + 2), nbytes))
    a("s_mov_b32 %s, 0x20000" % s(r + 3))


def mfma(d, A, B, C=None):
    c = v(d, 16) if C is None else C
    a("v_mfma_f32_32x32x16_bf16 %s, %s, %s, %s" % (v(d, 16), v(A, 4), v(B, 4), c))


def dma(vo, r, so, m0src, m0add=0):
    if m0add:
        a("s_add_u32 m0, %s, %d" % (s(m0src), m0add))
    else:
        a("s_mov_b32 m0, %s" % s(m0src))
    a("s_nop 0")
    a("buffer_load_dwordx4 %s, %s, %s offen lds" % (v(vo), s(r, 4), s(so)))


uid = [0]


def L(p):
    uid[0] += 1
    return "L%s_%d" % (p, uid[0])


def poll(vaddr, vtmp):
    lp, done = L("poll"), L("pdone")
    a("s_mov_b32 %s, %d" % (s(sSpin), SPIN_MAX))
    a.label(lp)
    a("buffer_load_dword %s, %s, %s, 0 offen sc1" % (v(vtmp), v(vaddr), s(rWS, 4)))
    a("s_waitcnt vmcnt(0)")
    a("v_cmp_ne_u32 vcc, %s, %s" % (s(sNON), v(vtmp)))
    a("s_nop 1")
    a("s_cbranch_vccz %s" % done)
    a("s_sub_u32 %s, %s, 1" % (s(sSpin), s(sSpin)))
    a("s_cbranch_scc1 %s" % done)
    a("s_sleep %d" % SLEEP)
    a("s_branch %s" % lp)
    a.label(done)


def get_nonce(vn, vtmp):
    lp, done = L("non"), L("ndone")
    a("s_mov_b32 %s, %d" % (s(sSpin), SPIN_MAX))
    a.label(lp)
    a("v_readfirstlane_b32 %s, %s" % (s(sNON), v(vn)))
    a("s_nop 1")
    a("s_cmp_lg_u32 %s, 0" % s(sNON))
    a("s_cbranch_scc1 %s" % done)
    a("s_sub_u32 %s, %s, 1" % (s(sSpin), s(sSpin)))
    a("s_cbranch_scc1 %s" % done)
    a("buffer_load_dword %s, %s, %s, 0 offen sc1" % (v(vn), v(vZero), s(rT, 4)))
    a("s_waitcnt vmcnt(0)")
    a("s_branch %s" % lp)
    a.label(done)


def flag_store(vaddr, vtmp, nlanes=1):
    a("v_mov_b32 %s, %s" % (v(vtmp), s(sNON)))
    a("s_mov_b64 exec, %d" % ((1 << nlanes) - 1))
    a("buffer_store_dword %s, %s, %s, 0 offen sc1" % (v(vtmp), v(vaddr), s(rWS, 4)))
    a("s_mov_b64 exec, -1")


a.label(NAME + "_kernel")
a("s_cmp_ge_u32 s2, 256")
a("s_cbranch_scc1 Lend")
if "--badmap" in sys.argv:
    a("s_lshr_b32 s11, s2, 5")
    a("s_and_b32 s2, s2, 31")
    a("s_lshl_b32 s2, s2, 3")
    a("s_or_b32 s2, s2, s11")
a("s_load_dwordx16 s[16:31], s[0:1], 0")
a("s_load_dwordx4 s[32:35], s[0:1], 64")
a("s_load_dwordx2 s[36:37], s[0:1], 80")
if PROF:
    a("v_mov_b32 %s, 0" % v(vProf))
    a("s_memrealtime %s" % s(sStamp, 2))
    a("s_waitcnt lgkmcnt(0)")
    a("v_writelane_b32 %s, %s, 16" % (v(vProf), s(sStamp)))
    stamp(14)
if DBGT or LEAK:
    a("s_memrealtime s[100:101]")
    a("s_memtime s[98:99]")
    a("s_waitcnt lgkmcnt(0)")
    a("v_mov_b32 v253, s100")
    a("v_mov_b32 v254, s98")
a("v_lshrrev_b32 v1, 6, v0")
a("v_and_b32 %s, 63, v0" % v(vLane))
a("v_readfirstlane_b32 %s, v1" % s(sW))
a("v_lshlrev_b32 %s, 4, %s" % (v(vL16), v(vLane)))
a("v_mov_b32 %s, 0" % v(vZero))
sCol, sSpec = 5, 39
a("""
s_and_b32 s11, s2, 7
s_lshr_b32 s12, s2, 3
s_and_b32 s13, s11, 1
s_lshl_b32 s13, s13, 3
s_and_b32 s14, s12, 7
s_add_u32 s4, s13, s14
s_lshr_b32 s13, s11, 1
s_lshr_b32 s14, s12, 3
s_mul_i32 s15, s13, 3
s_add_u32 s15, s15, s14
s_add_u32 s13, s13, 12
s_cmp_eq_u32 s14, 3
s_cselect_b32 s5, s13, s15
s_cselect_b32 s39, 1, 0
""")
a("s_and_b32 %s, %s, 1" % (s(sHalf), s(sW)))
a("s_lshr_b32 %s, %s, 1" % (s(sCg), s(sW)))

vWb, vWa, vXb, vXa0, vXa1, vTb, vDA, vDB, vDC, vDC2 = 1, 4, 7, 8, 9, 10, 11, 12, 13, 14
a("""
v_lshrrev_b32 v16, 3, v251
v_and_b32 v17, 7, v251
v_bfe_u32 v25, v16, 1, 1
v_lshlrev_b32 v25, 2, v25
v_xor_b32 v25, v25, v17
v_lshlrev_b32 v25, 4, v25
""")
a("s_and_b32 s12, %s, 3" % s(sW))
a("s_lshl_b32 s13, s12, 3")
a("s_lshl_b32 s15, s12, 10")
a("v_add_u32 v26, s13, v16")
a("v_mul_u32_u24 v27, 3584, v26")
a("v_mul_u32_u24 v28, 2688, v26")
a("v_xor_b32 v29, 32, v25")
a("s_lshl_b32 s13, %s, 8" % s(sCol))
a("s_add_u32 s14, %s, 12" % s(sCol))
a("s_lshl_b32 s14, s14, 7")
a("s_cmp_eq_u32 %s, 1" % s(sSpec))
a("s_cselect_b32 s38, s14, s13")
a("s_lshr_b32 s12, s2, 3")
a("s_and_b32 s13, s12, 7")
a("s_lshr_b32 s12, s12, 3")
a("s_lshl_b32 s12, s12, 1")
a("s_add_u32 s12, s12, s13")
a("s_mul_i32 s13, s12, %d" % (256 // (7 - NC) + 1))
a("s_lshr_b32 s13, s13, 8")
a("s_mul_i32 s13, s13, %d" % (7 - NC))
a("s_sub_u32 %s, s12, s13" % s(sXp))
if not ROT & 1:
    a("s_mov_b32 %s, 0" % s(sXp))
a("s_mov_b32 %s, 0" % s(sOA))
a("s_mov_b32 %s, 0" % s(sOB))
a("s_mov_b32 %s, 0" % s(sXo))
a("s_mov_b32 %s, %d" % (s(sSA), 32 * 3584))
a("s_cmp_ge_u32 %s, 4" % s(sW))
a("s_cbranch_scc1 Lsetup_hi")

WG_BYTES, QKV_BYTES, X_BYTES = 448 * 3584, 448 * 2688, 2048 * 896
ACC = 128
XS, WS_ = (64, 84), (72, 92)
ACC_LO, XS_LO, WS_LO = 96, (36, 52), (44, 60)


def late_setup():
    a("""
s_and_b32 s11, s2, 7
s_lshr_b32 s12, s2, 3
s_lshl_b32 s13, s11, 1
s_lshr_b32 s38, s12, 4
s_add_u32 s6, s13, s38
s_and_b32 s7, s12, 15
s_mul_i32 s13, s12, 37
s_lshr_b32 s13, s13, 8
s_mul_i32 s38, s13, 7
s_sub_u32 s9, s12, s38
s_lshl_b32 s38, s11, 2
s_add_u32 s8, s38, s13
s_cmp_lt_u32 s12, 28
""")
    a("s_cselect_b32 %s, 1, 0" % s(sFin))
    a("s_mov_b32 %s, 0" % s(mHI))
    a("s_mov_b32 %s, -1" % s(mHI + 1))
    a("s_mov_b32 %s, 0x88880000" % s(mT))
    a("s_mov_b32 %s, 0x88880000" % s(mT + 1))
    K1 = -2.0 * math.sqrt(2.0 / math.pi) * math.log2(math.e)
    a("s_mov_b32 %s, 0x%x" % (s(kG), f2u(K1 * 0.044715)))
    a("s_mov_b32 %s, 0x%x" % (s(kG + 1), f2u(K1)))
    a("s_mov_b32 %s, 0xffff0000" % s(sP))
    a("s_mov_b32 %s, 0xffff0000" % s(sP + 1))
    a("""
v_bfe_u32 v18, v251, 2, 2
v_and_b32 v19, 3, v251
v_lshlrev_b32 v19, 3, v19
v_lshrrev_b32 v20, 5, v251
v_and_b32 v21, 31, v251
v_lshl_add_u32 v22, v20, 3, v18
v_lshlrev_b32 v22, 7, v22
v_lshrrev_b32 v23, 1, v18
v_lshlrev_b32 v23, 6, v23
""")
    a("v_lshl_add_u32 %s, v20, 2, v18" % v(vTb))
    a("v_lshlrev_b32 %s, 3, %s" % (v(vTb), v(vTb)))
    a("v_bfe_u32 v24, v21, 1, 3")
    a("v_xor_b32 v24, v24, v20")
    a("v_lshlrev_b32 v24, 4, v24")
    a("s_lshl_b32 s11, %s, 13" % s(sHalf))
    a("v_lshl_add_u32 %s, v21, 7, v24" % v(vXb))
    a("v_add_u32 %s, s11, %s" % (v(vXb), v(vXb)))
    a("v_bfe_u32 v27, v0, 4, 1")
    a("v_lshlrev_b32 v34, 11, v27")
    a("v_lshrrev_b32 v27, 8, v0")
    a("v_lshl_add_u32 v34, v27, 10, v34")
    a("v_bfe_u32 v27, v0, 2, 1")
    a("v_lshl_add_u32 v34, v27, 9, v34")
    a("v_bfe_u32 v27, v0, 5, 3")
    a("v_lshl_add_u32 v34, v27, 6, v34")
    a("v_bfe_u32 v27, v0, 3, 1")
    a("v_lshl_add_u32 v34, v27, 5, v34")
    a("v_and_b32 v27, 3, v0")
    a("v_lshl_add_u32 v34, v27, 3, v34")
    a("v_add_u32 v34, %d, v34" % TB)
    a("v_mov_b32 v31, 0")
    a("s_mov_b32 %s, %d" % (s(sWr), WB))
    a("s_mov_b32 %s, 0" % s(sXs))
    a("s_add_u32 s13, %s, %d" % (s(sXp), NC))
    a("s_lshr_b32 s11, s13, 2")
    a("s_lshl_b32 s11, s11, 10")
    a("s_and_b32 s12, s13, 3")
    a("s_lshl_b32 s12, s12, 7")
    a("s_add_u32 s11, s11, s12")
    a("s_add_u32 %s, s11, %d" % (s(sTj), TB))
    a("s_mov_b32 %s, %d" % (s(sTr), TB))
    a("s_mov_b32 %s, 0" % s(sIt))
    a("s_mul_i32 %s, %s, %d" % (s(sWB), s(sSB), 2 * NC))


def gate_load():
    srd(rT, pGW, 896)
    a("v_lshlrev_b32 v35, 1, v0")
    a("buffer_load_ushort v30, v35, %s, 0 offen" % s(rT, 4))


def tile_base(vd):
    a("v_mov_b32 v27, s11")
    a("v_mov_b32 v28, s12")
    a("v_cndmask_b32 v27, v27, v28, %s" % s(sP, 2))
    a("v_add_u32 v27, v27, v19")
    a("v_xor_b32 v27, v27, v23")
    a("v_add_u32 %s, v27, v22" % v(vd))


def addr_update(ncol, lo, par):
    r = ["s_or_b32 %s, %s, %d" % (s(sX0), s(sXs), 64 * par)]
    for c in range(ncol):
        r += ["v_add_u32 %s, %s, %s" % (v(vWa + c), s(sWr), v(vWb + c))]
    r += ["v_xor_b32 %s, %s, %s" % (v(vXa0), s(sX0), v(vXb))]
    if lo:
        r += ["v_add_u32 v27, %s, %s" % (s(sTr), v(vTb)),
              "v_cndmask_b32 %s, %s, v27, %s" % (v(vWa), v(vWa), s(mT, 2))]
    r += ["v_xor_b32 %s, 32, %s" % (v(vXa1), v(vXa0))]
    return r


def reads(ncol, st, ks):
    XS, WS_ = (XS_LO, WS_LO) if ncol == 2 else (globals()["XS"], globals()["WS_"])
    xa = vXa0 if ks == 0 else vXa1
    r = []
    rx = lambda rt: "ds_read_b128 %s, %s offset:%d" % (v(XS[st] + 4 * rt, 4), v(xa), 4096 * rt)
    rw = lambda c, jj: "ds_read_b64_tr_b16 %s, %s offset:%d" % (v(WS_[st] + 4 * c + 2 * jj, 2), v(vWa + c), 2048 * ks + 512 * jj)
    r += [rx(0), rw(0, 0), rw(0, 1), rx(1)]
    for c in range(1, ncol):
        r += [rw(c, 0), rw(c, 1)]
    return r


def mm(st, vor, first=False):
    ACC, XS, WS_ = (ACC_LO, XS_LO, WS_LO) if len(vor) == 2 else (globals()["ACC"], globals()["XS"], globals()["WS_"])
    out = []
    for c, vo in enumerate(vor):
        for rt in range(2):
            d = ACC + 32 * c + 16 * rt
            W, X = WS_[st] + 4 * c, XS[st] + 4 * rt
            A, B = (X, W) if vo else (W, X)
            out.append("v_mfma_f32_32x32x16_bf16 %s, %s, %s, %s" % (v(d, 16), v(A, 4), v(B, 4), "0" if first else v(d, 16)))
    return out


def dma_lines(vo, r, so, m0src, m0add):
    return ["s_add_u32 m0, %s, %d" % (s(m0src), m0add), "s_nop 0",
            "buffer_load_dwordx4 %s, %s, %s offen lds" % (v(vo), s(r, 4), s(so))]


def adv(x, y):
    return ["s_add_u32 %s, %s, %s" % (s(x), s(x), s(y))]


def wrap(x, step, total, par, back):
    r = ["s_add_u32 %s, %s, %s" % (s(x), s(x), step)]
    if par:
        r += ["s_cmp_eq_u32 %s, %s" % (s(x), total), "s_cselect_b32 %s, %s, %s" % (s(x), back, s(x))]
    return r


def step_dmas(lo, par, static=None):
    pre = ["s_add_u32 s11, %s, %d" % (s(sXo), par * 57344)]
    jx = ja = jb = []
    if static is None:
        wm, wo, xm, xo = sWd, 0, sOC, par * 8192
    else:
        n = static + 4
        wm, wo, xm, xo = 15, WB + (n % 5) * WSLOT, 14, (n >> 1) * 16384 + par * 8192
        if n == 2 * NC - 1:
            jx = ["s_lshl_b32 s12, %s, 7" % s(sXp), "s_add_u32 %s, %s, s12" % (s(sXo), s(sXo))]
            ja = ["s_mul_i32 s12, %s, %d" % (s(sXp), 64 * 3584), "s_add_u32 %s, %s, s12" % (s(sOA), s(sOA))]
            jb = ["s_mul_i32 s12, %s, %s" % (s(sXp), s(sSB)), "s_lshl_b32 s12, s12, 1", "s_add_u32 %s, %s, s12" % (s(sOB), s(sOB))]
    wa = wrap(sOA, s(sSA), str(WG_BYTES), par, str(NC * 64 * 3584)) + ja
    wb = wrap(sOB, s(sSB), s(sSC), par, s(sWB)) + jb
    if lo:
        return [pre + dma_lines(vDC, rC, 11, xm, xo),
                dma_lines(vDC2, rC, 11, xm, xo + 1024) + (wrap(sXo, "128", "896", 1, str(NC * 128)) + jx if par else []),
                dma_lines(vDA, rA, sOA, wm, wo + 3 * 4096) + wa,
                dma_lines(vDB, rB, sOB, wm, wo + 4 * 4096) + wb]
    return [dma_lines(vDA, rA, sOA, wm, wo) + wa,
            dma_lines(vDB, rB, sOB, wm, wo + 4096),
            dma_lines(vDC, rC, sOB, wm, wo + 8192) + wb]


vTA, vTB_, vTC, vTd = 244, 245, 246, 247


def touch_setup(lo, cols):
    a("s_lshr_b32 s11, s2, 3")
    a("s_and_b32 s12, s11, 7")
    a("s_and_b32 s13, %s, 3" % s(sW))
    a("s_lshl_b32 s13, s13, 3")
    a("s_add_u32 s12, s12, s13")
    a("v_lshrrev_b32 v27, 4, %s" % v(vLane))
    a("v_lshl_add_u32 v27, v27, 5, s12")
    a("v_lshlrev_b32 v28, 4, v17")
    for vd, src in cols:
        a("v_readfirstlane_b32 s12, %s" % v(src[0]))
        a("s_mul_i32 s38, s13, %s" % src[1])
        a("s_sub_u32 s12, s12, s38")
        if src[2] == 1:
            a("s_and_b32 s12, s12, 0xffffffdf")
        if src[2] == 2:
            a("s_cmp_eq_u32 %s, 1" % s(sSpec))
            a("s_cselect_b32 s38, -1, 0xffffffdf")
            a("s_and_b32 s12, s12, s38")
        a("s_mov_b32 s38, %s" % src[1])
        a("v_mul_lo_u32 v29, v27, s38")
        a("v_add3_u32 %s, v29, v28, s12" % v(vd))
    if lo:
        a("s_lshr_b32 s11, s11, 3")
        a("s_lshl_b32 s12, %s, 7" % s(sM))
        a("s_lshl_b32 s13, %s, 4" % s(sW))
        a("s_add_u32 s12, s12, s13")
        a("s_add_u32 s12, s12, s11")
        a("v_and_b32 v27, 3, %s" % v(vLane))
        a("v_lshl_add_u32 v27, v27, 2, s12")
        a("v_bfe_u32 v28, %s, 2, 1" % v(vLane))
        a("v_lshl_add_u32 v27, v28, 6, v27")
        a("v_mul_u32_u24 v27, 896, v27")
        a("v_bfe_u32 v28, %s, 3, 1" % v(vLane))
        a("v_lshl_add_u32 %s, v28, 7, v27" % v(vTC))


def touches(lo, n):
    if not TOUCH:
        return []
    ld = lambda vd, r, so: "buffer_load_dword %s, %s, %s, %s offen" % (v(vTd), v(vd), s(r, 4), so)
    g = ["s_mov_b32 s11, %d" % ((4 * n + 2) * 32 * 3584), ld(vTA, rA, "s11"),
         "s_mul_i32 s11, %s, %d" % (s(sSB), 4 * n + 2), ld(vTB_, rB, "s11")]
    if lo:
        g += ["s_mov_b32 s11, %d" % (128 * (2 * n + 1))]
    return [g + [ld(vTC, rC, "s11")]]


def state_advance(lo, par):
    r = ["s_add_u32 %s, %s, s15" % (s(sWd), s(sWr)),
         "s_add_u32 %s, %s, %d" % (s(sWr), s(sWr), WSLOT),
         "s_cmp_eq_u32 %s, %d" % (s(sWr), WB + 5 * WSLOT),
         "s_cselect_b32 %s, %d, %s" % (s(sWr), WB, s(sWr))]
    if lo:
        r += ["s_add_u32 %s, %s, 64" % (s(sTr), s(sTr))]
    if par == 1:
        if lo:
            r += ["s_add_u32 %s, %s, s14" % (s(sOC), s(sXs)),
                  "s_cmp_eq_u32 %s, %d" % (s(sTr), TB + 512),
                  "s_cselect_b32 %s, %d, %s" % (s(sTr), TB + 1024, s(sTr)),
                  "s_cmp_eq_u32 %s, %d" % (s(sTr), TB + 1024 + 384),
                  "s_cselect_b32 %s, %d, %s" % (s(sTr), TB + (NC >> 2) * 1024 + (NC & 3) * 128, s(sTr)),
                  "s_cmp_eq_u32 %s, %d" % (s(sIt), NC - 1),
                  "s_cselect_b32 %s, %s, %s" % (s(sTr), s(sTj), s(sTr))]
        r += ["s_add_u32 %s, %s, 16384" % (s(sXs), s(sXs)),
              "s_cmp_eq_u32 %s, 49152" % s(sXs),
              "s_cselect_b32 %s, 0, %s" % (s(sXs), s(sXs))]
    return r


def interleave(ms, fill):
    for i, m in enumerate(ms):
        a(m)
        if i < len(fill):
            for x in fill[i]:
                a(x)
    for g in fill[len(ms):]:
        for x in g:
            a(x)


vNon, vFA, vFT = 240, 241, 242


def kstep(lo, vor, par, nvm, d, first=False, tail=()):
    ncol = len(vor)
    nm = 2 * ncol
    a("s_waitcnt vmcnt(%d) lgkmcnt(0)" % nvm)
    a("s_barrier")
    if first:
        stamp(2)
    g1 = [[] for _ in range(nm)]
    g2 = [[] for _ in range(nm)]
    for g, r in ((g1, reads(ncol, 0, 0)), (g2, reads(ncol, 1, 1))):
        for i, x in enumerate(r):
            g[i // 3].append(x)
    pos = list(DPOS_LO if lo else DPOS_HI)
    if len(d) > len(pos):
        pos = [min(i * (2 * nm - 2) // len(d) + 1, 2 * nm - 3) for i in range(len(d))]
    for p, grp in zip(pos, d):
        (g1 if p < nm else g2)[p % nm].extend(grp)
    last = max(max(pos) - nm, (len(reads(ncol, 1, 1)) - 1) // 3)
    book = state_advance(lo, par) + addr_update(ncol, lo, 1 - par) + list(tail)
    if lo or last >= nm - 2:
        g2[max(last, nm - 2)].extend(book)
    else:
        n1 = len(state_advance(lo, par))
        g2[max(last, nm - 3)].extend(book[:n1])
        g2[nm - 2].extend(book[n1:])
    if "--nodma" in sys.argv:
        g1 = [[x for x in g if not x.endswith(" lds")] for g in g1]
        g2 = [[x for x in g if not x.endswith(" lds")] for g in g2]
    if "--nords" in sys.argv:
        g1 = [[x for x in g if not x.startswith("ds_read")] for g in g1]
        g2 = [[x for x in g if not x.startswith("ds_read")] for g in g2]
    nomf = "--nomfma" in sys.argv
    interleave([] if first or nomf else mm(1, vor), g1)
    a("s_waitcnt lgkmcnt(0)")
    interleave([] if nomf else mm(0, vor, first), g2)


def kloop(tag, lo, vor):
    top = "Lk_%s" % tag
    for x in addr_update(len(vor), lo, 0):
        a(x)
    if KPRIO and not lo:
        a("s_setprio 1")
    t = 3 if TOUCH else 0
    kstep(lo, vor, 0, 3 + t, step_dmas(lo, 0, -2) + step_dmas(lo, 1, -1) + touches(lo, 1), first=True)
    kstep(lo, vor, 1, (9 if lo else 6) + 2 * t, step_dmas(lo, 0, 0) + step_dmas(lo, 1, 1) + touches(lo, 2), tail=["s_mov_b32 %s, 1" % s(sIt)])
    if TOUCH:
        kstep(lo, vor, 0, (10 if lo else 9) + 2 * t, step_dmas(lo, 0))
        kstep(lo, vor, 1, (12 if lo else 9) + 2 * t, step_dmas(lo, 1), tail=["s_mov_b32 %s, 2" % s(sIt)])
    a(".p2align 5")
    a.label(top)
    if PROF:
        a("s_memtime %s" % s(sStamp, 2))
        a("s_add_u32 s12, %s, 17" % s(sIt))
        a("s_waitcnt lgkmcnt(0)")
        a("s_mov_b32 m0, s12")
        a("v_writelane_b32 %s, %s, m0" % (v(vProf), s(sStamp)))
    for par in range(2):
        tail = []
        if par == 1:
            tail = ["s_cmp_lg_u32 %s, 4" % s(sIt), "s_cbranch_scc1 %s_nw" % top]
            if WARM:
                tail += ["s_lshr_b32 s11, s2, 3", "s_lshl_b32 s11, s11, 3", "s_add_u32 s11, s11, %s" % s(sW), "s_lshl_b32 s11, s11, 10",
                         "v_add_u32 %s, s11, %s" % (v(vDA), v(vL16)), "v_add_u32 %s, 0x100000, %s" % (v(vDB), v(vDA))]
                for r_, p_, n_ in ((rA, pWD, 1792 * 896), (rB, pWD, 1792 * 896)) + (() if lo else ((rC, pWO, 448 * 896),)):
                    tail += ["s_mov_b32 %s, %s" % (s(r_), s(p_)), "s_mov_b32 %s, %s" % (s(r_ + 1), s(p_ + 1)), "s_mov_b32 %s, %d" % (s(r_ + 2), n_)]
                if not lo:
                    tail += ["s_lshr_b32 s12, s11, 13", "s_lshl_b32 s12, s12, 12", "s_sub_u32 s11, s11, s12", "s_sub_u32 s11, s11, 4096",
                             "v_add_u32 %s, s11, %s" % (v(vDC), v(vL16))]
                tail += ["s_mov_b32 %s, 0" % s(sOA), "s_mov_b32 %s, 0" % s(sOB), "s_mov_b32 %s, 0x40000" % s(sSA),
                         "s_mov_b32 %s, 0x%x" % (s(sSB), 0x40000 if lo else 0x20000), "s_mov_b32 %s, -1" % s(sSC)]
                if lo:
                    tail += ["s_mov_b32 %s, 0x40000000" % s(sXo)]
            else:
                tail += ["s_mov_b32 %s, 0x40000000" % s(x) for x in ((sOA, sOB, sXo) if lo else (sOA, sOB))]
            tail += [top + "_nw:"]
            tail += ["s_add_u32 %s, %s, 1" % (s(sIt), s(sIt))]
            if lo:
                tail += ["s_cmp_lg_u32 %s, s38" % s(sIt), "s_cbranch_scc1 %s_nn" % top,
                         "buffer_load_dword %s, %s, %s, 0 offen sc1" % (v(vNon), v(vZero), s(rT, 4)), top + "_nn:"]
                tail += ["s_add_u32 s11, s38, 2", "s_cmp_lg_u32 %s, s11" % s(sIt), "s_cbranch_scc1 %s_n3" % top,
                         "s_mov_b32 s12, %d" % SPIN_MAX, top + "_n1:",
                         "v_readfirstlane_b32 s11, %s" % v(vNon), "s_nop 1", "s_cmp_lg_u32 s11, 0", "s_cbranch_scc1 %s_n2" % top,
                         "s_sub_u32 s12, s12, 1", "s_cbranch_scc1 %s_n2" % top,
                         "buffer_load_dword %s, %s, %s, 0 offen sc1" % (v(vNon), v(vZero), s(rT, 4)), "s_waitcnt vmcnt(0)",
                         "s_branch %s_n1" % top, top + "_n2:", "v_mov_b32 v27, %d" % (CNT + 16), "ds_write_b32 v27, %s" % v(vNon), top + "_n3:"]
            tail += ["s_cmp_lt_u32 %s, 7" % s(sIt)]
        kstep(lo, vor, par, 10 if lo else 9, step_dmas(lo, par), tail=tail)
    a("s_cbranch_scc1 %s" % top)
    a("v_mov_b32 v27, %d" % (CNT + 16))
    a("ds_read_b32 %s, v27" % v(vNon))
    a("s_waitcnt lgkmcnt(1)")
    for m in mm(1, vor):
        a(m)
    a("s_waitcnt lgkmcnt(0)")
    a("v_readfirstlane_b32 %s, %s" % (s(sNON), v(vNon)))
    if KPRIO and not lo:
        a("s_setprio 0")


a("s_add_u32 s13, s38, 128")
a("s_cmp_eq_u32 %s, 1" % s(sSpec))
a("s_cselect_b32 s13, s38, s13")
a("v_add3_u32 %s, v27, v29, s13" % v(vDA))
a("s_mul_i32 s13, %s, 112" % s(sCol))
a("v_add3_u32 %s, v28, v25, s13" % v(vDB))
a("s_lshl_b32 s11, %s, 7" % s(sM))
a("s_lshl_b32 s12, %s, 4" % s(sW))
a("s_add_u32 s11, s11, s12")
a("v_add_u32 v27, s11, v16")
a("v_mul_u32_u24 v27, 896, v27")
a("v_lshrrev_b32 v28, 1, v16")
a("v_xor_b32 v28, v28, v17")
a("v_lshl_add_u32 %s, v28, 4, v27" % v(vDC))
a("v_xor_b32 v28, 4, v28")
a("v_lshl_add_u32 %s, v28, 4, v27" % v(vDC2))
a("v_add_u32 %s, %d, %s" % (v(vDC2), 8 * 896, v(vDC2)))
a("s_lshl_b32 s14, %s, 11" % s(sW))
a("s_mov_b32 %s, %d" % (s(sSB), 32 * 2688))
a("s_mov_b32 %s, %d" % (s(sSC), QKV_BYTES))
a("s_waitcnt lgkmcnt(0)")
stamp(15)
srd(rC, pX, X_BYTES)
srd(rA, pWU, WG_BYTES)
srd(rB, pQKV, QKV_BYTES)
gate_load()
stamp(0)
for st in (-4, -3):
    for g in step_dmas(True, st & 1, st):
        for x in g:
            a(x)
a("s_getpc_b64 s[0:1]")
a.label("Lpc")
a("s_lshr_b32 s11, s2, 3")
a("s_lshl_b32 s11, s11, 10")
a("v_and_b32 v35, 7, %s" % v(vLane))
a("v_lshl_add_u32 v35, v35, 7, s11")
a("v_min_u32 v35, Lend-Lpc, v35")
if not CODEPF:
    a("v_mov_b32 v35, 0")
a("global_load_dword v35, v35, s[0:1]")
if TOUCH:
    touch_setup(True, [(vTA, (vDA, "3584", 1)), (vTB_, (vDB, "2688", 0))])
    for x in touches(True, 0)[0]:
        a(x)
late_setup()
srd(rWS, pWS, WS_BYTES)
sHp, sHa, sHb, sPad = 22, 0, 1, 23
a("s_lshl_b32 %s, %s, 1" % (s(sHp), s(sCol)))
a("s_add_u32 %s, %s, %s" % (s(sHp), s(sHp), s(sCg)))
a("s_lshl_b32 s12, %s, 1" % s(sM))
a("s_add_u32 s12, s12, %s" % s(sHalf))
a("s_lshl_b32 s12, s12, 1")
a("s_and_b32 s11, %s, 15" % s(sHp))
a("s_lshl_b32 s11, s11, 6")
a("s_add_u32 s12, s12, s11")
a("s_cmp_lt_u32 %s, 16" % s(sHp))
a("s_cselect_b32 %s, 0x%x, 1.0" % (s(kS), f2u(math.log2(math.e) / math.sqrt(28.0))))
a("s_cselect_b32 %s, 0xffff, 0" % s(sPad))
a("s_cselect_b32 s13, 0, 12")
a("s_cselect_b32 s38, 11, 12")
a("s_cselect_b32 s11, 0x%x, %d" % (Q_OFF, KV_OFF))
a("s_lshl_b32 s12, s12, s38")
a("s_add_u32 %s, s11, s12" % s(sHa))
a("s_lshl_b32 s12, 1, s38")
a("s_add_u32 %s, %s, s12" % (s(sHb), s(sHa)))
a("v_lshrrev_b32 v27, 1, %s" % v(vLane))
a("v_xor_b32 v27, v27, %s" % v(vLane))
a("v_bfe_u32 v27, v27, 2, 1")
a("v_mul_u32_u24 v27, s13, v27")
a("v_xor_b32 v27, v27, %s" % v(vLane))
a("v_lshlrev_b32 v26, 4, v27")
a("s_lshl_b32 s11, %s, 8" % s(sHalf))
a("s_add_u32 s11, s11, %d" % EX)
a("v_lshl_add_u32 v25, %s, 2, s11" % v(vLane))
a("s_mul_i32 s11, %s, 56" % s(sCg))
a("s_add_u32 s11, s11, 16384")
a("s_add_u32 s12, s11, 32")
tile_base(vWb)
a("s_lshl_b32 s11, %s, 12" % s(sCg))
a("s_add_u32 s12, s11, %d" % (8192 + 32))
a("s_lshl_b32 s13, %s, 5" % s(sCg))
a("s_xor_b32 s38, s13, %d" % (12288 + 32))
a("s_cmp_eq_u32 %s, 1" % s(sSpec))
a("s_cselect_b32 s11, s13, s11")
a("s_cselect_b32 s12, s38, s12")
tile_base(vWb + 1)
a("s_cmp_eq_u32 %s, 0" % s(sW))
a("s_cselect_b32 s38, 4, 99")
a("v_lshlrev_b32 v27, 2, %s" % v(vLane))
a("v_add_u32 v27, %d, v27" % CNT)
a("ds_write_b32 v27, v31")
a("s_waitcnt vmcnt(%d)" % (12 if TOUCH else 9))
a("ds_write_b64 v34, v[30:31]")
srd(rT, pDBG, 256)
stamp(1)
kloop("lo", True, (False, False))
a("s_branch Lepi_lo")

a.label("Lsetup_hi")
a("v_add3_u32 %s, v27, v25, s38" % v(vDA))
a("v_mov_b32 v32, %d" % E_OFF)
a("s_cmp_eq_u32 %s, 1" % s(sSpec))
a("s_cbranch_scc1 Lsetup_hi_s")
a("v_add_u32 %s, 128, %s" % (v(vDB), v(vDA)))
a("v_add3_u32 %s, v27, v29, s38" % v(vDC))
a("s_mov_b32 %s, %d" % (s(sSB), 32 * 3584))
a("s_mov_b32 %s, %d" % (s(sSC), WG_BYTES))

a("s_waitcnt lgkmcnt(0)")
srd(rB, pWG, WG_BYTES)
srd(rC, pWU, WG_BYTES)
a("s_branch Lsetup_hi_c")
a.label("Lsetup_hi_s")
a("s_mul_i32 s13, %s, 224" % s(sCol))
a("s_sub_u32 s13, s13, %d" % (12 * 224 - 1792))
a("v_add3_u32 %s, v28, v25, s13" % v(vDB))
a("v_add_u32 %s, 112, %s" % (v(vDC), v(vDB)))
a("s_mov_b32 %s, %d" % (s(sSB), 32 * 2688))
a("s_mov_b32 %s, %d" % (s(sSC), QKV_BYTES))
a("s_waitcnt lgkmcnt(0)")
srd(rB, pQKV, QKV_BYTES)
srd(rC, pQKV, QKV_BYTES)
a.label("Lsetup_hi_c")
stamp(15)
srd(rA, pWG, WG_BYTES)
srd(rWS, pWS, WS_BYTES)
a("s_lshl_b32 s14, s2, 3")
a("s_add_u32 s14, s14, %s" % s(sW))
a("s_cmp_lg_u32 s14, 7")
a("s_cbranch_scc1 Lno_nonce1")
a("buffer_load_dword v33, v32, %s, 0 offen sc1" % s(rWS, 4))
a.label("Lno_nonce1")
gate_load()
stamp(0)
for st in (-4, -3):
    for g in step_dmas(False, st & 1, st):
        for x in g:
            a(x)
if TOUCH:
    a("s_lshr_b32 %s, %s, 5" % (s(sTj), s(sSB)))
    touch_setup(False, [(vTA, (vDA, "3584", 0)), (vTB_, (vDB, s(sTj), 0)), (vTC, (vDC, s(sTj), 2))])
    for x in touches(False, 0)[0]:
        a(x)
late_setup()
a("s_waitcnt vmcnt(%d)" % (9 if TOUCH else 6))
a("ds_write_b64 v34, v[30:31]")
a("s_cmp_lg_u32 s14, 7")
a("s_cbranch_scc1 Lno_nonce2")
srd(rT, pDBG, 256)
a("v_add_u32 v33, 0x10000, v33")
a("v_or_b32 v33, 1, v33")
a("s_mov_b64 exec, 1")
a("buffer_store_dword v33, v32, %s, 0 offen sc1" % s(rWS, 4))
if LEAK:
    a("s_getreg_b32 s11, hwreg(HW_REG_XCC_ID, 0, 4)")
    a("v_mov_b32 v36, s11")
    a("buffer_store_dword v36, %s, %s, 0 offen offset:4 sc1" % (v(vZero), s(rT, 4)))
    a("s_waitcnt vmcnt(0)")
a("buffer_store_dword v33, %s, %s, 0 offen sc1" % (v(vZero), s(rT, 4)))
a("s_mov_b64 exec, -1")
a.label("Lno_nonce2")
a("s_cmp_eq_u32 %s, 1" % s(sSpec))
a("s_cbranch_scc1 Lk_hi_s_entry")
for c in range(3):
    a("s_lshl_b32 s12, %s, 12" % s(sCg))
    a("s_sub_u32 s11, s12, %d" % (8192 - 32 * (1 + c)))
    a("s_add_u32 s12, s12, %d" % ((32 * (1 + c)) ^ 32))
    tile_base(vWb + c)
stamp(1)
kloop("hi_t", False, (False, False, False))
a("s_branch Lepi_hi_t")
a.label("Lk_hi_s_entry")
for c in range(2):
    a("s_lshl_b32 s11, %s, 12" % s(sCg))
    a("s_sub_u32 s11, s11, %d" % (4096 - 56 * c))
    a("s_add_u32 s12, s11, 32")
    tile_base(vWb + c)
a("s_lshl_b32 s11, %s, 5" % s(sCg))
a("s_xor_b32 s12, s11, %d" % (12288 + 32))
tile_base(vWb + 2)
a("s_lshl_b32 s13, %s, 1" % s(sCol))
a("s_add_u32 s13, s13, %s" % s(sCg))
a("s_lshl_b32 s13, s13, 1")
a("s_sub_u32 s13, s13, %d" % (48 + 4))
a("s_add_u32 %s, s13, 32" % s(sHp))
a("s_lshl_b32 s12, %s, 1" % s(sM))
a("s_add_u32 s12, s12, %s" % s(sHalf))
a("s_lshl_b32 s12, s12, 1")
a("s_lshl_b32 s13, s13, 6")
a("s_add_u32 s12, s12, s13")
a("s_lshl_b32 %s, s12, 12" % s(sHa))
a("s_add_u32 %s, %s, 4096" % (s(sHb), s(sHa)))
a("s_mov_b32 %s, 0x0fffffff" % s(sP))
a("s_mov_b32 %s, 0x0fffffff" % s(sP + 1))
a("v_and_b32 v28, 31, %s" % v(vLane))
a("v_mul_u32_u24 v27, 37, v28")
a("v_lshrrev_b32 v27, 8, v27")
a("v_mul_u32_u24 v29, 7, v27")
a("v_sub_u32 v29, v28, v29")
a("v_cmp_lt_u32 vcc, 27, v28")
a("v_mov_b32 v30, 7")
a("s_nop 0")
a("v_cndmask_b32 v27, v27, v29, vcc")
a("v_cndmask_b32 v29, v29, v30, vcc")
a("v_lshrrev_b32 v30, 1, v27")
a("v_lshlrev_b32 v30, 4, v30")
a("v_and_b32 v27, 1, v27")
a("v_lshl_add_u32 v30, v27, 2, v30")
a("v_lshrrev_b32 v27, 2, v29")
a("v_lshl_add_u32 v30, v27, 3, v30")
a("v_and_b32 v29, 3, v29")
a("v_add_u32 v30, v30, v29")
a("v_and_b32 v27, 32, %s" % v(vLane))
a("v_add_u32 v30, v30, v27")
a("v_lshlrev_b32 v26, 4, v30")
a("v_cmp_eq_u32 vcc, 31, v28")
a("v_mov_b32 v27, 0x3f803f80")
a("s_nop 0")
a("v_cndmask_b32 v32, %s, v27, vcc" % v(vZero))
for i in range(33, 64):
    a("v_mov_b32 %s, v32" % v(i))
stamp(1)
kloop("hi_s", False, (True, True, False))
a("s_branch Lepi_hi_s")

NONL = CNT + 16


def gelu_tile(acc, vc, dst, extra=(), T=56):
    extra = list(extra)

    def ex():
        if extra:
            for x in extra.pop(0):
                a(x)
    for p in range(4):
        a("v_pk_mul_f32 %s, %s, %s" % (v(T + 2 * p, 2), v(acc + 2 * p, 2), v(acc + 2 * p, 2)))
    for p in range(4):
        a("v_pk_fma_f32 %s, %s, %s, %s op_sel:[0,0,1] op_sel_hi:[1,0,1]" % (v(T + 2 * p, 2), v(T + 2 * p, 2), s(kG, 2), s(kG, 2)))
    for p in range(4):
        a("v_pk_mul_f32 %s, %s, %s" % (v(T + 2 * p, 2), v(T + 2 * p, 2), v(acc + 2 * p, 2)))
    ex()
    for i in range(8):
        a("v_exp_f32 %s, %s" % (v(T + i), v(T + i)))
        if i == 5:
            ex()
    for p in range(4):
        a("v_pk_mul_f32 %s, %s, %s" % (v(acc + 8 + 2 * p, 2), v(acc + 8 + 2 * p, 2), v(acc + 2 * p, 2)))
    for p in range(4):
        a("v_pk_fma_f32 %s, %s, %s, %s op_sel_hi:[1,0,0]" % (v(T + 2 * p, 2), v(T + 2 * p, 2), v(vc, 2), v(vc, 2)))
    ex()
    for i in range(8):
        a("v_rcp_f32 %s, %s" % (v(T + i), v(T + i)))
        if i == 5:
            ex()
    a("s_nop 0")
    for p in range(4):
        a("v_pk_mul_f32 %s, %s, %s" % (v(acc + 8 + 2 * p, 2), v(acc + 8 + 2 * p, 2), v(T + 2 * p, 2)))
    for p in range(4):
        a("v_cvt_pk_bf16_f32 %s, %s, %s" % (v(dst + p), v(acc + 8 + 2 * p), v(acc + 9 + 2 * p)))
    while extra:
        ex()


def qk_tile(acc, vpad, vaddr, so, dst):
    for p in range(8):
        a("v_pk_mul_f32 %s, %s, %s op_sel_hi:[1,0]" % (v(acc + 2 * p, 2), v(acc + 2 * p, 2), s(kS, 2)))
    for p in range(8):
        a("v_cvt_pk_bf16_f32 %s, %s, %s" % (v(dst + p), v(acc + 2 * p), v(acc + 2 * p + 1)))
    a("v_cndmask_b32 %s, %s, %s, %s" % (v(dst + 6), v(dst + 6), v(vpad), s(mHI, 2)))
    a("v_cndmask_b32 %s, %s, %s, %s" % (v(dst + 7), v(dst + 7), v(vZero), s(mHI, 2)))
    a("buffer_store_dwordx4 %s, %s, %s, %s offen sc1" % (v(dst, 4), v(vaddr), s(rWS, 4), s(so)))
    a("buffer_store_dwordx4 %s, %s, %s, %s offen offset:1024 sc1" % (v(dst + 4, 4), v(vaddr), s(rWS, 4), s(so)))


def v_tile(acc, so, dst):
    a("s_mov_b64 exec, %s" % s(sP, 2))
    for p in range(8):
        a("v_cvt_pk_bf16_f32 %s, %s, %s" % (v(dst + p), v(acc + 2 * p), v(acc + 2 * p + 1)))
    a("s_mov_b64 exec, -1")
    a("buffer_store_dwordx4 %s, v26, %s, %s offen offset:2048 sc1" % (v(dst, 4), s(rWS, 4), s(so)))
    a("buffer_store_dwordx4 %s, v26, %s, %s offen offset:3072 sc1" % (v(dst + 4, 4), s(rWS, 4), s(so)))


def tile_index(sd):
    a("s_lshl_b32 %s, %s, 1" % (s(sd), s(sM)))
    a("s_add_u32 %s, %s, %s" % (s(sd), s(sd), s(sHalf)))
    a("s_lshl_b32 %s, %s, 1" % (s(sd), s(sd)))


def fq_addr(sHp):
    a("s_lshl_b32 s11, %s, 5" % s(sHp))
    a("s_lshl_b32 s12, %s, 1" % s(sM))
    a("s_add_u32 s11, s11, s12")
    a("s_add_u32 s11, s11, %s" % s(sHalf))
    a("s_lshl_b32 s11, s11, 7")
    a("s_add_u32 s11, s11, 0x%x" % FQ_OFF)
    a("v_lshl_add_u32 %s, %s, 12, s11" % (v(vFA), v(vLane)))


def fh_addr(vd):
    a("s_lshl_b32 s11, %s, 1" % s(sM))
    a("s_add_u32 s11, s11, %s" % s(sHalf))
    a("s_lshl_b32 s11, s11, 4")
    a("s_add_u32 s11, s11, %s" % s(sCol))
    a("s_lshl_b32 s11, s11, 1")
    a("s_add_u32 s11, s11, %s" % s(sCg))
    a("s_sub_u32 s11, s11, 2")
    a("s_lshl_b32 s11, s11, 7")
    a("s_add_u32 s11, s11, 0x%x" % FH_OFF)
    a("v_mov_b32 %s, s11" % v(vd))


def h_base(sd, sd2, sKs):
    tile_index(sd)
    a("s_mul_i32 %s, %s, 114688" % (s(sd), s(sd)))
    a("s_lshl_b32 s11, %s, 10" % s(sKs))
    a("s_add_u32 %s, %s, s11" % (s(sd), s(sd)))
    a("s_add_u32 %s, %s, 0x%x" % (s(sd), s(sd), H_OFF))
    a("s_add_u32 %s, %s, 114688" % (s(sd2), s(sd)))


def hstore(d, so, off=0):
    a("buffer_store_dwordx4 %s, %s, %s, %s offen offset:%d sc1" % (v(d, 4), v(vL16), s(rWS, 4), s(so), off))


def read_exchange(with_c):
    if with_c:
        a("ds_read_b32 v20, v27")
        a("ds_read_b32 v22, v27 offset:128")


def c_addr():
    a("s_lshl_b32 s11, %s, 8" % s(sHalf))
    a("s_add_u32 s11, s11, %d" % EX)
    a("v_and_b32 v27, 31, %s" % v(vLane))
    a("v_lshl_add_u32 v27, v27, 2, s11")


sH0, sH1 = sSA, sSC
Q, O, S_, KV, vIdx = 0, 32, 96, 160, 224
sKV, sQb = sOA, sOB


vKV = 231


def kvload(b, part, va=vKV):
    for i in range(2):
        a("buffer_load_dwordx4 %s, %s, %s, %s offen offset:%d sc1" % (
            v(KV + 16 * b + 8 * part + 4 * i, 4), v(va), s(rWS, 4), s(sKV), 2048 * part + 1024 * i))


def qk(n, half):
    kt, u = n >> 2, n & 3
    K = KV + 16 * (kt & 3) + 4 * half
    d = S_ + 16 * u
    return "v_mfma_f32_32x32x16_bf16 %s, %s, %s, %s" % (v(d, 16), v(K, 4), v(Q + 8 * u + 4 * half, 4), v(d, 16) if half else "0")


def pv(n, half):
    kt, u = n >> 2, n & 3
    V = KV + 16 * (kt & 3) + 8 + 4 * half
    return "v_smfmac_f32_32x32x32_bf16 %s, %s, %s, %s" % (v(O + 16 * u, 16), v(V, 4), v(S_ + 16 * u + 8 * half, 8), v(vIdx))


def slot(n, last=False, extra=None):
    u = n & 3
    extra = extra or {}
    e = ["v_exp_f32 %s, %s" % (v(S_ + 16 * u + i), v(S_ + 16 * u + i)) for i in range(16)]
    if not last:
        seq = [qk(n + 1, 0)] + e[0:3] + [qk(n + 1, 1)] + e[3:6]
    else:
        seq = e[0:6]
    seq += [pv(n - 1, 0)] + e[6:9] + [pv(n - 1, 1)] + e[9:16]
    for i, x in enumerate(seq):
        for y in extra.get(i, []):
            a(y)
        a(x)


a.label("Lepi_lo")
stamp(3)
chain = [
    "v_mov_b32 v16, %s" % v(ACC_LO + 12),
    "v_mov_b32 v17, %s" % v(ACC_LO + 16 + 12),
    None,
    "v_permlane32_swap_b32 v16, v17",
    None,
    "v_cvt_pk_bf16_f32 v17, v17, v17",
    "v_and_b32 v17, 0xffff0000, v17",
    "v_mul_f32 v17, 0x%x, v17" % f2u(-math.log2(math.e)),
    "v_exp_f32 v17, v17",
    "v_add_f32 v17, 1.0, v17",
    "v_rcp_f32 v17, v17",
    "v_cvt_pk_bf16_f32 v18, v17, v17",
    "v_and_b32 v17, 0xffff0000, v18",
    "v_and_b32 v18, %s, v18" % s(sPad),
    "v_sub_f32 v17, 1.0, v17",
    "v_mov_b32 v19, v18",
    "v_cvt_pk_bf16_f32 v17, v17, v17",
    "v_and_b32 v17, 0xffff0000, v17",
    "v_permlane32_swap_b32 v18, v19",
    "v_rcp_f32 v20, v17",
    "v_min_f32 v20, 0x7f000000, v20",
    "ds_write_b32 v25, v20",
    "v_mov_b32 v22, v20",
]
body = []
for rt in range(2):
    acc, dst, so = ACC_LO + 16 * rt, 32 + 8 * rt, (sHa, sHb)[rt]
    body += ["v_pk_mul_f32 %s, %s, %s op_sel_hi:[1,0]" % (v(acc + 2 * p, 2), v(acc + 2 * p, 2), s(kS, 2)) for p in range(4)]
    body += ["v_cvt_pk_bf16_f32 %s, %s, %s" % (v(dst + p), v(acc + 2 * p), v(acc + 2 * p + 1)) for p in range(4)]
    body += ["buffer_store_dwordx4 %s, v26, %s, %s offen sc1" % (v(dst, 4), s(rWS, 4), s(so))]
for rt in range(2):
    acc, dst = ACC_LO + 16 * rt, 32 + 8 * rt
    body += ["v_pk_mul_f32 %s, %s, %s op_sel_hi:[1,0]" % (v(acc + 2 * p, 2), v(acc + 2 * p, 2), s(kS, 2)) for p in range(4, 8)]
    body += ["v_cvt_pk_bf16_f32 %s, %s, %s" % (v(dst + p), v(acc + 2 * p), v(acc + 2 * p + 1)) for p in range(4, 8)]
    body += ["v_cndmask_b32 %s, %s, %s, %s" % (v(dst + 7), v(dst + 7), v(vZero), s(mHI, 2))]
a("s_nop 6")
a(chain.pop(0))
a(chain.pop(0))
while chain or body:
    if body:
        a(body.pop(0))
    if chain:
        x = chain.pop(0)
        if x:
            a(x)
        elif body:
            a(body.pop(0))
for rt in range(2):
    dst, so = 32 + 8 * rt, (sHa, sHb)[rt]
    a("v_cndmask_b32 %s, %s, %s, %s" % (v(dst + 6), v(dst + 6), v(18 + rt), s(mHI, 2)))
    a("buffer_store_dwordx4 %s, v26, %s, %s offen offset:1024 sc1" % (v(dst + 4, 4), s(rWS, 4), s(so)))
a("v_permlane32_swap_b32 v20, v22")
sMp, sMo, sSec, sRe, sRdy = sXs, sXo, sTr, sTj, sWr
vPA = 243
fq_addr(sHp)
a("v_and_b32 v16, 3, %s" % v(vLane))
a("s_lshl_b32 s11, %s, 2" % s(sW))
a("v_add_u32 v16, s11, v16")
a("v_bfe_u32 v17, %s, 3, 1" % v(vLane))
a("v_lshl_add_u32 v16, v17, 4, v16")
a("v_bfe_u32 v17, %s, 2, 1" % v(vLane))
a("v_lshlrev_b32 v17, 4, v17")
a("s_add_u32 s12, %s, 16" % s(sH))
a("v_add_u32 v17, s12, v17")
a("v_lshl_add_u32 v16, v17, 5, v16")
a("s_lshl_b32 s11, %s, 5" % s(sH))
a("s_lshl_b32 s12, %s, 1" % s(sMA))
a("s_add_u32 s11, s11, s12")
a("v_and_b32 v17, 1, %s" % v(vLane))
a("v_add_u32 v17, s11, v17")
a("v_cmp_gt_u32 vcc, 16, %s" % v(vLane))
a("s_mov_b32 s11, 0x%x" % FQ_OFF)
a("v_mov_b32 v232, v20")
a("v_cndmask_b32 v16, v17, v16, vcc")
a("v_mov_b32 v234, v22")
a("v_lshl_add_u32 %s, v16, 7, s11" % v(vPA))
a("s_waitcnt vmcnt(4) lgkmcnt(0)")
stamp(24)
a("s_barrier")
stamp(25)
a("buffer_load_dword %s, %s, %s, 0 offen sc1" % (v(244), v(vPA), s(rWS, 4)))
for i in range(64):
    a("v_mov_b32 %s, 0" % v(O + i))
for i in range(8):
    a("v_mov_b32 %s, 0" % v(KV + 48 + 8 + i))
a("v_mov_b32 %s, 0xdddd" % v(vIdx))
a("s_lshr_b32 s13, %s, 3" % s(sMA))
a("s_lshl_b32 s14, s13, 3")
a("s_lshl_b32 %s, 0xff, s14" % s(sMp))
a("s_xor_b32 %s, %s, 0xffff" % (s(sMo), s(sMp)))
a("s_lshl_b32 s11, %s, 6" % s(sH))
a("s_lshl_b32 s12, %s, 3" % s(sW))
a("s_add_u32 s12, s12, s11")
a("s_lshl_b32 s13, s13, 5")
a("s_add_u32 s12, s12, s13")
a("s_lshl_b32 s12, s12, 12")
a("v_add_u32 %s, s12, %s" % (v(vKV), v(vL16)))
a("s_and_b32 s12, %s, 7" % s(sMA))
a("s_lshl_b32 %s, s12, 12" % s(sKV))
if not ROT & 2:
    a("s_mov_b32 %s, 0" % s(sKV))
a("s_lshl_b32 s12, %s, 2" % s(sMA))
a("s_add_u32 s11, s11, s12")
a("s_lshl_b32 s11, s11, 11")
a("s_add_u32 %s, s11, 0x%x" % (s(sQb), Q_OFF))
a("s_lshl_b32 s11, %s, 2" % s(sW))
a("s_add_u32 s11, s11, %d" % GO)
a("v_mov_b32 v228, s11")
for u in range(3):
    a("s_add_u32 s11, %s, %d" % (s(sW), u + 1))
    a("s_and_b32 s11, s11, 3")
    a("s_mul_i32 s11, s11, 12288")
    a("s_add_u32 s11, s11, %d" % (PB + 4096 * u))
    a("v_add_u32 %s, s11, %s" % (v(225 + u), v(vL16)))
a("s_mov_b32 %s, 0" % s(sIt))
a("s_mov_b32 %s, 0" % s(sRdy))
a("s_waitcnt vmcnt(0)")
flag_store(vFA, vFT)
stamp(4)


def try_start(fail):
    other, go = L("other"), L("first")
    a("v_cmp_ne_u32 vcc, %s, v244" % s(sNON))
    a("s_mov_b32 %s, %s" % (s(sSec), s(sMo)))
    a("s_lshr_b64 s[12:13], vcc, 16")
    a("s_cbranch_scc1 %s" % fail)
    a("s_and_b32 s12, vcc_lo, %s" % s(sMp))
    if DYN:
        a("s_cbranch_scc0 %s" % go)
        a("s_and_b32 s12, vcc_lo, %s" % s(sMo))
        a("s_cbranch_scc1 %s" % fail)
        a("s_mov_b32 %s, %s" % (s(sSec), s(sMp)))
        a("v_xor_b32 %s, 0x20000, %s" % (v(vKV), v(vKV)))
        a.label(go)
    else:
        a("s_cbranch_scc1 %s" % fail)
    a("s_and_b32 s12, vcc_lo, %s" % s(sSec))
    a("s_cselect_b32 %s, 0, 99" % s(sRe))
    first_loads()


def first_loads():
    kvload(0, 0)
    for u in range(4):
        a("s_add_u32 s11, %s, %d" % (s(sW), u + 1))
        a("s_and_b32 s11, s11, 3")
        a("s_lshl_b32 s11, s11, 11")
        a("s_add_u32 s11, s11, %s" % s(sQb))
        for i in range(2):
            a("buffer_load_dwordx4 %s, %s, %s, s11 offen offset:%d sc1" % (v(Q + 8 * u + 4 * i, 4), v(vL16), s(rWS, 4), 1024 * i))
    kvload(0, 1)
    for b in (1, 2):
        a("s_add_u32 %s, %s, 4096" % (s(sKV), s(sKV)))
        a("s_and_b32 %s, %s, 0x7fff" % (s(sKV), s(sKV)))
        kvload(b, 0)
        kvload(b, 1)


if EARLY:
    try_start("Lgelu_lo")
    a("s_mov_b32 %s, 1" % s(sRdy))
    stamp(5)
a.label("Lgelu_lo")
gelu_tile(ACC_LO + 32, 232, 104, T=96)
gelu_tile(ACC_LO + 48, 234, 108, T=96)
a("s_mul_i32 s11, %s, %d" % (s(sW), DREG))
a("s_add_u32 s11, s11, %d" % (DB + 12 * 2048))
a("v_add_u32 v245, s11, %s" % v(vL16))
a("ds_write_b128 v245, v[104:107]")
a("ds_write_b128 v245, v[108:111] offset:1024")
for i in range(16):
    a("v_mov_b32 %s, 0" % v(S_ + 48 + i))
a("s_setprio %d" % opt("aprio", 2))
stamp(12)
if GOPOS == 2:
    a("s_waitcnt lgkmcnt(0)")
    a("ds_write_b32 v228, %s" % v(vIdx))
a("s_cmp_eq_u32 %s, 1" % s(sRdy))
a("s_cbranch_scc1 Lstart")
a("s_mov_b32 %s, %d" % (s(sSpin), SPIN_MAX))
a("s_branch Lpoll_kv")
a.label("Lpoll_kv_again")
a("s_sub_u32 %s, %s, 1" % (s(sSpin), s(sSpin)))
a("s_cbranch_scc1 Lstart")
a("s_sleep %d" % SLEEP)
a.label("Lpoll_kv")
a("buffer_load_dword %s, %s, %s, 0 offen sc1" % (v(244), v(vPA), s(rWS, 4)))
a("s_waitcnt vmcnt(0)")
try_start("Lpoll_kv_again")
stamp(5)
a.label("Lstart")
if GOPOS == 0:
    a("s_waitcnt lgkmcnt(0)")
    a("ds_write_b32 v228, %s" % v(vIdx))
a("s_waitcnt vmcnt(8) lgkmcnt(0)")
if GOPOS == 1:
    a("ds_write_b32 v228, %s" % v(vIdx))
stamp(6)
a("s_branch Lattn")

vH0, vDd, vDr, vH1 = 225, 226, 227, 229


def d_prefetch_setup():
    srd(rWD, pWD, 1792 * 896)
    srd(rWO, pWO, 448 * 896)
    a("v_lshrrev_b32 v16, 3, %s" % v(vLane))
    a("v_and_b32 v17, 7, %s" % v(vLane))
    a("v_bfe_u32 v18, v16, 1, 1")
    a("v_lshlrev_b32 v18, 2, v18")
    a("v_xor_b32 v18, v18, v17")
    a("v_lshlrev_b32 v18, 4, v18")
    a("v_mul_u32_u24 v16, 896, v16")
    a("s_lshl_b32 s11, %s, 7" % s(sT))
    a("v_add3_u32 %s, v16, v18, s11" % v(vDd))
    a("s_and_b32 s12, %s, 3" % s(sW))
    a("s_mul_i32 %s, s12, %d" % (s(sXs), 448 * 896))
    a("s_add_u32 %s, %s, %d" % (s(sXo), s(sXs), 448 * 896))
    a("s_lshl_b32 %s, %s, 2" % (s(sTr), s(sT)))
    a("s_and_b32 s11, %s, 3" % s(sR))
    a("s_add_u32 %s, %s, s11" % (s(sTr), s(sTr)))
    if not ROT & 4:
        a("s_mov_b32 %s, 0" % s(sTr))
    a("s_mul_i32 s11, %s, %d" % (s(sTr), 16 * 896))
    a("s_add_u32 %s, %s, s11" % (s(sOC), s(sXs)))
    a("s_cmp_eq_u32 %s, 0" % s(sFin))
    a("s_cselect_b32 %s, 0x40000000, %s" % (s(sOC), s(sOC)))
    a("s_mul_i32 %s, s12, %d" % (s(sWd), DREG))
    a("s_add_u32 %s, %s, %d" % (s(sWd), s(sWd), DB))


def wd_adv(e):
    r = ["s_add_u32 %s, %s, 7168" % (s(sOC), s(sOC))]
    if e:
        r += ["s_cmp_eq_u32 %s, %s" % (s(sOC), s(sXo)), "s_cselect_b32 %s, %s, %s" % (s(sOC), s(sXs), s(sOC))]
    return r


def d_prefetch_groups():
    return [dma_lines(vDd, rWD, sOC, sWd, 1024 * n) + wd_adv(n & 1) for n in range(26)]


def h_publish(own, dks):
    lp, done, skip = L("go"), L("godone"), L("nopf")
    a("s_and_b32 s11, %s, 3" % s(sW))
    a("s_lshl_b32 s11, s11, 2")
    a("s_add_u32 s11, s11, %d" % GO)
    a("v_mov_b32 v24, s11")
    a("v_add_u32 v25, %s, %s" % (s(sWd), v(vL16)))
    a("s_mov_b32 %s, %d" % (s(sSpin), SPIN_MAX * 8))
    a.label(lp)
    a("ds_read_b32 v16, v24")
    a("s_waitcnt lgkmcnt(0)")
    a("v_readfirstlane_b32 s11, v16")
    a("s_sub_u32 %s, %s, 1" % (s(sSpin), s(sSpin)))
    a("s_cbranch_scc1 %s" % done)
    a("s_cmp_lg_u32 s11, 0")
    a("s_cbranch_scc1 %s" % done)
    a("s_sleep 1")
    a("s_branch %s" % lp)
    a.label(done)
    stamp(13)
    a("ds_read_b128 v[64:67], v25 offset:%d" % (12 * 2048))
    a("ds_read_b128 v[68:71], v25 offset:%d" % (12 * 2048 + 1024))
    a("s_sub_u32 s12, %s, %d" % (s(sH0), 1024 * dks))
    a("s_sub_u32 s13, %s, %d" % (s(sH1), 1024 * dks))
    a("s_waitcnt lgkmcnt(0)")
    pf = d_prefetch_groups()
    if PFMODE == 0:
        for g in pf[24:]:
            for x in g:
                a(x)
    for n, (d, so, off) in enumerate(own + [(64, 12, 0), (68, 13, 0)]):
        if n >= SWIN:
            a("s_waitcnt vmcnt(%d)" % (SWIN - 1))
        hstore(d, so, off)
    a("s_waitcnt vmcnt(0)")
    flag_store(243, vFT)
    stamp(4)
    a("s_cmp_eq_u32 %s, 0" % s(sFin))
    a("s_cbranch_scc1 Lexit")
    if PFMODE == 1:
        for g in pf:
            for x in g:
                a(x)
    a("s_branch Ldown")


a.label("Lepi_hi_s")
stamp(3)
a("s_nop 4")
for c in range(2):
    v_tile(ACC + 32 * c, sHa, 32 + 16 * c)
    v_tile(ACC + 32 * c + 16, sHb, 40 + 16 * c)
    if c == 0:
        a("s_add_u32 %s, %s, 0x40000" % (s(sHa), s(sHa)))
        a("s_add_u32 %s, %s, 0x40000" % (s(sHb), s(sHb)))
c_addr()
fq_addr(sHp)
a("s_waitcnt vmcnt(8)")
stamp(24)
a("s_barrier")
stamp(25)
read_exchange(True)
a("s_waitcnt vmcnt(0)")
flag_store(vFA, vFT, 2)
stamp(26)
fh_addr(243)
a("s_lshl_b32 s13, %s, 2" % s(sCol))
a("s_add_u32 s13, s13, %s" % s(sCg))
a("s_add_u32 s13, s13, 48")
h_base(sH0, sH1, 13)
d_prefetch_setup()
a("s_waitcnt lgkmcnt(0)")
gelu_tile(ACC + 64, 20, 48)
gelu_tile(ACC + 80, 22, 52)
stamp(12)
if PFMODE == 0:
    for g in d_prefetch_groups()[:24]:
        for x in g:
            a(x)
h_publish([(48, sH0, 0), (52, sH1, 0)], 2)

a.label("Lepi_hi_t")
stamp(3)
c_addr()
a("s_lshl_b32 s13, %s, 1" % s(sCol))
a("s_add_u32 s13, s13, %s" % s(sCg))
a("s_lshl_b32 s13, s13, 2")
a("s_sub_u32 s13, s13, 7")
h_base(sH0, sH1, 13)
fh_addr(243)
d_prefetch_setup()
a("s_waitcnt vmcnt(0)")
stamp(24)
a("s_barrier")
stamp(25)
read_exchange(True)
a("s_waitcnt lgkmcnt(0)")
for c in range(3):
    for rt in range(2):
        n = 2 * c + rt
        gelu_tile(ACC + 32 * c + 16 * rt, 20 + 2 * rt, 32 + 4 * n, d_prefetch_groups()[4 * n:4 * n + 4] if PFMODE == 0 else ())
stamp(12)
h_publish([(32 + 4 * (2 * c + rt), (sH0, sH1)[rt], 1024 * c) for c in range(3) for rt in range(2)], 1)

a.label("Lattn")
a(qk(0, 0))
a(qk(0, 1))
a("s_nop 10")
a(".p2align 5")
a.label("Lattn_loop")


def kv_extra(kt, loads=True, wait=8):
    b = (kt + 3) & 3
    ex = [{}, {}, {}, {}]
    if loads and "--x-anold" not in sys.argv:
        ld = lambda part, i: "buffer_load_dwordx4 %s, %s, %s, %s offen offset:%d sc1" % (
            v(KV + 16 * b + 8 * part + 4 * i, 4), v(vKV), s(rWS, 4), s(sKV), 2048 * part + 1024 * i)
        ex[0] = {15: ["s_add_u32 %s, %s, 4096" % (s(sKV), s(sKV))], 17: ["s_and_b32 %s, %s, 0x7fff" % (s(sKV), s(sKV))]}
        if opt("ldpos", 0) == 0:
            ex[1] = {15: [ld(0, 0)], 17: [ld(0, 1)]}
            ex[2] = {15: [ld(1, 0)], 17: [ld(1, 1)]}
        else:
            ex[0][19] = [ld(0, 0)]
            ex[1] = {15: [ld(0, 1)]}
            ex[2] = {1: [ld(1, 0)], 19: [ld(1, 1)]}
    if wait is not None:
        ex[3] = {0: ["s_waitcnt vmcnt(%d)" % wait]}
    return ex


for kt in range(4):
    ex = kv_extra(kt)
    if kt == 3:
        ex[0][13] = ["s_cmp_lg_u32 %s, %s" % (s(sIt), s(sRe)), "s_cbranch_scc1 Lno_repoll",
                     "buffer_load_dword %s, %s, %s, 0 offen sc1" % (v(244), v(vPA), s(rWS, 4)), "Lno_repoll:"]
    if kt == 1:
        ex[0][13] = ["s_cmp_lg_u32 %s, 1" % s(sIt), "s_cbranch_scc0 Lswitch", "Lswitched:"]
    for u in range(4):
        slot(4 * kt + u, extra=ex[u])
a("s_add_u32 %s, %s, 1" % (s(sIt), s(sIt)))
if PROF:
    a("s_memtime %s" % s(sStamp, 2))
    a("s_add_u32 s12, %s, 26" % s(sIt))
    a("s_waitcnt lgkmcnt(0)")
    a("s_mov_b32 m0, s12")
    a("v_writelane_b32 %s, %s, m0" % (v(vProf), s(sStamp)))
a("s_cmp_lt_u32 %s, 3" % s(sIt))
a("s_cbranch_scc1 Lattn_loop")
for kt in range(4):
    ex = kv_extra(kt, loads=(kt == 0), wait=(8, 4, 0, None)[kt])
    for u in range(4):
        n = 4 * kt + u
        e = dict(ex[u])
        if kt == 3 and u >= 2:
            for qd in range(4):
                e.setdefault(5 + 2 * qd, []).append(
                    "ds_write_b128 %s, %s offset:%d" % (v(225 + u - 2), v(O + 16 * (u - 2) + 4 * qd, 4), 1024 * qd))
        slot(n, last=(n == 15), extra=e)
a(pv(15, 0))
a("v_mov_b32 v225, %d" % CNT)
a("v_mov_b32 v226, 1")
a("s_mul_i32 s11, %s, 12288" % s(sW))
a(pv(15, 1))
for qd in range(4):
    a("ds_write_b128 %s, %s offset:%d" % (v(227), v(O + 32 + 4 * qd, 4), 1024 * qd))
stamp(7)
a("v_add_u32 v227, s11, %s" % v(vL16))
a("s_waitcnt lgkmcnt(0)")
a("ds_add_u32 v225, v226")
a("s_mov_b32 %s, %d" % (s(sSpin), SPIN_MAX))
a.label("Lasync")
a("ds_read_b32 v226, v225")
a("s_waitcnt lgkmcnt(0)")
a("v_readfirstlane_b32 s11, v226")
a("s_sub_u32 %s, %s, 1" % (s(sSpin), s(sSpin)))
a("s_cbranch_scc1 Lasync_done")
a("s_cmp_lt_u32 s11, 256")
a("s_cbranch_scc1 Lasync")
a.label("Lasync_done")
OW = O + 48
for u in range(3):
    for qd in range(4):
        a("ds_read_b128 %s, v227 offset:%d" % (v(S_ + 16 * u + 4 * qd, 4), PB + 4096 * u + 1024 * qd))
a("s_lshl_b32 s11, %s, 2" % s(sMA))
a("s_add_u32 s11, s11, %s" % s(sW))
a("s_lshl_b32 s12, s11, 4")
a("s_add_u32 s12, s12, %s" % s(sH))
a("s_lshl_b32 s13, s12, 11")
a("s_add_u32 %s, s13, 0x%x" % (s(sOC), O_OFF))
for u in range(3):
    a("s_waitcnt lgkmcnt(%d)" % (8 - 4 * u))
    for p in range(8):
        a("v_pk_add_f32 %s, %s, %s" % (v(OW + 2 * p, 2), v(OW + 2 * p, 2), v(S_ + 16 * u + 2 * p, 2)))
a("v_pk_mul_f32 v[228:229], %s, 0 op_sel_hi:[1,0]" % v(OW, 2))
a("v_pk_mul_f32 v[232:233], %s, 0 op_sel_hi:[1,0]" % v(OW + 2, 2))
for p in range(2, 8):
    t = 228 if p % 2 == 0 else 232
    a("v_pk_fma_f32 %s, %s, 0, %s op_sel_hi:[1,0,1]" % (v(t, 2), v(OW + 2 * p, 2), v(t, 2)))
a("v_subrev_u32 v226, 0x%x, %s" % (f2u(2.0 ** -40), v(OW + 15)))
a("v_pk_add_f32 v[228:229], v[228:229], v[232:233]")
a("v_cmp_lt_u32 vcc, 0x%x, v226" % (f2u(2.0 ** 40) - f2u(2.0 ** -40)))
a("v_cmp_u_f32 %s, v228, v229" % s(sP, 2))
a("s_and_b64 vcc, vcc, %s" % s(mHI, 2))
a("s_or_b64 vcc, vcc, %s" % s(sP, 2))
if FORCE_FB:
    a("s_mov_b64 vcc, -1")
a("s_cbranch_vccnz Lfallback")
a.label("Lnormalize")
a("v_rcp_f32 v225, %s" % v(OW + 15))
a("v_lshlrev_b32 v226, 16, %s" % v(Q + 24 + 6))
a("v_mul_f32 v226, v225, v226")
a("v_mov_b32 v228, v226")
a("s_nop 1")
a("v_permlane32_swap_b32 v226, v228")
a("v_mov_b32 v232, %s" % s(sNON))
a("v_mov_b32 v233, 0xffff")
for p in range(8):
    a("v_pk_mul_f32 %s, %s, v[228:229] op_sel_hi:[1,0]" % (v(OW + 2 * p, 2), v(OW + 2 * p, 2)))
for p in range(8):
    a("v_cvt_pk_bf16_f32 %s, %s, %s" % (v(S_ + p), v(OW + 2 * p), v(OW + 2 * p + 1)))
a("v_bfi_b32 %s, v233, %s, v232" % (v(S_ + 3), v(S_ + 3)))
a("v_bfi_b32 %s, v233, %s, v232" % (v(S_ + 7), v(S_ + 7)))
a("buffer_store_dwordx4 %s, %s, %s, %s offen sc1" % (v(S_, 4), v(vL16), s(rWS, 4), s(sOC)))
a("buffer_store_dwordx4 %s, %s, %s, %s offen offset:1024 sc1" % (v(S_ + 4, 4), v(vL16), s(rWS, 4), s(sOC)))
stamp(8)
a("s_cmp_eq_u32 %s, 0" % s(sFin))
a("s_cbranch_scc1 Lexit")
a("s_mov_b32 %s, 1" % s(sHalf))
a("s_branch Ltail")

a.label("Lswitch")
a("v_xor_b32 %s, 0x20000, %s" % (v(vKV), v(vKV)))
a("s_mov_b32 %s, %d" % (s(sSpin), SPIN_MAX))
a.label("Lswitch_chk")
a("v_cmp_ne_u32 vcc, %s, v244" % s(sNON))
a("s_nop 0")
a("s_and_b32 s12, vcc_lo, %s" % s(sSec))
a("s_cbranch_scc0 Lswitched")
a("s_sub_u32 %s, %s, 1" % (s(sSpin), s(sSpin)))
a("s_cbranch_scc1 Lswitched")
a("buffer_load_dword %s, %s, %s, 0 offen sc1" % (v(244), v(vPA), s(rWS, 4)))
a("s_waitcnt vmcnt(0)")
a("s_branch Lswitch_chk")

a.label("Lfallback")
a("s_lshl_b32 %s, %s, 18" % (s(sKV), s(sH)))
a("v_mov_b32 v225, 0xff800000")
a("s_mov_b32 %s, 0" % s(sIt))
a.label("Lfb1")
kvload(0, 0, vL16)
a("s_waitcnt vmcnt(0)")
a(qk(3, 0))
a(qk(3, 1))
a("s_nop 11")
for i in range(0, 16, 2):
    a("v_max3_f32 v225, %s, %s, v225" % (v(S_ + 48 + i), v(S_ + 49 + i)))
a("s_add_u32 %s, %s, 4096" % (s(sKV), s(sKV)))
a("s_add_u32 %s, %s, 1" % (s(sIt), s(sIt)))
a("s_cmp_lt_u32 %s, 64" % s(sIt))
a("s_cbranch_scc1 Lfb1")
a("v_mov_b32 v226, v225")
a("s_nop 1")
a("v_permlane32_swap_b32 v225, v226")
a("s_nop 1")
a("v_max_f32 v225, v225, v226")
for i in range(16):
    a("v_mov_b32 %s, 0" % v(OW + i))
a("s_lshl_b32 %s, %s, 18" % (s(sKV), s(sH)))
a("s_mov_b32 %s, 0" % s(sIt))
a.label("Lfb2")
kvload(0, 0, vL16)
kvload(0, 1, vL16)
a("s_waitcnt vmcnt(0)")
a(qk(3, 0))
a(qk(3, 1))
a("s_nop 11")
for i in range(16):
    a("v_sub_f32 %s, %s, v225" % (v(S_ + 48 + i), v(S_ + 48 + i)))
for i in range(16):
    a("v_exp_f32 %s, %s" % (v(S_ + 48 + i), v(S_ + 48 + i)))
a("s_nop 1")
a(pv(3, 0))
a(pv(3, 1))
a("s_add_u32 %s, %s, 4096" % (s(sKV), s(sKV)))
a("s_add_u32 %s, %s, 1" % (s(sIt), s(sIt)))
a("s_cmp_lt_u32 %s, 64" % s(sIt))
a("s_cbranch_scc1 Lfb2")
a("s_nop 11")
a("s_branch Lnormalize")

DA, HB, WF = 0, 64, 128


def dr_setup():
    a("s_and_b32 s12, %s, 3" % s(sW))
    a("s_mul_i32 s13, s12, %d" % DREG)
    a("s_add_u32 s13, s13, %d" % DB)
    a("v_bfe_u32 v240, %s, 2, 2" % v(vLane))
    a("v_lshrrev_b32 v243, 5, %s" % v(vLane))
    a("v_lshl_add_u32 v243, v243, 2, v240")
    a("v_lshl_add_u32 v243, v243, 7, s13")
    a("v_lshrrev_b32 v240, 1, v240")
    a("v_lshlrev_b32 v240, 6, v240")
    a("v_bfe_u32 v244, %s, 4, 1" % v(vLane))
    a("v_add_u32 v244, s12, v244")
    a("v_and_b32 v245, 3, %s" % v(vLane))
    a("v_lshlrev_b32 v245, 3, v245")
    for ct in range(2):
        a("v_add_u32 v246, %d, v244" % (2 * ct))
        a("v_and_b32 v246, 3, v246")
        a("v_lshl_add_u32 v246, v246, 5, v245")
        a("v_xor_b32 v246, v246, v240")
        a("v_add_u32 %s, v246, v243" % v(vDr + ct))


a.label("Ldown")
a("s_cmp_eq_u32 %s, 0" % s(sFin))
a("s_cbranch_scc1 Lexit")
dr_setup()
a("s_mul_i32 s11, s12, 7")
a("s_lshr_b32 s11, s11, 1")
a("s_lshl_b32 s13, %s, 4" % s(sR))
a("s_add_u32 s11, s11, s13")
a("s_lshl_b32 s11, s11, 8")
a("s_add_u32 s11, s11, 0x%x" % FH_OFF)
a("s_cmp_eq_u32 s12, 3")
a("s_cselect_b32 s13, 11, 7")
a("v_min_u32 v240, s13, %s" % v(vLane))
a("v_lshl_add_u32 %s, v240, 7, s11" % v(vFA))
a("s_mul_i32 s11, %s, 229376" % s(sR))
a("s_mul_i32 s13, s12, 28672")
a("s_add_u32 s11, s11, s13")
a("s_add_u32 s11, s11, 0x%x" % H_OFF)
a("v_add_u32 %s, s11, %s" % (v(vH0), v(vL16)))
a("s_lshl_b32 %s, %s, 10" % (s(sOA), s(sTr)))
a("s_mul_i32 %s, s12, %d" % (s(sOB), 112 * 896))
a("v_add_u32 %s, 114688, %s" % (v(vH1), v(vH0)))
for i in range(64):
    a("v_mov_b32 %s, 0" % v(DA + i))
poll(vFA, vFT)
stamp(5)
if "--x-dskip" in sys.argv:
    a("s_branch Ldskip")
vmq = []


def hload(i):
    for rt in range(2):
        a("buffer_load_dwordx4 %s, %s, %s, %s offen sc1" % (
            v(HB + 8 * (i & 7) + 4 * rt, 4), v((vH0, vH1)[rt]), s(rWS, 4), s(sOA)))
        vmq.append(("h", i))
    a("s_add_u32 %s, %s, 1024" % (s(sOA), s(sOA)))
    a("s_cmp_eq_u32 %s, 28672" % s(sOA))
    a("s_cselect_b32 %s, 0, %s" % (s(sOA), s(sOA)))


def vm_wait(tags):
    idx = [k for k, t in enumerate(vmq) if t in tags]
    return None if not idx else len(vmq) - 1 - max(idx)


def wreads(dst, off):
    for ct in range(2):
        for jj in range(2):
            a("ds_read_b64_tr_b16 %s, %s offset:%d" % (v(dst + 4 * ct + 2 * jj, 2), v(vDr + ct), off + 1024 * jj))


for i in range(HD):
    hload(i)
wreads(WF, 0)
for i in range(28):
    n = vm_wait({("h", i), ("w", i + 1)})
    a("s_waitcnt vmcnt(%d) lgkmcnt(0)" % n)
    if i + 1 < 28:
        wreads(WF + 8 * ((i + 1) & 1), ((i + 1) % 13) * 2048)
    if i + HD < 28 and HD < 8:
        hload(i + HD)
    for rt in range(2):
        for ct in range(2):
            if "--x-dnomf" not in sys.argv:
                mfma(DA + 32 * rt + 16 * ct, WF + 8 * (i & 1) + 4 * ct, HB + 8 * (i & 7) + 4 * rt)
    k = i + WD
    if 13 <= k < 28:
        for e in range(2):
            for x in dma_lines(vDd, rWD, sOC, sWd, (k % 13) * 2048 + 1024 * e):
                a(x)
            for x in wd_adv(e):
                a(x)
            vmq.append(("w", k))
    wo = [n for n in range(8) if max(15 + n, 28 - WD + n // 2 if WD < 13 else 0) == i or (i == 27 and max(15 + n, 28 - WD + n // 2) > 27)]
    for n in wo:
        for e in range(2):
            for x in dma_lines(vDd, rWO, sOB, sWd, (2 + n) * 2048 + 1024 * e):
                a(x)
            a("s_add_u32 %s, %s, 7168" % (s(sOB), s(sOB)))
            vmq.append(("o", n))
    if i + HD < 28 and HD >= 8:
        hload(i + HD)
if "--x-dskip" in sys.argv:
    a.label("Ldskip")
stamp(7)
a("v_add_u32 v240, %s, %s" % (s(sWd), v(vL16)))
a("s_nop 10")
for o in range(4):
    for q in range(2):
        a("ds_write_b128 v240, %s offset:%d" % (v(DA + 32 + 8 * o + 4 * q, 4), (o >> 1) * 20480 + (o & 1) * 2048 + 1024 * q))
a("s_mov_b32 %s, 0" % s(sHalf))
a("s_waitcnt vmcnt(0)")
stamp(8)
a("s_branch Ltail2")

OF, WOF, RR = 64, 128, 96
vWo = 244
a.label("Ltail")
a.label("Ltail2")
a("s_and_b32 s12, %s, 3" % s(sW))
a("s_lshl_b32 s11, %s, 1" % s(sR))
a("s_add_u32 s14, s11, %s" % s(sHalf))
a("s_lshl_b32 s11, s14, 2")
a("s_add_u32 s11, s11, s12")
a("s_lshl_b32 s13, s11, 13")
a("s_add_u32 %s, s13, 0x%x" % (s(sOA), O_OFF))
a("s_add_u32 %s, %s, 4096" % (s(sOB), s(sOA)))
a("s_mul_i32 s13, s12, %d" % DREG)
a("s_add_u32 s13, s13, %d" % (DB + 4096))
a("v_bfe_u32 v240, %s, 2, 2" % v(vLane))
a("v_lshrrev_b32 v241, 5, %s" % v(vLane))
a("v_mad_u32_u24 v240, v241, 7, v240")
a("v_lshl_add_u32 v241, v240, 7, s13")
a("v_bfe_u32 v240, v240, 1, 1")
a("v_lshlrev_b32 v240, 6, v240")
a("v_bfe_u32 v242, %s, 4, 1" % v(vLane))
a("v_add_u32 v242, s12, v242")
a("v_and_b32 v243, 3, %s" % v(vLane))
a("v_lshlrev_b32 v243, 3, v243")
for ct in range(2):
    a("v_add_u32 v248, %d, v242" % (2 * ct))
    a("v_and_b32 v248, 3, v248")
    a("v_lshl_add_u32 v248, v248, 5, v243")
    a("v_xor_b32 v248, v248, v240")
    a("v_add_u32 %s, v248, v241" % v(vWo + ct))
    a("v_xor_b32 v248, 64, v248")
    a("v_add_u32 %s, v248, v241" % v(vWo + 2 + ct))
for k in range(4):
    a("s_sub_u32 s11, s12, %d" % k)
    a("s_and_b32 s11, s11, 3")
    a("s_lshr_b32 s13, s11, 1")
    a("s_mul_i32 s13, s13, 20480")
    a("s_and_b32 s11, s11, 1")
    a("s_lshl_b32 s11, s11, 11")
    a("s_add_u32 s11, s11, s13")
    a("s_add_u32 s11, s11, %d" % (DB + k * DREG))
    a("v_add_u32 %s, s11, %s" % (v(236 + k), v(vL16)))
a("s_waitcnt lgkmcnt(0)")
a("s_barrier")
stamp(30)
for k in range(8):
    for ct in range(2):
        for jj in range(2):
            a("ds_read_b64_tr_b16 %s, %s offset:%d" % (v(WOF + 8 * k + 4 * ct + 2 * jj, 2), v(vWo + 2 * (k & 1) + ct),
                                                     (28 * (k >> 1) + 14 * (k & 1) + 4 * jj) * 128))
    if k in (2, 4, 6):
        a("s_waitcnt lgkmcnt(4)")
srd(rOUT, pOUT, 2048 * 896)
a("v_and_b32 v240, 31, %s" % v(vLane))
a("s_lshl_b32 s14, s14, 5")
a("v_add_u32 v240, s14, v240")
a("v_mul_u32_u24 v240, 896, v240")
a("v_lshrrev_b32 v243, 5, %s" % v(vLane))
a("v_lshlrev_b32 v243, 4, v243")
a("s_lshl_b32 s13, %s, 7" % s(sT))
a("s_lshl_b32 s14, s12, 5")
a("s_add_u32 s13, s13, s14")
a("v_add3_u32 v249, v240, v243, s13")
a("s_mul_i32 s15, %s, 24576" % s(sHalf))
for o in range(1, 4):
    a("s_add_u32 s11, s12, %d" % o)
    a("s_and_b32 s11, s11, 3")
    a("s_mul_i32 s11, s11, 6144")
    a("s_add_u32 s11, s11, s15")
    a("s_add_u32 s11, s11, %d" % (PB + 2048 * (o - 1)))
    a("v_add_u32 %s, s11, %s" % (v(232 + o), v(vL16)))
a("s_mul_i32 s11, s12, 6144")
a("s_add_u32 s11, s11, s15")
a("v_add_u32 v232, s11, %s" % v(vL16))
a("v_and_b32 v240, 3, %s" % v(vLane))
a("v_lshlrev_b32 v240, 11, v240")
a("v_add_u32 %s, %d, v240" % (v(vFA), 2044))
a("s_and_b32 s15, %s, 0xffff0000" % s(sNON))
a("s_cmp_eq_u32 %s, 0" % s(sHalf))
a("s_cbranch_scc1 Lo_wait")
a("s_waitcnt lgkmcnt(0)")
for k in range(4):
    for q in range(2):
        a("ds_read_b128 %s, %s offset:%d" % (v((0 if k == 0 else RR + 8 * k) + 4 * q, 4), v(236 + k), 1024 * q))
for i in range(8, 32):
    a("v_mov_b32 %s, 0" % v(i))
a("s_waitcnt lgkmcnt(0)")
for k in range(1, 4):
    for p in range(4):
        a("v_pk_add_f32 %s, %s, %s" % (v(2 * p, 2), v(2 * p, 2), v(RR + 8 * k + 2 * p, 2)))
a.label("Lo_wait")
a("s_mov_b32 %s, %d" % (s(sSpin), SPIN_MAX))
a.label("Lo_hint")
a("buffer_load_dword %s, %s, %s, %s offen sc1" % (v(vFT), v(vFA), s(rWS, 4), s(sOA)))
a("s_sub_u32 %s, %s, 1" % (s(sSpin), s(sSpin)))
a("s_cbranch_scc1 Lo_go")
a("s_waitcnt vmcnt(0)")
a("v_xor_b32 %s, s15, %s" % (v(vFT), v(vFT)))
a("v_cmp_lt_u32 vcc, 0xffff, %s" % v(vFT))
a("s_nop 1")
a("s_cbranch_vccnz Lo_hint")
stamp(9)
a.label("Lo_load")
for k in range(8):
    a("buffer_load_dwordx4 %s, %s, %s, %s offen offset:%d sc1" % (v(OF + 4 * k, 4), v(vL16), s(rWS, 4), s((sOA, sOB)[k >> 2]), 1024 * (k & 3)))
a("s_sub_u32 %s, %s, 1" % (s(sSpin), s(sSpin)))
a("s_cbranch_scc1 Lo_go")
a("s_waitcnt vmcnt(0)")
for k in range(8):
    a("v_xor_b32 %s, s15, %s" % (v(OF + 4 * k + 3), v(OF + 4 * k + 3)))
a("v_or3_b32 v240, %s, %s, %s" % (v(OF + 3), v(OF + 7), v(OF + 11)))
a("v_or3_b32 v241, %s, %s, %s" % (v(OF + 15), v(OF + 19), v(OF + 23)))
a("v_or3_b32 v240, %s, %s, v240" % (v(OF + 27), v(OF + 31)))
a("v_or_b32 v240, v240, v241")
a("v_cmp_lt_u32 vcc, 0xffff, v240")
a("s_nop 1")
a("s_cbranch_vccnz Lo_load")
a.label("Lo_go")
a("s_waitcnt vmcnt(0) lgkmcnt(0)")
for k in range(8):
    for ct in range(2):
        mfma(16 * ct, WOF + 8 * k + 4 * ct, OF + 4 * k)
stamp(10)
a("s_nop 11")
for o in range(1, 4):
    for q in range(2):
        a("ds_write_b128 %s, %s offset:%d" % (v(232 + o), v(8 * o + 4 * q, 4), 1024 * q))
a("s_waitcnt lgkmcnt(0)")
a("s_barrier")
for u in range(3):
    for q in range(2):
        a("ds_read_b128 %s, v232 offset:%d" % (v(RR + 8 * u + 4 * q, 4), PB + 2048 * u + 1024 * q))
a.label("Lfin_sum")
a("s_waitcnt lgkmcnt(0)")
for u in range(3):
    for p in range(4):
        a("v_pk_add_f32 %s, %s, %s" % (v(2 * p, 2), v(2 * p, 2), v(RR + 8 * u + 2 * p, 2)))
for p in range(4):
    a("v_cvt_pk_bf16_f32 %s, %s, %s" % (v(8 + p), v(2 * p), v(2 * p + 1)))
a("s_nop 1")
a("v_permlane32_swap_b32 v8, v10")
a("v_permlane32_swap_b32 v9, v11")
if LEAK:
    a("s_memrealtime s[100:101]")
    a("s_waitcnt lgkmcnt(0)")
    a("v_sub_u32 v240, s100, v253")
    a("v_cmp_lt_u32 vcc, %d, v240" % LEAK)
    a("v_mov_b32 v241, 0x7fc07fc0")
    srd(rT, pDBG, 256)
    a("buffer_load_dword v242, %s, %s, 0 offen offset:8 sc1" % (v(vZero), s(rT, 4)))
    a("s_waitcnt vmcnt(0)")
    a("v_readfirstlane_b32 s12, v242")
    a("s_nop 1")
    a("s_cmp_eq_u32 s12, 0")
    a("s_cselect_b64 vcc, vcc, 0")
    a("s_nop 1")
    a("v_cndmask_b32 v8, v8, v241, vcc")
a("buffer_store_dwordx4 v[8:11], v249, %s, 0 offen %s" % (s(rOUT, 4), opt("outf", "").replace("+", " ")))
a.label("Lexit")
if PROF:
    stamp(11)
    a("s_memrealtime %s" % s(sStamp, 2))
    a("s_waitcnt lgkmcnt(0)")
    a("v_writelane_b32 %s, %s, 17" % (v(vProf), s(sStamp)))
    a("s_lshl_b32 s11, s2, 3")
    a("s_add_u32 s11, s11, %s" % s(sW))
    a("s_lshl_b32 s11, s11, 7")
    a("s_add_u32 s11, s11, 0x%x" % PROF_OFF)
    a("v_lshl_add_u32 v240, %s, 2, s11" % v(vLane))
    a("s_mov_b64 exec, 0xffffffff")
    a("buffer_store_dword %s, v240, %s, 0 offen" % (v(vProf), s(rWS, 4)))
if DBGT:
    a("s_waitcnt vmcnt(0)")
    a("s_memrealtime s[100:101]")
    a("s_memtime s[98:99]")
    srd(rT, pDBG, 256)
    a("s_waitcnt lgkmcnt(0)")
    a("s_and_b32 s11, s2, 31")
    a("s_add_u32 s11, s11, %s" % s(sW))
    a("s_cmp_lg_u32 s11, 0")
    a("s_cbranch_scc1 Lend")
    a("s_cmp_ge_u32 s2, 160")
    a("s_cbranch_scc1 Lend")
    a("s_lshr_b32 s11, s2, 5")
    a("s_mul_i32 s11, s11, 12")
    a("v_mov_b32 v240, v253")
    a("v_sub_u32 v241, s100, v253")
    a("v_sub_u32 v242, s98, v254")
    a("s_mov_b64 exec, 1")
    a("buffer_store_dwordx3 v[240:242], %s, %s, s11 offen offset:4" % (v(vZero), s(rT, 4)))
a.label("Lend")
a("s_endpgm")

if opt("kvf", "sc1") != "sc1":
    a.L = [(l[:-4] + " " + opt("kvf", "sc1").replace("none", "")) if l.startswith("buffer_load_dwordx4") and l.endswith(" sc1") and "v231" in l else l for l in a.L]
if STF != "sc1":
    a.L = [l for l in a.L]
    a.L = [(l[:-4] + (" " + STF.replace("+", " ") if STF != "none" else "")) if l.startswith("buffer_store_dwordx4") and l.endswith(" sc1") else l for l in a.L]
bad = check(a.L)
if bad:
    print("%d hazards" % len(bad))

head = open("cdna_kernels/%s.s.ref" % NAME).read().split("; Override launch")[0]
txt = head + "; @launch grid=(256,1,1) block=(512,1,1) lds=%d\n" % LDS_BYTES
txt += '.amdgcn_target "amdgcn-amd-amdhsa--gfx950"\n.text\n.globl %s_kernel\n.p2align 8\n.type %s_kernel,@function\n' % (NAME, NAME)
txt += a.text()
txt += """.section .rodata,"a"
.p2align 6
.amdhsa_kernel %s_kernel
  .amdhsa_next_free_vgpr 256
  .amdhsa_next_free_sgpr 102
  .amdhsa_accum_offset 256
  .amdhsa_group_segment_fixed_size 0
  .amdhsa_kernarg_size 88
  .amdhsa_user_sgpr_count 2
  .amdhsa_user_sgpr_kernarg_segment_ptr 1
  .amdhsa_system_sgpr_workgroup_id_x 1
.end_amdhsa_kernel
""" % NAME
open(OUT, "w").write(txt)
print("wrote", OUT, len(a.L), "lines")
```

```python
import sys, struct, math
from asmlib import Asm, v, s, check

NAME = "gated_mix__mha_block__glu_gated_geglu__prompt"
PROF = "--prof" in sys.argv
FORCE_FB = "--force-fallback" in sys.argv
def opt(name, default):
    for x in sys.argv:
        if x.startswith("--%s=" % name):
            return type(default)(x.split("=")[1])
    return default
SLEEP = opt("sleep", 1)
STF = opt("stf", "sc1")
PFMODE = opt("pf", 1)
ROT = opt("rot", 7)
RN = opt("rn", 7)
KPRIO = opt("kprio", 0)
NC = opt("nc", 2)
WARM = opt("warm", 0)
GOPOS = opt("go", 1)
DIL = opt("dil", 1)
EARLY = opt("early", 1)
TOUCH = opt("touch", 0)
DYN = opt("dyn", 0)
SWIN = opt("swin", 8)
HD = opt("hd", 8)
WD = opt("wd", 13)
DPOS_LO = [int(x) for x in opt("dlo", "1,3,4,6").split(",")]
DPOS_HI = [int(x) for x in opt("dhi", "2,4,6").split(",")]
CODEPF = opt("codepf", 1)
DBGT = "--dbgt" in sys.argv
LEAK = opt("leak", 0)
OUT = [a for a in sys.argv[1:] if not a.startswith("--")]
OUT = OUT[0] if OUT else "cdna_kernels/%s.s" % NAME


def f2u(x):
    return struct.unpack("<I", struct.pack("<f", x))[0]


KV_OFF, Q_OFF, H_OFF, O_OFF = 0, 0x400000, 0x600000, 0xD00000
FQ_OFF, FH_OFF, FO_OFF, E_OFF, PROF_OFF = 0xF00000, 0xF40000, 0xF80000, 0xFA0000, 0xFC0000
WS_BYTES = 0x1100000 if PROF else 0x1000000
R0, TB, CNT = 114688, 159744, 160768
EXG_OFF = 0xF80000
PB, DB, DREG = 0, 49152, 26624
LDS_BYTES = 163840
SPIN_MAX = 1 << 18

sB, sW, sM, sJ, sH, sMA, sR, sT, sNON = 2, 3, 4, 5, 6, 7, 8, 9, 10
t0, t1, t2, t3, t4 = 11, 12, 13, 14, 15
pX, pQKV, pWO, pWG, pWU, pWD, pGW, pOUT, pDBG, pWS = 16, 18, 20, 24, 26, 28, 30, 32, 34, 36
t5, t6 = 38, 39
rA, rB, rC, rWS, rWD, rWO, rOUT, rT = 40, 44, 48, 52, 56, 60, 64, 68
sIt, sOA, sOB, sOC, sSA, sSB, sSC = 72, 73, 74, 75, 76, 77, 78
sWr, sWd, sXs, sXp, sXo, sTr, sX0 = 79, 80, 81, 82, 83, 84, 85
sHalf, sCg, sFin, sSpin = 86, 87, 88, 89
mHI, mT, kG, kS = 90, 92, 94, 96
sP = 98
sStamp = 100
sTj, sWB = 97, 89
vL16, vLane, vZero = 250, 251, 252
vProf = 230

a = Asm()
nstamp = [0]


STAMPS = [int(x) for x in opt("stamps", "3,12,6,7,8,30,9,10,4,5").split(",")] + [14, 11]
LOOPST = "--loopst" in sys.argv


def stamp(k):
    if not PROF or (k not in STAMPS and not LOOPST):
        return
    a("s_memtime %s" % s(sStamp, 2))
    a("s_waitcnt lgkmcnt(0)")
    a("v_writelane_b32 %s, %s, %d" % (v(vProf), s(sStamp), k))


def srd(r, p, nbytes):
    a("s_mov_b32 %s, %s" % (s(r), s(p)))
    a("s_mov_b32 %s, %s" % (s(r + 1), s(p + 1)))
    a("s_mov_b32 %s, 0x%x" % (s(r + 2), nbytes))
    a("s_mov_b32 %s, 0x20000" % s(r + 3))


def mfma(d, A, B, C=None):
    c = v(d, 16) if C is None else C
    a("v_mfma_f32_32x32x16_bf16 %s, %s, %s, %s" % (v(d, 16), v(A, 4), v(B, 4), c))


def dma(vo, r, so, m0src, m0add=0):
    if m0add:
        a("s_add_u32 m0, %s, %d" % (s(m0src), m0add))
    else:
        a("s_mov_b32 m0, %s" % s(m0src))
    a("s_nop 0")
    a("buffer_load_dwordx4 %s, %s, %s offen lds" % (v(vo), s(r, 4), s(so)))


uid = [0]


def L(p):
    uid[0] += 1
    return "L%s_%d" % (p, uid[0])


def poll(vaddr, vtmp):
    lp, done = L("poll"), L("pdone")
    a("s_mov_b32 %s, %d" % (s(sSpin), SPIN_MAX))
    a.label(lp)
    a("buffer_load_dword %s, %s, %s, 0 offen sc1" % (v(vtmp), v(vaddr), s(rWS, 4)))
    a("s_waitcnt vmcnt(0)")
    a("v_cmp_ne_u32 vcc, %s, %s" % (s(sNON), v(vtmp)))
    a("s_nop 1")
    a("s_cbranch_vccz %s" % done)
    a("s_sub_u32 %s, %s, 1" % (s(sSpin), s(sSpin)))
    a("s_cbranch_scc1 %s" % done)
    a("s_sleep %d" % SLEEP)
    a("s_branch %s" % lp)
    a.label(done)


def get_nonce(vn, vtmp):
    lp, done = L("non"), L("ndone")
    a("s_mov_b32 %s, %d" % (s(sSpin), SPIN_MAX))
    a.label(lp)
    a("v_readfirstlane_b32 %s, %s" % (s(sNON), v(vn)))
    a("s_nop 1")
    a("s_cmp_lg_u32 %s, 0" % s(sNON))
    a("s_cbranch_scc1 %s" % done)
    a("s_sub_u32 %s, %s, 1" % (s(sSpin), s(sSpin)))
    a("s_cbranch_scc1 %s" % done)
    a("buffer_load_dword %s, %s, %s, 0 offen sc1" % (v(vn), v(vZero), s(rT, 4)))
    a("s_waitcnt vmcnt(0)")
    a("s_branch %s" % lp)
    a.label(done)


def flag_store(vaddr, vtmp, nlanes=1):
    a("v_mov_b32 %s, %s" % (v(vtmp), s(sNON)))
    a("s_mov_b64 exec, %d" % ((1 << nlanes) - 1))
    a("buffer_store_dword %s, %s, %s, 0 offen sc1" % (v(vtmp), v(vaddr), s(rWS, 4)))
    a("s_mov_b64 exec, -1")


a.label(NAME + "_kernel")
a("s_cmp_ge_u32 s2, 256")
a("s_cbranch_scc1 Lend")
if "--badmap" in sys.argv:
    a("s_lshr_b32 s11, s2, 5")
    a("s_and_b32 s2, s2, 31")
    a("s_lshl_b32 s2, s2, 3")
    a("s_or_b32 s2, s2, s11")
a("s_load_dwordx16 s[16:31], s[0:1], 0")
a("s_load_dwordx4 s[32:35], s[0:1], 64")
a("s_load_dwordx2 s[36:37], s[0:1], 80")
if PROF:
    a("v_mov_b32 %s, 0" % v(vProf))
    a("s_memrealtime %s" % s(sStamp, 2))
    a("s_waitcnt lgkmcnt(0)")
    a("v_writelane_b32 %s, %s, 16" % (v(vProf), s(sStamp)))
    stamp(14)
if DBGT or LEAK:
    a("s_memrealtime s[100:101]")
    a("s_memtime s[98:99]")
    a("s_waitcnt lgkmcnt(0)")
    a("v_mov_b32 v253, s100")
    a("v_mov_b32 v254, s98")
a("v_lshrrev_b32 v1, 6, v0")
a("v_and_b32 %s, 63, v0" % v(vLane))
a("v_readfirstlane_b32 %s, v1" % s(sW))
a("v_lshlrev_b32 %s, 4, %s" % (v(vL16), v(vLane)))
a("v_mov_b32 %s, 0" % v(vZero))
sCol, sSpec = 5, 39
sRot, sSeq = 82, 92
a("""
s_and_b32 s11, s2, 7
s_lshr_b32 s12, s2, 3
s_and_b32 s13, s11, 1
s_lshl_b32 s13, s13, 3
s_and_b32 s14, s12, 7
s_add_u32 s4, s13, s14
s_lshr_b32 s13, s11, 1
s_lshr_b32 s38, s12, 3
s_mul_i32 s15, s13, 3
s_add_u32 s15, s15, s38
s_add_u32 s13, s13, 12
s_cmp_eq_u32 s38, 3
s_cselect_b32 s5, s13, s15
s_cselect_b32 s39, 1, 0
s_lshl_b32 s38, s38, 1
s_add_u32 s38, s38, s14
s_sub_u32 s13, s38, 7
s_cselect_b32 s82, s38, s13
""")
if not ROT & 1:
    a("s_mov_b32 %s, 0" % s(sRot))
a("s_and_b32 %s, %s, 1" % (s(sHalf), s(sW)))
a("s_bfe_u32 %s, %s, 0x10001" % (s(sCg), s(sW)))
a("s_and_b32 s12, %s, 3" % s(sW))
a("s_lshl_b32 s15, s12, 10")
a("s_lshl_b32 s13, %s, 1" % s(sCol))
a("s_add_u32 s38, %s, 12" % s(sCol))
a("s_cmp_eq_u32 %s, 1" % s(sSpec))
sUnit = 85
a("s_cselect_b32 %s, s38, s13" % s(sUnit))
a("""
v_lshrrev_b32 v16, 3, v251
v_and_b32 v17, 7, v251
v_bfe_u32 v25, v16, 1, 1
v_lshlrev_b32 v25, 2, v25
v_xor_b32 v25, v25, v17
v_lshlrev_b32 v25, 4, v25
""")
a("s_lshl_b32 s13, s12, 3")
a("v_add_u32 v26, s13, v16")
vG, vU = 236, 237
a("v_mul_u32_u24 v27, 3584, v26")
a("s_lshl_b32 s13, %s, 7" % s(sUnit))
a("v_add3_u32 %s, v27, v25, s13" % v(vG))
a("v_xor_b32 %s, 32, %s" % (v(vU), v(vG)))
a("s_cmp_lt_u32 %s, 4" % s(sW))
a("s_cbranch_scc1 Lsetup_lo")

WG_BYTES, QKV_BYTES, X_BYTES = 448 * 3584, 448 * 2688, 2048 * 896
rX, rQ, rG, rU = rA, rB, rC, rWO
vTb = 10
vX0, vX1, vH = 11, 12, 13
vNon, vFA, vFT = 240, 241, 242
sGo, sGd = sOC, sWd


def dma_lines(vo, r, so, m0src, m0add):
    return ["s_add_u32 m0, %s, %d" % (s(m0src), m0add), "s_nop 0",
            "buffer_load_dwordx4 %s, %s, %s offen lds" % (v(vo), s(r, 4), s(so))]


def wrap(x, step, total):
    return ["s_add_u32 %s, %s, %d" % (s(x), s(x), step), "s_cmp_eq_u32 %s, %d" % (s(x), total),
            "s_cselect_b32 %s, 0, %s" % (s(x), s(x))]


def emit(lines):
    for x in lines:
        a(x)


def spread(lines, steps):
    out, n = [], -(-len(lines) // steps)
    while lines:
        k = min(n, len(lines))
        while k < len(lines) and (lines[k].startswith("s_cselect") or lines[k].startswith("s_cbranch") or lines[k].endswith(":")
                                  or lines[k - 1].startswith("s_mov_b64 exec") and not lines[k - 1].endswith("-1")):
            k += 1
        out.append(lines[:k])
        lines = lines[k:]
    return out


def late_ids():
    a("""
s_and_b32 s11, s2, 7
s_lshr_b32 s12, s2, 3
s_lshl_b32 s13, s11, 1
s_lshr_b32 s38, s12, 4
s_add_u32 s6, s13, s38
s_and_b32 s7, s12, 15
s_mul_i32 s13, s12, 37
s_lshr_b32 s13, s13, 8
s_mul_i32 s38, s13, 7
s_sub_u32 s9, s12, s38
s_lshl_b32 s38, s11, 2
s_add_u32 s8, s38, s13
s_cmp_lt_u32 s12, 28
""")
    a("s_cselect_b32 %s, 1, 0" % s(sFin))


def frag_setup(vXb):
    a("s_mov_b32 %s, 0xffff0000" % s(sP))
    a("s_mov_b32 %s, 0xffff0000" % s(sP + 1))
    a("""
v_bfe_u32 v18, v251, 2, 2
v_and_b32 v19, 3, v251
v_lshlrev_b32 v19, 3, v19
v_lshrrev_b32 v20, 5, v251
v_and_b32 v21, 31, v251
v_lshl_add_u32 v22, v20, 3, v18
v_lshlrev_b32 v22, 7, v22
v_lshrrev_b32 v23, 1, v18
v_lshlrev_b32 v23, 6, v23
v_bfe_u32 v24, v21, 1, 3
v_xor_b32 v24, v24, v20
v_lshlrev_b32 v24, 4, v24
""")
    a("s_lshl_b32 s11, %s, 13" % s(sHalf))
    a("v_lshl_add_u32 %s, v21, 7, v24" % v(vXb))
    a("v_add_u32 %s, s11, %s" % (v(vXb), v(vXb)))
    a("s_lshl_b32 %s, %s, 14" % (s(sXs), s(sRot)))


def tile_base(vd):
    a("v_mov_b32 v27, s11")
    a("v_mov_b32 v28, s12")
    a("v_cndmask_b32 v27, v27, v28, %s" % s(sP, 2))
    a("v_add_u32 v27, v27, v19")
    a("v_xor_b32 v27, v27, v23")
    a("v_add_u32 %s, v27, v22" % v(vd))


class Kind:
    def __init__(self, acc, sets, vor, regs):
        self.acc, self.sets, self.vor = acc, sets, vor
        self.n = len(vor)
        self.wb, self.wa, self.xb, self.xa = regs

    def fr(self, st, ks):
        b = self.sets[st] + ks * (8 + 4 * self.n)
        return b, b + 8

    def reads(self, st):
        r = []
        for ks in range(2):
            X, W = self.fr(st, ks)
            rx = lambda rt: "ds_read_b128 %s, %s offset:%d" % (v(X + 4 * rt, 4), v(self.xa + ks), 4096 * rt)
            rw = lambda c, jj: "ds_read_b64_tr_b16 %s, %s offset:%d" % (v(W + 4 * c + 2 * jj, 2), v(self.wa + c),
                                                                      (2048 * ks + 512 * jj) * (2 if self.vor[c] else 1))
            r += [rx(0), rx(1)]
            for c in range(self.n):
                r += [rw(c, 0), rw(c, 1)]
        return r

    def mm(self, st, first=False, acc=None):
        acc = self.acc if acc is None else acc
        out = []
        for ks in range(2):
            X0, W0 = self.fr(st, ks)
            for c, vo in enumerate(self.vor):
                for rt in range(2):
                    d = acc + 32 * c + 16 * rt
                    W, X = W0 + 4 * c, X0 + 4 * rt
                    A, B = (X, W) if vo else (W, X)
                    out.append("v_mfma_f32_32x32x16_bf16 %s, %s, %s, %s" % (v(d, 16), v(A, 4), v(B, 4), "0" if first and ks == 0 else v(d, 16)))
        return out

    def x_addr(self, par):
        return ["s_or_b32 s11, %s, %d" % (s(sXs), 64 * par), "v_xor_b32 %s, s11, %s" % (v(self.xa), v(self.xb)),
                "v_xor_b32 %s, 32, %s" % (v(self.xa + 1), v(self.xa))]


def x_next():
    return wrap(sXs, 16384, 7 * 16384)


def step(ms, reads, extra, per=3, need=None):
    issued = 0
    for i, m in enumerate(ms):
        if need and i in need:
            a("s_waitcnt lgkmcnt(%d)" % (len(reads) - need[i] + issued))
        a(m)
        emit(reads[issued:issued + per])
        issued = min(len(reads), issued + per)
        emit(extra.get(i, []))
    assert issued == len(reads)


a("s_lshl_b32 s11, %s, 7" % s(sM))
a("s_lshl_b32 s13, s12, 5")
a("s_add_u32 s11, s11, s13")
a("v_add_u32 v27, s11, v16")
a("v_mul_u32_u24 v27, 896, v27")
a("v_lshrrev_b32 v28, 1, v16")
a("v_xor_b32 v28, v28, v17")
a("v_lshl_add_u32 %s, v28, 4, v27" % v(vX0))
a("v_xor_b32 v28, 4, v28")
a("v_lshl_add_u32 %s, v28, 4, v27" % v(vX1))
a("v_add_u32 %s, %d, %s" % (v(vX1), 8 * 896, v(vX1)))
a("v_mul_u32_u24 v28, 2688, v26")
a("s_mul_i32 s13, %s, 112" % s(sCol))
a("v_add3_u32 %s, v28, v25, s13" % v(vH))
a("s_mul_i32 s13, %s, 224" % s(sCol))
a("s_sub_u32 s13, s13, %d" % (12 * 224 - 1792))
a("s_cmp_eq_u32 %s, 15" % s(sCol))
a("s_cselect_b32 s13, 2432, s13")
a("v_lshrrev_b32 v27, 4, %s" % v(vLane))
a("v_lshlrev_b32 v28, 2, v27")
a("v_xor_b32 v28, v28, %s" % v(vLane))
a("v_and_b32 v28, 15, v28")
a("v_lshlrev_b32 v28, 4, v28")
a("s_lshl_b32 s11, s12, 3")
a("v_add_u32 v27, s11, v27")
a("v_mul_u32_u24 v27, 2688, v27")
a("v_add3_u32 %s, v27, v28, s13" % v(vH + 1))
a("v_add_u32 %s, %d, %s" % (v(vH + 2), 4 * 2688, v(vH + 1)))
a("s_lshl_b32 %s, s12, 11" % s(sSA))
a("s_lshl_b32 s14, s12, 12")
a("s_lshl_b32 %s, %s, 7" % (s(sXo), s(sRot)))
a("s_mul_i32 %s, %s, %d" % (s(sOB), s(sRot), 64 * 2688))
a("s_mul_i32 %s, %s, %d" % (s(sGo), s(sRot), 64 * 3584))
a("v_mov_b32 v32, %d" % E_OFF)
a("s_waitcnt lgkmcnt(0)")
stamp(15)
srd(rQ, pQKV, QKV_BYTES)
srd(rX, pX, X_BYTES)
srd(rWS, pWS, WS_BYTES)
stamp(0)


def op_x(n):
    g = ["s_lshl_b32 s12, %s, 7" % s(sXo), "s_add_u32 s12, s12, s14", "s_add_u32 s13, %s, 14336" % s(sXo)]
    out = [g + dma_lines(vX0, rX, sXo, 12, 0), dma_lines(vX1, rX, sXo, 12, 1024),
           dma_lines(vX0, rX, 13, 12, 2048), dma_lines(vX1, rX, 13, 12, 3072) + wrap(sXo, 128, 896)]
    return [(("x", n), o) for o in out]


HB_REG = [8, 9, 10, 0, 1, 2, 3, 4, 5, 6, 7, 8, 9, 10]
HB_SPE = [4 * ((n + 1) % 3) for n in range(14)]


def op_h(n, spec):
    blk = (HB_SPE if spec else HB_REG)[n]
    k = 3 if spec else 1
    out = [dma_lines(vH, rQ, sOB, 15, R0 + 4096 * blk)]
    out += [dma_lines(vH + i, rQ, sOB, sSA, R0 + 4096 * (blk + 1) + 1024 * (i - 1)) for i in range(1, k)]
    out[-1] = out[-1] + (wrap(sOB, 32 * 2688, QKV_BYTES) if n & 1 else ["s_add_u32 %s, %s, %d" % (s(sOB), s(sOB), 32 * 2688)])
    return [(("h", n), o) for o in out]


def op_w(n, base=15, off=None):
    off = R0 + 8192 * (n % 6) if off is None else off
    return [(("w", n), dma_lines(vG, rG, sGo, base, off)),
            (("w", n), dma_lines(vU, rU, sGo, base, off + 4096) + wrap(sGo, 32 * 3584, WG_BYTES))]


def hi_side_setup():
    srd(rG, pWG, WG_BYTES)
    srd(rU, pWU, WG_BYTES)
    srd(rT, pDBG, 256)


def nonce_part(k):
    nn = L("nonce")
    a("s_lshl_b32 s38, s2, 3")
    a("s_add_u32 s38, s38, %s" % s(sW))
    a("s_cmp_lg_u32 s38, 7")
    a("s_cbranch_scc1 %s" % nn)
    if k == 0:
        a("buffer_load_dword v33, v32, %s, 0 offen sc1" % s(rWS, 4))
    else:
        a("v_add_u32 v33, 0x10000, v33")
        a("v_or_b32 v33, 1, v33")
        a("s_mov_b64 exec, 1")
        a("buffer_store_dword v33, v32, %s, 0 offen sc1" % s(rWS, 4))
        a("buffer_store_dword v33, %s, %s, 0 offen sc1" % (v(vZero), s(rT, 4)))
        a("s_mov_b64 exec, -1")
    a.label(nn)


def op_touch():
    g = ["s_bitcmp1_b32 %s, 0" % s(sW),
         "s_cselect_b32 %s, %s, %s" % (s(rOUT), s(pWU), s(pWG)), "s_cselect_b32 %s, %s, %s" % (s(rOUT + 1), s(pWU + 1), s(pWG + 1)),
         "s_mov_b32 %s, %d" % (s(rOUT + 2), WG_BYTES), "s_mov_b32 %s, 0x20000" % s(rOUT + 3),
         "s_bfe_u32 s12, s2, 0x30003", "v_lshl_add_u32 v27, %s, 3, s12" % v(vLane), "v_mul_u32_u24 v27, 3584, v27",
         "s_andn2_b32 s12, %s, %s" % (s(sCg), s(sSpec)), "s_add_u32 s12, s12, %s" % s(sUnit), "s_lshl_b32 s12, s12, 7",
         "buffer_load_dword v238, v27, %s, s12 offen" % s(rOUT, 4)]
    return [(("t", 0), g)]


KH = Kind(64, (0, 32), (False, False), (221, 223, 232, 233))
KH1 = Kind(64, (0, 32), (False, False), (221, 244, 232, 246))
KHP = (KH, KH1)
ACCB = 128


def hi_valu_setup():
    L_ = Asm()
    global a
    keep, a = a, L_
    late_ids()
    frag_setup(KH.xb)
    for c in range(2):
        a("s_lshl_b32 s11, %s, 6" % s(sCg))
        a("s_add_u32 s11, s11, %d" % (32 * c))
        a("s_xor_b32 s12, s11, %d" % (4096 + 32))
        tile_base(KH.wb + c)
    K1 = -2.0 * math.sqrt(2.0 / math.pi) * math.log2(math.e)
    a("s_mov_b32 %s, 0x%x" % (s(kG), f2u(K1 * 0.044715)))
    a("s_mov_b32 %s, 0x%x" % (s(kG + 1), f2u(K1)))
    a("v_mov_b32 v235, %s" % s(kG + 1))
    for i in list(range(32, 128)):
        a("v_mov_b32 %s, 0" % v(i))
    a("s_mov_b32 %s, %d" % (s(sWr), R0))
    a("s_add_u32 %s, s15, %d" % (s(sGd), R0 + 4 * 8192))
    a("s_mov_b32 %s, 0" % s(sIt))
    a("s_lshl_b32 s11, s2, 1")
    a("s_add_u32 s11, s11, %s" % s(sHalf))
    a("s_lshl_b32 s11, s11, 8")
    a("s_add_u32 s11, s11, 0x%x" % EXG_OFF)
    a("v_lshl_add_u32 v220, v21, 2, s11")
    for c in range(2):
        a("v_add_u32 %s, %s, %s" % (v(KH.wa + c), s(sWr), v(KH.wb + c)))
    emit(KH.x_addr(0))
    a = keep
    return L_.L


TCH = opt("tch", 0)


def loader(spec):
    q = []
    if not spec:
        order = []
        for n in range(7):
            if 2 * n <= 10:
                order += op_h(2 * n, False)
            order += op_x(n)
            if 2 * n + 1 <= 10:
                order += op_h(2 * n + 1, False)
        if TCH == 1:
            order += op_touch()
        first = opt("first", 18)
        late = {1: op_h(11, False), 2: op_h(12, False), 3: op_h(13, False), 7: op_w(0) + op_w(1), 11: op_w(2) + op_w(3)}
        per = 4
    else:
        order = op_h(0, True) + op_x(0) + op_h(1, True) + op_x(1) + op_h(2, True)
        for n in range(2, 7):
            order += op_x(n)
        if TCH == 1:
            order += op_touch()
        first = opt("first_s", 17)
        late = {n + 1: op_h(n + 3, True) for n in range(11)}
        late[12] = op_w(0) + op_w(1)
        late[13] = op_w(2) + op_w(3)
        per = 3
    if TCH == 2:
        late[13] = late.get(13, []) + op_touch()
    def issue(ops):
        for t, g in ops:
            q.append(t)
            emit(g)

    def wait(tags):
        idx = [k for k, t in enumerate(q) if t in tags]
        return len(q) - 1 - max(idx)
    issue(order[:6])
    hi_side_setup()
    issue(order[6:first])
    order = order[first:]
    side = hi_valu_setup()
    pend = []
    for n in range(14):
        a("s_waitcnt vmcnt(%d)" % wait({("h", n), ("x", n >> 1)}))
        if n == 0:
            stamp(1)
        stamp(48 + n)
        a("s_barrier")
        if n == 0:
            stamp(2)
            if not spec:
                nonce_part(1)
        pend += late.get(n, [])
        if spec or not any(t[0] == "h" for t, _ in order):
            issue(pend)
            pend = []
        k = per
        while order and (k > 0 or ("x", (n + 2) >> 1) in [t for t, _ in order] or ("h", n + 1) in [t for t, _ in order]):
            issue(order[:1])
            order = order[1:]
            k -= 1
        if not order and side:
            piece = spread(side, max(1, 13 - n))[0]
            emit(piece)
            side = side[len(piece):]
    assert not order and not pend and not side
    a("s_waitcnt vmcnt(%d)" % wait({("w", 1)}))


nonce_part(0)
a("s_cmp_eq_u32 %s, 1" % s(sSpec))
a("s_cbranch_scc1 Lload_s")
loader(False)
a("s_branch Lgu1")
a.label("Lload_s")
loader(True)


def place(e, lines, gaps):
    for g, p in zip(gaps, spread(lines, len(gaps))):
        e[g] = e.get(g, []) + p


def stage_addrs(woff):
    odd = ["v_add_u32 %s, %s, %s" % (v(KH1.wa + c), "0x2000", v(KH.wa + c)) for c in range(2)] + \
          ["v_xor_b32 %s, 64, %s" % (v(KH1.xa + k), v(KH.xa + k)) for k in range(2)]
    nxt = x_next() + ["v_add_u32 %s, %s, %s" % (v(KH.wa + c), woff, v(KH.wb + c)) for c in range(2)] + \
          ["v_xor_b32 %s, %s, %s" % (v(KH.xa), s(sXs), v(KH.xb)), "v_xor_b32 %s, 32, %s" % (v(KH.xa + 1), v(KH.xa))]
    return odd, nxt


a.label("Lgu1")
a("s_setprio %d" % opt("bprio", 3))
stamp(3)
a("s_barrier")
a(".p2align 5")
a.label("Lgu1_loop")
if PROF and LOOPST:
    a("s_memtime %s" % s(sStamp, 2))
    a("s_add_u32 s12, %s, 20" % s(sIt))
    a("s_waitcnt lgkmcnt(0)")
    a("s_mov_b32 m0, s12")
    a("v_writelane_b32 %s, %s, m0" % (v(vProf), s(sStamp)))
w = op_w(0, sGd, 0) + op_w(0, sGd, 8192)
odd, nxt = stage_addrs(s(sWr))
e = {0: ["s_cmp_lg_u32 %s, 5" % s(sIt), "s_cbranch_scc1 Lgu1_b",
         "v_add_u32 %s, 128, %s" % (v(vG), v(vG)), "v_add_u32 %s, 128, %s" % (v(vU), v(vU)),
         "s_cmp_eq_u32 %s, 1" % s(sSpec), "s_cselect_b32 %s, 0x40000000, %s" % (s(sGo), s(sGo)), "Lgu1_b:"],
     1: w[0][1], 2: odd[:2], 3: w[1][1][:3], 4: w[1][1][3:] + odd[2:3], 5: w[2][1] + odd[3:], 6: w[3][1][:3],
     7: w[3][1][3:] + ["s_add_u32 %s, %s, s15" % (s(sGd), s(sWr)), "s_add_u32 %s, %s, 16384" % (s(sWr), s(sWr))]}
step(KH.mm(1), KH.reads(0), e, per=2)
BARG = opt("barg", 5)
e = {3: ["s_cmp_eq_u32 %s, %d" % (s(sWr), R0 + 6 * 8192), "s_cselect_b32 %s, %d, %s" % (s(sWr), R0, s(sWr))],
     4: nxt,
     6: ["s_cmp_lg_u32 %s, 5" % s(sIt), "s_cbranch_scc1 Lgu1_c",
         "buffer_load_dword v216, v220, %s, 0 offen sc1" % s(rWS, 4),
         "buffer_load_dword v218, v220, %s, 0 offen offset:128 sc1" % s(rWS, 4),
         "buffer_load_dword %s, %s, %s, 0 offen sc1" % (v(vNon), v(vZero), s(rT, 4)), "Lgu1_c:",
         "s_add_u32 %s, %s, 1" % (s(sIt), s(sIt)), "s_cmp_lt_u32 %s, 7" % s(sIt)]}
e[BARG] = ["s_waitcnt vmcnt(4) lgkmcnt(0)", "s_barrier"] + e.get(BARG, [])
NEED = {0: 4, 2: 6, 4: 10}
def need_waits(per):
    return NEED
step(KH.mm(0), KH1.reads(1), e, per=3, need={0: 4, 2: 6, 4: 12})
a("s_cbranch_scc1 Lgu1_loop")
stamp(18)
a("s_cmp_eq_u32 %s, 1" % s(sSpec))
a("s_cbranch_scc1 Lgu_end_s")


def gelu_lines(acc, vc, dst, T=192):
    P = lambda x, p: v(x + 2 * p, 2)
    r = ["v_pk_mul_f32 %s, %s, %s" % (P(T, p), P(acc, p), P(acc, p)) for p in range(4)]
    r += ["v_pk_fma_f32 %s, %s, %s, %s op_sel:[0,0,1] op_sel_hi:[1,0,1]" % (P(T, p), P(T, p), s(kG, 2), s(kG, 2)) for p in range(4)]
    r += ["v_pk_mul_f32 %s, %s, %s" % (P(T, p), P(T, p), P(acc, p)) for p in range(4)]
    r += ["v_exp_f32 %s, %s" % (v(T + i), v(T + i)) for i in range(8)]
    r += ["v_pk_mul_f32 %s, %s, %s" % (P(acc + 8, p), P(acc + 8, p), P(acc, p)) for p in range(4)]
    r += ["v_pk_fma_f32 %s, %s, %s, %s op_sel_hi:[1,0,0]" % (P(T, p), P(T, p), v(vc, 2), v(vc, 2)) for p in range(4)]
    r += ["v_rcp_f32 %s, %s" % (v(T + i), v(T + i)) for i in range(8)]
    r += ["s_nop 0"]
    r += ["v_pk_mul_f32 %s, %s, %s" % (P(acc + 8, p), P(acc + 8, p), P(T, p)) for p in range(4)]
    r += ["v_cvt_pk_bf16_f32 %s, %s, %s" % (v(dst + p), v(acc + 8 + 2 * p), v(acc + 9 + 2 * p)) for p in range(4)]
    return r


def gelu_scalar(acc, vc, dst, T=192):
    R = range(8)
    r = ["v_mul_f32 %s, %s, %s" % (v(T + i), v(acc + i), v(acc + i)) for i in R]
    r += ["v_fma_f32 %s, %s, %s, v235" % (v(T + i), v(T + i), s(kG)) for i in R]
    r += ["v_mul_f32 %s, %s, %s" % (v(T + i), v(T + i), v(acc + i)) for i in R]
    x = ["v_exp_f32 %s, %s" % (v(T + i), v(T + i)) for i in R]
    y = ["v_mul_f32 %s, %s, %s" % (v(acc + 8 + i), v(acc + 8 + i), v(acc + i)) for i in R]
    r += [z for p in zip(x, y) for z in p]
    r += ["v_fma_f32 %s, %s, %s, %s" % (v(T + i), v(T + i), v(vc), v(vc)) for i in R]
    x = ["v_rcp_f32 %s, %s" % (v(T + i), v(T + i)) for i in R]
    y = ["v_mul_f32 %s, %s, %s" % (v(acc + 8 + i), v(acc + 8 + i), v(T + i)) for i in R]
    r += x[:2] + [z for p in zip(x[2:], y[:6]) for z in p] + y[6:]
    r += ["v_cvt_pk_bf16_f32 %s, %s, %s" % (v(dst + p), v(acc + 8 + 2 * p), v(acc + 9 + 2 * p)) for p in range(4)]
    return r


def tile_index(sd):
    return ["s_lshl_b32 %s, %s, 1" % (s(sd), s(sM)), "s_add_u32 %s, %s, %s" % (s(sd), s(sd), s(sHalf)),
            "s_lshl_b32 %s, %s, 1" % (s(sd), s(sd))]


sH0, sH1 = sSA, sSC


def h_params():
    r = tile_index(sH0) + ["s_mul_i32 %s, %s, 114688" % (s(sH0), s(sH0)),
                           "s_lshl_b32 s11, %s, 1" % s(sUnit), "s_add_u32 s11, s11, %s" % s(sCg), "s_lshl_b32 s12, s11, 11",
                           "s_add_u32 %s, %s, s12" % (s(sH0), s(sH0)), "s_add_u32 %s, %s, 0x%x" % (s(sH0), s(sH0), H_OFF),
                           "s_add_u32 %s, %s, 114688" % (s(sH1), s(sH0)),
                           "s_lshl_b32 s12, %s, 1" % s(sM), "s_add_u32 s12, s12, %s" % s(sHalf), "s_mul_i32 s12, s12, 56",
                           "s_add_u32 s11, s11, s12", "s_lshl_b32 s11, s11, 7", "s_add_u32 s11, s11, 0x%x" % FH_OFF,
                           "v_mov_b32 v249, s11"]
    return r


def hstore(n):
    return "buffer_store_dwordx4 %s, %s, %s, %s offen offset:%d sc1" % (v(200 + 4 * n, 4), v(vL16), s(rWS, 4), s((sH0, sH1)[n & 1]), 1024 * (n >> 1))


def nonce_lines(tag):
    return ["s_mov_b32 %s, %d" % (s(sSpin), SPIN_MAX), tag + "_n1:",
            "v_readfirstlane_b32 %s, %s" % (s(sNON), v(vNon)), "s_nop 1", "s_cmp_lg_u32 %s, 0" % s(sNON), "s_cbranch_scc1 %s_n2" % tag,
            "s_sub_u32 %s, %s, 1" % (s(sSpin), s(sSpin)), "s_cbranch_scc1 %s_n2" % tag,
            "buffer_load_dword %s, %s, %s, 0 offen sc1" % (v(vNon), v(vZero), s(rT, 4)), "s_waitcnt vmcnt(0)",
            "s_branch %s_n1" % tag, tag + "_n2:", "v_mov_b32 %s, %s" % (v(vFT), s(sNON))]


def hflag():
    return ["s_mov_b64 exec, 1", "buffer_store_dword %s, v249, %s, 0 offen sc1" % (v(vFT), s(rWS, 4)), "s_mov_b64 exec, -1"]


SCAL = opt("scal", 1)
fills = []
for n in range(4):
    fills += (gelu_scalar if SCAL else gelu_lines)(KH.acc + 16 * n, 216 + 2 * (n & 1), 200 + 4 * n)
    if "--x-b2nost" not in sys.argv:
        fills += [hstore(n)]
if "--x-b2nofill" in sys.argv:
    fills = []
cost = lambda x: 8 if x.startswith(("v_exp", "v_rcp", "v_pk")) else 12 if x.startswith("buffer") else 4
BUD = opt("bud", 28)
pre = h_params()
for n in range(14):
    par = n & 1
    odd, nxt = stage_addrs("0x%x" % (R0 + 8192 * ((14 + n + 1) % 6)))
    e = {}
    if par == 0:
        e[2], e[3] = odd[:2], odd[2:]
        stamp(32 + n)
    else:
        if n < 13:
            e[4] = nxt
        e[BARG] = ["s_waitcnt %slgkmcnt(0)" % ("vmcnt(0) " if n == 1 else ""), "s_barrier"]
    if n == 0:
        place(e, pre, [0, 1, 4, 5])
        e[6] = nonce_lines("Lg2")
    if n >= 1:
        for gi in range(8):
            nrd = (3 if gi < 4 else 0) if par else (2 if gi < 6 else 0)
            room = BUD - 4 * nrd - 4 * len(e.get(gi, []))
            if par and gi in (1, 3):
                room -= 4
            if par and gi == BARG:
                room = 0
            if n == 13 and gi == 7:
                room = 9999
            take = []
            while fills and cost(fills[0]) <= room:
                room -= cost(fills[0])
                take.append(fills.pop(0))
            assert n >= 2 or not any(x.startswith("buffer") for x in take)
            e[gi] = e.get(gi, []) + take
        if n == 13:
            print("left for the last gap:", len(e[7]))
    step(KH.mm(1 - par, first=(n == 1), acc=KH.acc if n == 0 else ACCB), KHP[par].reads(par), e,
         per=3 if par else 2, need={0: 4, 2: 6, 4: 12} if par else None)
assert not fills
stamp(19)

vH0, vDd, vDr, vH1 = 225, 226, 227, 229


def d_prefetch_setup():
    srd(rWD, pWD, 1792 * 896)
    srd(rWO, pWO, 448 * 896)
    a("v_lshrrev_b32 v16, 3, %s" % v(vLane))
    a("v_and_b32 v17, 7, %s" % v(vLane))
    a("v_bfe_u32 v18, v16, 1, 1")
    a("v_lshlrev_b32 v18, 2, v18")
    a("v_xor_b32 v18, v18, v17")
    a("v_lshlrev_b32 v18, 4, v18")
    a("v_mul_u32_u24 v16, 896, v16")
    a("s_lshl_b32 s11, %s, 7" % s(sT))
    a("v_add3_u32 %s, v16, v18, s11" % v(vDd))
    a("s_and_b32 s12, %s, 3" % s(sW))
    a("s_mul_i32 %s, s12, %d" % (s(sXs), 448 * 896))
    a("s_add_u32 %s, %s, %d" % (s(sXo), s(sXs), 448 * 896))
    a("s_lshl_b32 %s, %s, 2" % (s(sTr), s(sT)))
    a("s_and_b32 s11, %s, 3" % s(sR))
    a("s_add_u32 %s, %s, s11" % (s(sTr), s(sTr)))
    if not ROT & 4:
        a("s_mov_b32 %s, 0" % s(sTr))
    a("s_mul_i32 s11, %s, %d" % (s(sTr), 16 * 896))
    a("s_add_u32 %s, %s, s11" % (s(sOC), s(sXs)))
    a("s_cmp_eq_u32 %s, 0" % s(sFin))
    a("s_cselect_b32 %s, 0x40000000, %s" % (s(sOC), s(sOC)))
    a("s_mul_i32 %s, s12, %d" % (s(sWd), DREG))
    a("s_add_u32 %s, %s, %d" % (s(sWd), s(sWd), DB))


def wd_adv(e):
    r = ["s_add_u32 %s, %s, 7168" % (s(sOC), s(sOC))]
    if e:
        r += ["s_cmp_eq_u32 %s, %s" % (s(sOC), s(sXo)), "s_cselect_b32 %s, %s, %s" % (s(sOC), s(sXs), s(sOC))]
    return r


def d_prefetch_groups():
    return [dma_lines(vDd, rWD, sOC, sWd, 1024 * n) + wd_adv(n & 1) for n in range(26)]


DA, HB, WF = 0, 64, 128


def dr_setup():
    a("s_and_b32 s12, %s, 3" % s(sW))
    a("s_mul_i32 s13, s12, %d" % DREG)
    a("s_add_u32 s13, s13, %d" % DB)
    a("v_bfe_u32 v240, %s, 2, 2" % v(vLane))
    a("v_lshrrev_b32 v243, 5, %s" % v(vLane))
    a("v_lshl_add_u32 v243, v243, 2, v240")
    a("v_lshl_add_u32 v243, v243, 7, s13")
    a("v_lshrrev_b32 v240, 1, v240")
    a("v_lshlrev_b32 v240, 6, v240")
    a("v_bfe_u32 v244, %s, 4, 1" % v(vLane))
    a("v_add_u32 v244, s12, v244")
    a("v_and_b32 v245, 3, %s" % v(vLane))
    a("v_lshlrev_b32 v245, 3, v245")
    for ct in range(2):
        a("v_add_u32 v246, %d, v244" % (2 * ct))
        a("v_and_b32 v246, 3, v246")
        a("v_lshl_add_u32 v246, v246, 5, v245")
        a("v_xor_b32 v246, v246, v240")
        a("v_add_u32 %s, v246, v243" % v(vDr + ct))


vPD = 248


def down_setup():
    dr_setup()
    a("s_lshl_b32 s11, %s, 2" % s(sR))
    a("s_add_u32 s11, s11, s12")
    a("s_mul_i32 s11, s11, %d" % (14 * 128))
    a("s_add_u32 s11, s11, 0x%x" % FH_OFF)
    a("v_min_u32 v240, 13, %s" % v(vLane))
    a("v_lshl_add_u32 %s, v240, 7, s11" % v(vPD))
    a("s_mul_i32 s11, %s, 229376" % s(sR))
    a("s_mul_i32 s13, s12, 28672")
    a("s_add_u32 s11, s11, s13")
    a("s_add_u32 s11, s11, 0x%x" % H_OFF)
    a("v_add_u32 %s, s11, %s" % (v(vH0), v(vL16)))
    a("s_lshl_b32 %s, %s, 10" % (s(sOA), s(sTr)))
    a("s_mul_i32 %s, s12, %d" % (s(sOB), 112 * 896))
    a("v_add_u32 %s, 114688, %s" % (v(vH1), v(vH0)))


def hi_end(acc, first_flag):
    if not first_flag:
        a("s_waitcnt vmcnt(0)")
        a("s_barrier")
    emit(KH.mm(1, acc=acc))
    a("s_setprio 3")
    if not first_flag:
        emit(h_params())
        emit(nonce_lines("Lge"))
    d_prefetch_setup()
    down_setup()
    if first_flag:
        a("s_waitcnt vmcnt(0)")
        emit(hflag())
        a("v_add_u32 v249, 256, v249")
        a("s_add_u32 %s, %s, 4096" % (s(sH0), s(sH0)))
        a("s_add_u32 %s, %s, 4096" % (s(sH1), s(sH1)))
    pf = d_prefetch_groups()
    for n in range(4):
        g = gelu_lines(acc + 16 * n, 216 + 2 * (n & 1), 200 + 4 * n)
        k = (26 * (n + 1)) // 4 - (26 * n) // 4
        step = len(g) // k
        for i, x in enumerate(g):
            a(x)
            if PFMODE == 0 and i % step == step - 1 and k > 0 and x != "s_nop 0":
                emit(pf.pop(0))
                k -= 1
        while PFMODE == 0 and k > 0:
            emit(pf.pop(0))
            k -= 1
        if HSE:
            a(hstore(n))
    stamp(12)
    a("s_setprio %d" % opt("dprio1", 0))
    if not HSE:
        for n in range(4):
            a(hstore(n))
    a("s_waitcnt vmcnt(0)")
    emit(hflag())
    stamp(4)
    a("s_cmp_eq_u32 %s, 0" % s(sFin))
    a("s_cbranch_scc1 Lexit")
    for i, g in enumerate(pf):
        if PWIN and i >= PWIN:
            a("s_waitcnt vmcnt(%d)" % (PWIN - 1))
        emit(g)
    a("s_branch Ldown")


HSE = opt("hse", 1)
PWIN = opt("pwin", 0)
hi_end(ACCB, True)
a.label("Lgu_end_s")
hi_end(KH.acc, False)

Q, O, S_, KV, vIdx = 0, 32, 96, 160, 224
sKV, sQb = sOA, sOB


vKV = 231


def kvload(b, part, va=vKV):
    for i in range(2):
        a("buffer_load_dwordx4 %s, %s, %s, %s offen offset:%d sc1" % (
            v(KV + 16 * b + 8 * part + 4 * i, 4), v(va), s(rWS, 4), s(sKV), 2048 * part + 1024 * i))


def qk(n, half):
    kt, u = n >> 2, n & 3
    K = KV + 16 * (kt & 3) + 4 * half
    d = S_ + 16 * u
    return "v_mfma_f32_32x32x16_bf16 %s, %s, %s, %s" % (v(d, 16), v(K, 4), v(Q + 8 * u + 4 * half, 4), v(d, 16) if half else "0")


def pv(n, half):
    kt, u = n >> 2, n & 3
    V = KV + 16 * (kt & 3) + 8 + 4 * half
    return "v_smfmac_f32_32x32x32_bf16 %s, %s, %s, %s" % (v(O + 16 * u, 16), v(V, 4), v(S_ + 16 * u + 8 * half, 8), v(vIdx))


def slot(n, last=False, extra=None):
    u = n & 3
    extra = extra or {}
    e = ["v_exp_f32 %s, %s" % (v(S_ + 16 * u + i), v(S_ + 16 * u + i)) for i in range(16)]
    if not last:
        seq = [qk(n + 1, 0)] + e[0:3] + [qk(n + 1, 1)] + e[3:6]
    else:
        seq = e[0:6]
    seq += [pv(n - 1, 0)] + e[6:9] + [pv(n - 1, 1)] + e[9:16]
    for i, x in enumerate(seq):
        for y in extra.get(i, []):
            a(y)
        a(x)


KR = Kind(96, (16, 56), (False,), (1, 4, 7, 8))
KS_ = Kind(96, (16, 56), (False, True, True), (1, 4, 7, 8))
vWb, vWa = 1, 4
sHp, sHa, sHb, sPad, sVa = 22, 0, 1, 23, 38
a.label("Lsetup_lo")
a("v_lshlrev_b32 v35, 1, v0")
a("s_waitcnt lgkmcnt(0)")
stamp(15)
srd(rT, pGW, 896)
a("buffer_load_ushort v30, v35, %s, 0 offen" % s(rT, 4))
a("buffer_load_ushort v32, v35, %s, 0 offen offset:512" % s(rT, 4))
a("s_getpc_b64 s[0:1]")
a.label("Lpc")
a("s_sub_u32 s0, s0, Lpc-%s_kernel" % NAME)
a("s_subb_u32 s1, s1, 0")
a("s_lshr_b32 s11, s2, 3")
a("s_lshl_b32 s11, s11, 2")
a("s_add_u32 s11, s11, %s" % s(sW))
a("s_lshl_b32 s11, s11, 9")
a("v_and_b32 v35, 3, %s" % v(vLane))
a("v_lshl_add_u32 v35, v35, 7, s11")
a("v_min_u32 v35, Lend-%s_kernel, v35" % NAME)
a("global_load_dword v238, v35, s[0:1]")
stamp(0)
srd(rWS, pWS, WS_BYTES)
late_ids()
frag_setup(KR.xb)
a("s_mov_b32 %s, 0" % s(mHI))
a("s_mov_b32 %s, -1" % s(mHI + 1))
mT = 94
a("s_mov_b32 %s, 0x88880000" % s(mT))
a("s_mov_b32 %s, 0x88880000" % s(mT + 1))
a("v_lshl_add_u32 %s, v20, 2, v18" % v(vTb))
a("v_lshlrev_b32 %s, 3, %s" % (v(vTb), v(vTb)))
a("v_bfe_u32 v27, v0, 4, 1")
a("v_lshlrev_b32 v34, 11, v27")
a("v_bfe_u32 v27, v0, 2, 1")
a("v_lshl_add_u32 v34, v27, 9, v34")
a("v_bfe_u32 v27, v0, 5, 3")
a("v_lshl_add_u32 v34, v27, 6, v34")
a("v_bfe_u32 v27, v0, 3, 1")
a("v_lshl_add_u32 v34, v27, 5, v34")
a("v_and_b32 v27, 3, v0")
a("v_lshl_add_u32 v34, v27, 3, v34")
a("v_add_u32 v34, %d, v34" % TB)
a("v_mov_b32 v31, 0")
a("v_mov_b32 v33, 0")
a("s_lshr_b32 s11, %s, 2" % s(sRot))
a("s_lshl_b32 s11, s11, 10")
a("s_and_b32 s12, %s, 3" % s(sRot))
a("s_lshl_b32 s12, s12, 7")
a("s_add_u32 s11, s11, s12")
a("s_add_u32 %s, s11, %d" % (s(sTr), TB))
a("s_mul_i32 s11, %s, 56" % s(sCg))
a("s_add_u32 s12, s11, 32")
tile_base(vWb)
a("v_lshlrev_b32 v24, 6, v18")
a("s_mul_i32 s11, %s, 112" % s(sCg))
a("s_add_u32 s12, s11, 32")
a("s_cmp_eq_u32 %s, 15" % s(sCol))
a("s_cselect_b32 s11, s12, s11")
a("v_bfe_u32 v27, %s, 4, 1" % v(vLane))
a("v_lshl_add_u32 v27, v27, 5, v19")
a("v_add_u32 v27, s11, v27")
a("v_lshl_add_u32 v28, v22, 1, 0")
a("v_add_u32 v28, 4096, v28")
for c in range(2):
    if c:
        a("v_add_u32 v27, 56, v27")
    a("v_xor_b32 v29, v27, v24")
    a("v_add_u32 %s, v29, v28" % v(vWb + 1 + c))
pack = lambda t: sum(x << (4 * i) for i, x in enumerate(t))
a("s_cmp_eq_u32 %s, 1" % s(sSpec))
a("s_mov_b32 s11, 0x%x" % (pack(HB_SPE) & 0xffffffff))
a("s_cselect_b32 %s, s11, 0x%x" % (s(sSeq), pack(HB_REG) & 0xffffffff))
a("s_mov_b32 s11, 0x%x" % (pack(HB_SPE) >> 32))
a("s_cselect_b32 %s, s11, 0x%x" % (s(sSeq + 1), pack(HB_REG) >> 32))
for i in list(range(56, 128)):
    a("v_mov_b32 %s, 0" % v(i))
a("s_mov_b32 %s, 0" % s(sIt))


def a_state(par):
    r = ["s_add_u32 %s, %s, 64" % (s(sTr), s(sTr))]
    if par:
        r += ["s_cmp_eq_u32 %s, %d" % (s(sTr), TB + 512), "s_cselect_b32 %s, %d, %s" % (s(sTr), TB + 1024, s(sTr)),
              "s_cmp_eq_u32 %s, %d" % (s(sTr), TB + 1024 + 384), "s_cselect_b32 %s, %d, %s" % (s(sTr), TB, s(sTr))] + x_next()
    return r


def a_addr(K, par):
    r = ["s_and_b32 s12, %s, 15" % s(sSeq), "s_lshl_b32 s12, s12, 12", "s_add_u32 s12, s12, %d" % R0,
         "s_lshr_b64 %s, %s, 4" % (s(sSeq, 2), s(sSeq, 2))]
    r += ["v_add_u32 %s, s12, %s" % (v(vWa + c), v(vWb + c)) for c in range(K.n)]
    r += ["v_add_u32 v11, %s, %s" % (s(sTr), v(vTb)), "v_cndmask_b32 %s, %s, v11, %s" % (v(vWa), v(vWa), s(mT, 2))]
    return r + K.x_addr(par)


def pass_a(K, tag):
    emit(a_addr(K, 0))
    a("s_waitcnt lgkmcnt(0)")
    a("s_barrier")
    a(".p2align 5")
    a.label(tag)
    for par in range(2):
        book = a_state(par) + a_addr(K, 1 - par)
        tail = []
        if par:
            tail = ["s_add_u32 %s, %s, 1" % (s(sIt), s(sIt)), "s_cmp_lg_u32 %s, 4" % s(sIt), "s_cbranch_scc1 %s_n" % tag,
                    "buffer_load_dword %s, %s, %s, 0 offen sc1" % (v(vNon), v(vZero), s(rT, 4)), tag + "_n:",
                    "s_cmp_lt_u32 %s, 7" % s(sIt)]
        bar = ["s_waitcnt lgkmcnt(0)", "s_barrier"]
        if K.n == 1:
            e = {2: book + tail, 3: bar}
        else:
            e = {}
            place(e, book, [5, 6, 7, 8])
            e[9] = tail
            e[10] = bar
        step(K.mm(1 - par), K.reads(par), e)
    a("s_cbranch_scc1 %s" % tag)


def epi_params():
    a("s_lshl_b32 %s, %s, 1" % (s(sHp), s(sCol)))
    a("s_add_u32 %s, %s, %s" % (s(sHp), s(sHp), s(sCg)))
    emit(tile_index(sSB))
    a("s_and_b32 s11, %s, 15" % s(sHp))
    a("s_lshl_b32 s11, s11, 6")
    a("s_add_u32 s12, %s, s11" % s(sSB))
    a("s_cmp_lt_u32 %s, 16" % s(sHp))
    a("s_cselect_b32 %s, 0x%x, 1.0" % (s(kS), f2u(math.log2(math.e) / math.sqrt(28.0))))
    a("s_cselect_b32 %s, 0xffff, 0" % s(sPad))
    a("s_cselect_b32 s13, 0, 12")
    a("s_cselect_b32 s14, 11, 12")
    a("s_cselect_b32 s11, 0x%x, %d" % (Q_OFF, KV_OFF))
    a("s_lshl_b32 s12, s12, s14")
    a("s_add_u32 %s, s11, s12" % s(sHa))
    a("s_lshl_b32 s12, 1, s14")
    a("s_add_u32 %s, %s, s12" % (s(sHb), s(sHa)))
    a("v_lshrrev_b32 v27, 1, %s" % v(vLane))
    a("v_xor_b32 v27, v27, %s" % v(vLane))
    a("v_bfe_u32 v27, v27, 2, 1")
    a("v_mul_u32_u24 v27, s13, v27")
    a("v_xor_b32 v27, v27, %s" % v(vLane))
    a("v_lshlrev_b32 v233, 4, v27")
    a("s_lshl_b32 s11, s2, 1")
    a("s_add_u32 s11, s11, %s" % s(sHalf))
    a("s_lshl_b32 s11, s11, 8")
    a("s_add_u32 s11, s11, 0x%x" % EXG_OFF)
    a("v_lshl_add_u32 v232, %s, 2, s11" % v(vLane))
    a("s_lshl_b32 s12, %s, 1" % s(sM))
    a("s_add_u32 s12, s12, %s" % s(sHalf))
    a("s_lshl_b32 s12, s12, 7")
    a("s_add_u32 s12, s12, 0x%x" % FQ_OFF)
    a("s_lshl_b32 s13, %s, 1" % s(sCol))
    a("s_add_u32 s13, s13, %s" % s(sCg))
    a("s_lshl_b32 s13, s13, 1")
    a("s_sub_u32 %s, s13, 48" % s(sVa))
    a("s_add_u32 s13, %s, 31" % s(sVa))
    a("v_add_u32 v27, s13, %s" % v(vLane))
    a("v_mov_b32 v28, %s" % s(sHp))
    a("v_cmp_eq_u32 vcc, 0, %s" % v(vLane))
    a("s_nop 1")
    a("v_cndmask_b32 v27, v27, v28, vcc")
    a("v_lshl_add_u32 %s, v27, 12, s12" % v(vFA))


epi_params()
a("s_waitcnt vmcnt(1)")
a("ds_write_b64 v34, v[30:31]")
a("ds_write_b64 v34, v[32:33] offset:1024")
srd(rT, pDBG, 256)
stamp(1)
a("s_cmp_eq_u32 %s, 1" % s(sSpec))
a("s_cbranch_scc1 Lpa_s_entry")
pass_a(KR, "Lpa_r")

sMp, sMo, sSec, sRe, sRdy = sXs, sXo, sTr, sTj, sWr
vPA = 243
def try_start(fail, loads=True):
    other, go = L("other"), L("first")
    a("v_cmp_ne_u32 vcc, %s, v244" % s(sNON))
    a("s_mov_b32 %s, %s" % (s(sSec), s(sMo)))
    a("s_lshr_b64 s[12:13], vcc, 16")
    a("s_cbranch_scc1 %s" % fail)
    a("s_and_b32 s12, vcc_lo, %s" % s(sMp))
    if DYN:
        a("s_cbranch_scc0 %s" % go)
        a("s_and_b32 s12, vcc_lo, %s" % s(sMo))
        a("s_cbranch_scc1 %s" % fail)
        a("s_mov_b32 %s, %s" % (s(sSec), s(sMp)))
        a("v_xor_b32 %s, 0x20000, %s" % (v(vKV), v(vKV)))
        a.label(go)
    else:
        a("s_cbranch_scc1 %s" % fail)
    a("s_and_b32 s12, vcc_lo, %s" % s(sSec))
    a("s_cselect_b32 %s, 0, 99" % s(sRe))
    if loads:
        first_loads()


def first_loads():
    kvload(0, 0)
    for u in range(4):
        a("s_add_u32 s11, %s, %d" % (s(sW), u + 1))
        a("s_and_b32 s11, s11, 3")
        a("s_lshl_b32 s11, s11, 11")
        a("s_add_u32 s11, s11, %s" % s(sQb))
        for i in range(2):
            a("buffer_load_dwordx4 %s, %s, %s, s11 offen offset:%d sc1" % (v(Q + 8 * u + 4 * i, 4), v(vL16), s(rWS, 4), 1024 * i))
    kvload(0, 1)
    for b in (1, 2):
        a("s_add_u32 %s, %s, 4096" % (s(sKV), s(sKV)))
        a("s_and_b32 %s, %s, 0x7fff" % (s(sKV), s(sKV)))
        kvload(b, 0)
        kvload(b, 1)


def qk_epilogue(acc0):
    chain = [
        "v_mov_b32 v16, %s" % v(acc0 + 12),
        "v_mov_b32 v17, %s" % v(acc0 + 16 + 12),
        None,
        "v_permlane32_swap_b32 v16, v17",
        None,
        "v_cvt_pk_bf16_f32 v17, v17, v17",
        "v_and_b32 v17, 0xffff0000, v17",
        "v_mul_f32 v17, 0x%x, v17" % f2u(-math.log2(math.e)),
        "v_exp_f32 v17, v17",
        "v_add_f32 v17, 1.0, v17",
        "v_rcp_f32 v17, v17",
        "v_cvt_pk_bf16_f32 v18, v17, v17",
        "v_and_b32 v17, 0xffff0000, v18",
        "v_and_b32 v18, %s, v18" % s(sPad),
        "v_sub_f32 v17, 1.0, v17",
        "v_mov_b32 v19, v18",
        "v_cvt_pk_bf16_f32 v17, v17, v17",
        "v_and_b32 v17, 0xffff0000, v17",
        "v_permlane32_swap_b32 v18, v19",
        "v_rcp_f32 v20, v17",
        "v_min_f32 v20, 0x7f000000, v20",
        "buffer_store_dword v20, v232, %s, 0 offen sc1" % s(rWS, 4),
    ]
    body = []
    for rt in range(2):
        acc, dst, so = acc0 + 16 * rt, 76 + 8 * rt, (sHa, sHb)[rt]
        body += ["v_pk_mul_f32 %s, %s, %s op_sel_hi:[1,0]" % (v(acc + 2 * p, 2), v(acc + 2 * p, 2), s(kS, 2)) for p in range(4)]
        body += ["v_cvt_pk_bf16_f32 %s, %s, %s" % (v(dst + p), v(acc + 2 * p), v(acc + 2 * p + 1)) for p in range(4)]
        body += ["buffer_store_dwordx4 %s, v233, %s, %s offen sc1" % (v(dst, 4), s(rWS, 4), s(so))]
    for rt in range(2):
        acc, dst = acc0 + 16 * rt, 76 + 8 * rt
        body += ["v_pk_mul_f32 %s, %s, %s op_sel_hi:[1,0]" % (v(acc + 2 * p, 2), v(acc + 2 * p, 2), s(kS, 2)) for p in range(4, 8)]
        body += ["v_cvt_pk_bf16_f32 %s, %s, %s" % (v(dst + p), v(acc + 2 * p), v(acc + 2 * p + 1)) for p in range(4, 8)]
        body += ["v_cndmask_b32 %s, %s, %s, %s" % (v(dst + 7), v(dst + 7), v(vZero), s(mHI, 2))]
    out = [chain.pop(0), chain.pop(0)]
    while chain or body:
        if body:
            out.append(body.pop(0))
        if chain:
            x = chain.pop(0)
            if x:
                out.append(x)
            elif body:
                out.append(body.pop(0))
    for rt in range(2):
        dst, so = 76 + 8 * rt, (sHa, sHb)[rt]
        out.append("v_cndmask_b32 %s, %s, %s, %s" % (v(dst + 6), v(dst + 6), v(18 + rt), s(mHI, 2)))
        out.append("buffer_store_dwordx4 %s, v233, %s, %s offen offset:1024 sc1" % (v(dst + 4, 4), s(rWS, 4), s(so)))
    return out


def capture(fn):
    global a
    keep, a = a, Asm()
    fn()
    out, a = a.L, keep
    return out


def attn_setup():
    a("v_and_b32 v16, 3, %s" % v(vLane))
    a("s_lshl_b32 s11, %s, 2" % s(sW))
    a("v_add_u32 v16, s11, v16")
    a("v_bfe_u32 v17, %s, 3, 1" % v(vLane))
    a("v_lshl_add_u32 v16, v17, 4, v16")
    a("v_bfe_u32 v17, %s, 2, 1" % v(vLane))
    a("v_lshlrev_b32 v17, 4, v17")
    a("s_add_u32 s12, %s, 16" % s(sH))
    a("v_add_u32 v17, s12, v17")
    a("v_lshl_add_u32 v16, v17, 5, v16")
    a("s_lshl_b32 s11, %s, 5" % s(sH))
    a("s_lshl_b32 s12, %s, 1" % s(sMA))
    a("s_add_u32 s11, s11, s12")
    a("v_and_b32 v17, 1, %s" % v(vLane))
    a("v_add_u32 v17, s11, v17")
    a("v_cmp_gt_u32 vcc, 16, %s" % v(vLane))
    a("s_mov_b32 s11, 0x%x" % FQ_OFF)
    a("s_nop 0")
    a("v_cndmask_b32 v16, v17, v16, vcc")
    a("v_lshl_add_u32 %s, v16, 7, s11" % v(vPA))
    for i in range(64):
        a("v_mov_b32 %s, 0" % v(O + i))
    for i in range(16):
        a("v_mov_b32 %s, 0" % v(S_ + 48 + i))
    for i in range(8):
        a("v_mov_b32 %s, 0" % v(KV + 48 + 8 + i))
    a("v_mov_b32 %s, 0xdddd" % v(vIdx))
    a("s_lshr_b32 s13, %s, 3" % s(sMA))
    a("s_lshl_b32 s14, s13, 3")
    a("s_lshl_b32 %s, 0xff, s14" % s(sMp))
    a("s_xor_b32 %s, %s, 0xffff" % (s(sMo), s(sMp)))
    a("s_lshl_b32 s11, %s, 6" % s(sH))
    a("s_lshl_b32 s12, %s, 3" % s(sW))
    a("s_add_u32 s12, s12, s11")
    a("s_lshl_b32 s13, s13, 5")
    a("s_add_u32 s12, s12, s13")
    a("s_lshl_b32 s12, s12, 12")
    a("v_add_u32 %s, s12, %s" % (v(vKV), v(vL16)))
    a("s_and_b32 s12, %s, 7" % s(sMA))
    a("s_lshl_b32 %s, s12, 12" % s(sKV))
    a("s_lshl_b32 s12, %s, 2" % s(sMA))
    a("s_add_u32 s11, s11, s12")
    a("s_lshl_b32 s11, s11, 11")
    a("s_add_u32 %s, s11, 0x%x" % (s(sQb), Q_OFF))
    for u in range(3):
        a("s_add_u32 s11, %s, %d" % (s(sW), u + 1))
        a("s_and_b32 s11, s11, 3")
        a("s_mul_i32 s11, s11, 12288")
        a("s_add_u32 s11, s11, %d" % (PB + 4096 * u))
        a("v_add_u32 %s, s11, %s" % (v(225 + u), v(vL16)))
    a("s_mov_b32 %s, 0" % s(sIt))
    a("s_mov_b32 %s, 0" % s(sRdy))


def warm_lines():
    def f():
        srd(rA, pWD, 1792 * 896)
        srd(rB, pWO, 448 * 896)
        a("s_lshr_b32 s11, s2, 3")
        a("s_lshl_b32 s11, s11, 2")
        a("s_add_u32 s11, s11, %s" % s(sW))
        a("s_lshl_b32 s11, s11, 13")
        a("v_lshl_add_u32 v16, %s, 7, s11" % v(vLane))
        a("v_add_u32 v17, 0x100000, v16")
        a("v_subrev_u32 v18, %d, v16" % (1792 * 896 - 0x100000))
        a("buffer_load_dword v238, v16, %s, 0 offen" % s(rA, 4))
        a("buffer_load_dword v238, v17, %s, 0 offen" % s(rA, 4))
        a("buffer_load_dword v238, v18, %s, 0 offen" % s(rB, 4))
    return capture(f) if WARM else []


def lo_side(K, spec):
    nsteps = 7 if spec else 14
    work = {n: [] for n in range(nsteps)}
    work[0] = K.mm(1) + ["s_nop %d" % (10 if K.n == 1 else 6)]
    epi = qk_epilogue(K.acc)
    if spec:
        for c in range(2):
            for rt in range(2):
                acc, dst = K.acc + 32 * (c + 1) + 16 * rt, 192 + 16 * c + 8 * rt
                epi += ["s_mov_b64 exec, %s" % s(sP, 2)]
                epi += ["v_cvt_pk_bf16_f32 %s, %s, %s" % (v(dst + p), v(acc + 2 * p), v(acc + 2 * p + 1)) for p in range(8)]
                epi += ["s_mov_b64 exec, -1"]
                epi += ["buffer_store_dwordx4 %s, v234, %s, %s offen offset:%d sc1" % (v(dst + 4 * i, 4), s(rWS, 4), s((sSA, sSC)[rt]), 2048 + 1024 * i) for i in range(2)]
            if c == 0:
                epi += ["s_add_u32 %s, %s, 0x40000" % (s(x), s(x)) for x in (sSA, sSC)]
    if "--x-nohpst" in sys.argv:
        epi = [x for x in epi if not x.startswith("buffer_store_dwordx4")]
    ne = opt("ne_s", 1) if spec else opt("ne_r", 2)
    for i, p in enumerate(spread(epi, ne)):
        work[i] += p
    fl = opt("fl_s", 2) if spec else opt("fl_r", 4)
    setup = capture(attn_setup)
    s0, s1 = (fl + 1 if fl < 3 else ne, 4) if spec else (ne, fl)
    for i, p in enumerate(spread(setup, s1 - s0)):
        work[s0 + i] += p
    work[fl] += ["s_waitcnt vmcnt(0)"] + nonce_lines(L("ln")) + ["s_mov_b64 exec, %d" % (7 if spec else 1),
                 "buffer_store_dword %s, %s, %s, 0 offen sc1" % (v(vFT), v(vFA), s(rWS, 4)), "s_mov_b64 exec, -1"]
    work[fl] += capture(lambda: stamp(4))
    work[fl + 1] += warm_lines()
    waits = {}
    last = nsteps - 2
    if not spec:
        work[6] += capture(lambda: (srd(rG, pWG, WG_BYTES), srd(rU, pWU, WG_BYTES)))
        work[6] += ["v_add_u32 %s, 128, %s" % (v(vG), v(vG)), "v_add_u32 %s, 128, %s" % (v(vU), v(vU)),
                    "s_add_u32 s11, %s, 2" % s(sRot), "s_sub_u32 s12, s11, 7",
                    "s_cselect_b32 s11, s11, s12", "s_mul_i32 %s, s11, %d" % (s(sGo), 64 * 3584)]
        for n in range(7, 12):
            work[n] = sum((g for _, g in op_w(2 * n + 4) + op_w(2 * n + 5)), []) + work[n]
        for n in range(9, last + 1):
            waits[n] = 4
    cnt = ["v_mov_b32 v245, %d" % CNT, "ds_write_b32 v245, %s" % v(vZero), "s_waitcnt lgkmcnt(0)"]
    pl = ["buffer_load_dword v244, %s, %s, 0 offen sc1" % (v(vPA), s(rWS, 4))]
    if spec:
        work[last - 1] += pl
        waits[last] = 0
    else:
        work[last - 2] += pl
    for n in range(last + 1):
        if n in waits:
            a("s_waitcnt vmcnt(%d)" % waits[n])
        if n:
            a("s_barrier")
        else:
            stamp(3)
        emit(work[n])
    tag = L("notyet")
    try_start(tag, loads=False)
    fl_ = capture(first_loads)
    k = [i for i, x in enumerate(fl_) if x.startswith("buffer_load")][9] + 1
    emit(fl_[:k])
    a("s_waitcnt vmcnt(10)")
    a("s_barrier")
    emit(fl_[k:])
    emit(cnt)
    stamp(5)
    a("s_barrier")
    if spec:
        a("s_barrier")
    stamp(12)
    a("s_setprio %d" % opt("aprio", 2))
    a("s_branch Lstart")
    a.label(tag)
    a("s_waitcnt vmcnt(0)")
    a("s_barrier")
    emit(cnt)
    a("s_barrier")
    if spec:
        a("s_barrier")
    stamp(12)


lo_side(KR, False)
a("s_branch Lready")
a.label("Lpa_s_entry")
a("s_mov_b32 %s, 0x0fffffff" % s(sP))
a("s_mov_b32 %s, 0x0fffffff" % s(sP + 1))
a("v_and_b32 v28, 31, %s" % v(vLane))
a("v_mul_u32_u24 v27, 37, v28")
a("v_lshrrev_b32 v27, 8, v27")
a("v_mul_u32_u24 v29, 7, v27")
a("v_sub_u32 v29, v28, v29")
a("v_cmp_lt_u32 vcc, 27, v28")
a("v_mov_b32 v24, 7")
a("s_nop 0")
a("v_cndmask_b32 v27, v27, v29, vcc")
a("v_cndmask_b32 v29, v29, v24, vcc")
a("v_lshrrev_b32 v24, 1, v27")
a("v_lshlrev_b32 v24, 4, v24")
a("v_and_b32 v27, 1, v27")
a("v_lshl_add_u32 v24, v27, 2, v24")
a("v_lshrrev_b32 v27, 2, v29")
a("v_lshl_add_u32 v24, v27, 3, v24")
a("v_and_b32 v29, 3, v29")
a("v_add_u32 v24, v24, v29")
a("v_and_b32 v27, 32, %s" % v(vLane))
a("v_add_u32 v24, v24, v27")
a("v_lshlrev_b32 v234, 4, v24")
a("v_cmp_eq_u32 vcc, 31, v28")
a("v_mov_b32 v27, 0x3f803f80")
a("s_lshl_b32 s11, %s, 6" % s(sVa))
a("v_cndmask_b32 v192, %s, v27, vcc" % v(vZero))
a("s_add_u32 s11, s11, %s" % s(sSB))
a("s_lshl_b32 %s, s11, 12" % s(sSA))
a("s_add_u32 %s, %s, 4096" % (s(sSC), s(sSA)))
for i in range(193, 224):
    a("v_mov_b32 %s, v192" % v(i))
for i in range(128, 192):
    a("v_mov_b32 %s, 0" % v(i))
pass_a(KS_, "Lpa_s")
lo_side(KS_, True)

a.label("Lready")
a("s_setprio %d" % opt("aprio", 2))
a("s_mov_b32 %s, %d" % (s(sSpin), SPIN_MAX))
a("s_branch Lpoll_kv")
a.label("Lpoll_kv_again")
a("s_sub_u32 %s, %s, 1" % (s(sSpin), s(sSpin)))
a("s_cbranch_scc1 Lstart")
a("s_sleep %d" % SLEEP)
a.label("Lpoll_kv")
a("buffer_load_dword %s, %s, %s, 0 offen sc1" % (v(244), v(vPA), s(rWS, 4)))
a("s_waitcnt vmcnt(0)")
try_start("Lpoll_kv_again")
stamp(5)
a.label("Lstart")
a("s_waitcnt vmcnt(8)")
stamp(6)

a.label("Lattn")
a(qk(0, 0))
a(qk(0, 1))
a("s_nop 10")
a(".p2align 5")
a.label("Lattn_loop")


def kv_extra(kt, loads=True, wait=8):
    b = (kt + 3) & 3
    ex = [{}, {}, {}, {}]
    if loads:
        ld = lambda part, i: "buffer_load_dwordx4 %s, %s, %s, %s offen offset:%d sc1" % (
            v(KV + 16 * b + 8 * part + 4 * i, 4), v(vKV), s(rWS, 4), s(sKV), 2048 * part + 1024 * i)
        ex[0] = {5: ["s_add_u32 %s, %s, 4096" % (s(sKV), s(sKV))], 9: ["s_and_b32 %s, %s, 0x7fff" % (s(sKV), s(sKV))],
                 13: [ld(0, 0), ld(0, 1), ld(1, 0), ld(1, 1)]}
    if wait is not None:
        ex[2] = {13: ["s_waitcnt vmcnt(%d)" % wait]}
    return ex


for kt in range(4):
    ex = kv_extra(kt)
    if kt == 2:
        ex[3][5] = ["s_cmp_lg_u32 %s, %s" % (s(sIt), s(sRe))]
        ex[3][9] = ["s_cbranch_scc1 Lno_repoll",
                    "buffer_load_dword %s, %s, %s, 0 offen sc1" % (v(244), v(vPA), s(rWS, 4)), "Lno_repoll:"]
    if kt == 0:
        ex[3][5] = ["s_cmp_lg_u32 %s, 1" % s(sIt)]
        ex[3][9] = ["s_cbranch_scc0 Lswitch", "Lswitched:"]
    if kt == 3:
        ex[3][5] = ["s_add_u32 %s, %s, 1" % (s(sIt), s(sIt))]
        ex[3][9] = ["s_cmp_lt_u32 %s, 3" % s(sIt)]
    for u in range(4):
        slot(4 * kt + u, extra=ex[u])
if PROF and LOOPST:
    a("s_memtime %s" % s(sStamp, 2))
    a("s_add_u32 s12, %s, 26" % s(sIt))
    a("s_waitcnt lgkmcnt(0)")
    a("s_mov_b32 m0, s12")
    a("v_writelane_b32 %s, %s, m0" % (v(vProf), s(sStamp)))
    a("s_cmp_lt_u32 %s, 3" % s(sIt))
a("s_cbranch_scc1 Lattn_loop")
pw = lambda u, qd: "ds_write_b128 %s, %s offset:%d" % (v(225 + u), v(O + 16 * u + 4 * qd, 4), 1024 * qd)
for kt in range(4):
    ex = kv_extra(kt, loads=(kt == 0), wait=(8, 4, 0, None)[kt])
    if kt == 3:
        ex[2] = {5: [pw(0, 0)], 9: [pw(0, 1)], 13: [pw(0, 2), pw(0, 3)]}
        ex[3] = {7: [pw(1, 0), pw(1, 1)], 11: [pw(1, 2), pw(1, 3)]}
    for u in range(4):
        slot(4 * kt + u, last=(4 * kt + u == 15), extra=ex[u])
a(pv(15, 0))
a("v_mov_b32 v225, %d" % CNT)
a("v_mov_b32 v226, 1")
a("s_mul_i32 s11, %s, 12288" % s(sW))
a(pv(15, 1))
for qd in range(4):
    a("ds_write_b128 %s, %s offset:%d" % (v(227), v(O + 32 + 4 * qd, 4), 1024 * qd))
stamp(7)
a("v_add_u32 v227, s11, %s" % v(vL16))
a("s_waitcnt lgkmcnt(0)")
a("ds_add_u32 v225, v226")
a("s_mov_b32 %s, %d" % (s(sSpin), SPIN_MAX))
a.label("Lasync")
a("ds_read_b32 v226, v225")
a("s_waitcnt lgkmcnt(0)")
a("v_readfirstlane_b32 s11, v226")
a("s_sub_u32 %s, %s, 1" % (s(sSpin), s(sSpin)))
a("s_cbranch_scc1 Lasync_done")
a("s_cmp_lt_u32 s11, 256")
a("s_cbranch_scc1 Lasync")
a.label("Lasync_done")
OW = O + 48
for u in range(3):
    for qd in range(4):
        a("ds_read_b128 %s, v227 offset:%d" % (v(S_ + 16 * u + 4 * qd, 4), PB + 4096 * u + 1024 * qd))
a("s_lshl_b32 s11, %s, 2" % s(sMA))
a("s_add_u32 s11, s11, %s" % s(sW))
a("s_lshl_b32 s12, s11, 4")
a("s_add_u32 s12, s12, %s" % s(sH))
a("s_lshl_b32 s13, s12, 11")
a("s_add_u32 %s, s13, 0x%x" % (s(sOC), O_OFF))
for u in range(3):
    a("s_waitcnt lgkmcnt(%d)" % (8 - 4 * u))
    for p in range(8):
        a("v_pk_add_f32 %s, %s, %s" % (v(OW + 2 * p, 2), v(OW + 2 * p, 2), v(S_ + 16 * u + 2 * p, 2)))
a("v_pk_mul_f32 v[228:229], %s, 0 op_sel_hi:[1,0]" % v(OW, 2))
a("v_pk_mul_f32 v[232:233], %s, 0 op_sel_hi:[1,0]" % v(OW + 2, 2))
for p in range(2, 8):
    t = 228 if p % 2 == 0 else 232
    a("v_pk_fma_f32 %s, %s, 0, %s op_sel_hi:[1,0,1]" % (v(t, 2), v(OW + 2 * p, 2), v(t, 2)))
a("v_subrev_u32 v226, 0x%x, %s" % (f2u(2.0 ** -40), v(OW + 15)))
a("v_pk_add_f32 v[228:229], v[228:229], v[232:233]")
a("v_cmp_lt_u32 vcc, 0x%x, v226" % (f2u(2.0 ** 40) - f2u(2.0 ** -40)))
a("v_cmp_u_f32 %s, v228, v229" % s(sP, 2))
a("s_and_b64 vcc, vcc, %s" % s(mHI, 2))
a("s_or_b64 vcc, vcc, %s" % s(sP, 2))
if FORCE_FB:
    a("s_mov_b64 vcc, -1")
a("s_cbranch_vccnz Lfallback")
a.label("Lnormalize")
a("v_rcp_f32 v225, %s" % v(OW + 15))
a("v_lshlrev_b32 v226, 16, %s" % v(Q + 24 + 6))
a("v_mul_f32 v226, v225, v226")
a("v_mov_b32 v228, v226")
a("s_nop 1")
a("v_permlane32_swap_b32 v226, v228")
a("v_mov_b32 v232, %s" % s(sNON))
a("v_mov_b32 v233, 0xffff")
for p in range(8):
    a("v_pk_mul_f32 %s, %s, v[228:229] op_sel_hi:[1,0]" % (v(OW + 2 * p, 2), v(OW + 2 * p, 2)))
for p in range(8):
    a("v_cvt_pk_bf16_f32 %s, %s, %s" % (v(S_ + p), v(OW + 2 * p), v(OW + 2 * p + 1)))
a("v_bfi_b32 %s, v233, %s, v232" % (v(S_ + 3), v(S_ + 3)))
a("v_bfi_b32 %s, v233, %s, v232" % (v(S_ + 7), v(S_ + 7)))
a("buffer_store_dwordx4 %s, %s, %s, %s offen sc1" % (v(S_, 4), v(vL16), s(rWS, 4), s(sOC)))
a("buffer_store_dwordx4 %s, %s, %s, %s offen offset:1024 sc1" % (v(S_ + 4, 4), v(vL16), s(rWS, 4), s(sOC)))
stamp(8)
a("s_cmp_eq_u32 %s, 0" % s(sFin))
a("s_cbranch_scc1 Lexit")
a("s_mov_b32 %s, 1" % s(sHalf))
a("s_branch Ltail")

a.label("Lswitch")
a("v_xor_b32 %s, 0x20000, %s" % (v(vKV), v(vKV)))
a("s_mov_b32 %s, %d" % (s(sSpin), SPIN_MAX))
a.label("Lswitch_chk")
a("v_cmp_ne_u32 vcc, %s, v244" % s(sNON))
a("s_nop 0")
a("s_and_b32 s12, vcc_lo, %s" % s(sSec))
a("s_cbranch_scc0 Lswitched")
a("s_sub_u32 %s, %s, 1" % (s(sSpin), s(sSpin)))
a("s_cbranch_scc1 Lswitched")
a("buffer_load_dword %s, %s, %s, 0 offen sc1" % (v(244), v(vPA), s(rWS, 4)))
a("s_waitcnt vmcnt(0)")
a("s_branch Lswitch_chk")

a.label("Lfallback")
a("s_lshl_b32 %s, %s, 18" % (s(sKV), s(sH)))
a("v_mov_b32 v225, 0xff800000")
a("s_mov_b32 %s, 0" % s(sIt))
a.label("Lfb1")
kvload(0, 0, vL16)
a("s_waitcnt vmcnt(0)")
a(qk(3, 0))
a(qk(3, 1))
a("s_nop 11")
for i in range(0, 16, 2):
    a("v_max3_f32 v225, %s, %s, v225" % (v(S_ + 48 + i), v(S_ + 49 + i)))
a("s_add_u32 %s, %s, 4096" % (s(sKV), s(sKV)))
a("s_add_u32 %s, %s, 1" % (s(sIt), s(sIt)))
a("s_cmp_lt_u32 %s, 64" % s(sIt))
a("s_cbranch_scc1 Lfb1")
a("v_mov_b32 v226, v225")
a("s_nop 1")
a("v_permlane32_swap_b32 v225, v226")
a("s_nop 1")
a("v_max_f32 v225, v225, v226")
for i in range(16):
    a("v_mov_b32 %s, 0" % v(OW + i))
a("s_lshl_b32 %s, %s, 18" % (s(sKV), s(sH)))
a("s_mov_b32 %s, 0" % s(sIt))
a.label("Lfb2")
kvload(0, 0, vL16)
kvload(0, 1, vL16)
a("s_waitcnt vmcnt(0)")
a(qk(3, 0))
a(qk(3, 1))
a("s_nop 11")
for i in range(16):
    a("v_sub_f32 %s, %s, v225" % (v(S_ + 48 + i), v(S_ + 48 + i)))
for i in range(16):
    a("v_exp_f32 %s, %s" % (v(S_ + 48 + i), v(S_ + 48 + i)))
a("s_nop 1")
a(pv(3, 0))
a(pv(3, 1))
a("s_add_u32 %s, %s, 4096" % (s(sKV), s(sKV)))
a("s_add_u32 %s, %s, 1" % (s(sIt), s(sIt)))
a("s_cmp_lt_u32 %s, 64" % s(sIt))
a("s_cbranch_scc1 Lfb2")
a("s_nop 11")
a("s_branch Lnormalize")

a.label("Ldown")
poll(vPD, vFT)
stamp(5)
if "--x-dskip" in sys.argv:
    a("s_branch Ldskip")
vmq = []


def hload(i):
    g = []
    for rt in range(2):
        g.append((("h", i), ["buffer_load_dwordx4 %s, %s, %s, %s offen sc1" % (
            v(HB + 8 * (i & 7) + 4 * rt, 4), v((vH0, vH1)[rt]), s(rWS, 4), s(sOA))]))
    g[1][1].extend(["s_add_u32 %s, %s, 1024" % (s(sOA), s(sOA)), "s_cmp_eq_u32 %s, 28672" % s(sOA),
                    "s_cselect_b32 %s, 0, %s" % (s(sOA), s(sOA))])
    return g


def emit_vm(g):
    vmq.append(g[0])
    for x in g[1]:
        a(x)


def vm_wait(tags):
    idx = [k for k, t in enumerate(vmq) if t in tags]
    return None if not idx else len(vmq) - 1 - max(idx)


def wreads(dst, off):
    for ct in range(2):
        for jj in range(2):
            a("ds_read_b64_tr_b16 %s, %s offset:%d" % (v(dst + 4 * ct + 2 * jj, 2), v(vDr + ct), off + 1024 * jj))


a("s_setprio %d" % opt("dprio2", 0))
HDE = min(HD, 7) if DIL else HD
for i in range(HDE):
    for g in hload(i):
        emit_vm(g)
wreads(WF, 0)
for i in range(28):
    n = vm_wait({("h", i), ("w", i + 1)})
    a("s_waitcnt vmcnt(%d) lgkmcnt(0)" % n)
    if i + 1 < 28:
        wreads(WF + 8 * ((i + 1) & 1), ((i + 1) % 13) * 2048)
    vm = []
    if i + HDE < 28:
        vm += hload(i + HDE)
    k = i + WD
    if 13 <= k < 28:
        for e in range(2):
            vm.append((("w", k), dma_lines(vDd, rWD, sOC, sWd, (k % 13) * 2048 + 1024 * e) + wd_adv(e)))
    wo = [n for n in range(8) if max(15 + n, 28 - WD + n // 2 if WD < 13 else 0) == i or (i == 27 and max(15 + n, 28 - WD + n // 2) > 27)]
    for n in wo:
        for e in range(2):
            vm.append((("o", n), dma_lines(vDd, rWO, sOB, sWd, (2 + n) * 2048 + 1024 * e) + ["s_add_u32 %s, %s, 7168" % (s(sOB), s(sOB))]))
    for rt in range(2):
        for ct in range(2):
            if "--x-dnomf" not in sys.argv:
                mfma(DA + 32 * rt + 16 * ct, WF + 8 * (i & 1) + 4 * ct, HB + 8 * (i & 7) + 4 * rt, "0" if i == 0 else None)
            if DIL and vm:
                emit_vm(vm.pop(0))
    for g in vm:
        emit_vm(g)
if "--x-dskip" in sys.argv:
    a.label("Ldskip")
stamp(7)
a("v_add_u32 v240, %s, %s" % (s(sWd), v(vL16)))
a("s_nop 10")
for o in range(4):
    for q in range(2):
        a("ds_write_b128 v240, %s offset:%d" % (v(DA + 32 + 8 * o + 4 * q, 4), (o >> 1) * 20480 + (o & 1) * 2048 + 1024 * q))
a("s_mov_b32 %s, 0" % s(sHalf))
a("s_waitcnt vmcnt(0)")
stamp(8)
a("s_branch Ltail2")

OF, WOF, RR = 64, 128, 96
vWo = 244
a.label("Ltail")
a.label("Ltail2")
a("s_and_b32 s12, %s, 3" % s(sW))
a("s_lshl_b32 s11, %s, 1" % s(sR))
a("s_add_u32 s14, s11, %s" % s(sHalf))
a("s_lshl_b32 s11, s14, 2")
a("s_add_u32 s11, s11, s12")
a("s_lshl_b32 s13, s11, 13")
a("s_add_u32 %s, s13, 0x%x" % (s(sOA), O_OFF))
a("s_add_u32 %s, %s, 4096" % (s(sOB), s(sOA)))
a("s_mul_i32 s13, s12, %d" % DREG)
a("s_add_u32 s13, s13, %d" % (DB + 4096))
a("v_bfe_u32 v240, %s, 2, 2" % v(vLane))
a("v_lshrrev_b32 v241, 5, %s" % v(vLane))
a("v_mad_u32_u24 v240, v241, 7, v240")
a("v_lshl_add_u32 v241, v240, 7, s13")
a("v_bfe_u32 v240, v240, 1, 1")
a("v_lshlrev_b32 v240, 6, v240")
a("v_bfe_u32 v242, %s, 4, 1" % v(vLane))
a("v_add_u32 v242, s12, v242")
a("v_and_b32 v243, 3, %s" % v(vLane))
a("v_lshlrev_b32 v243, 3, v243")
for ct in range(2):
    a("v_add_u32 v248, %d, v242" % (2 * ct))
    a("v_and_b32 v248, 3, v248")
    a("v_lshl_add_u32 v248, v248, 5, v243")
    a("v_xor_b32 v248, v248, v240")
    a("v_add_u32 %s, v248, v241" % v(vWo + ct))
    a("v_xor_b32 v248, 64, v248")
    a("v_add_u32 %s, v248, v241" % v(vWo + 2 + ct))
for k in range(4):
    a("s_sub_u32 s11, s12, %d" % k)
    a("s_and_b32 s11, s11, 3")
    a("s_lshr_b32 s13, s11, 1")
    a("s_mul_i32 s13, s13, 20480")
    a("s_and_b32 s11, s11, 1")
    a("s_lshl_b32 s11, s11, 11")
    a("s_add_u32 s11, s11, s13")
    a("s_add_u32 s11, s11, %d" % (DB + k * DREG))
    a("v_add_u32 %s, s11, %s" % (v(236 + k), v(vL16)))
a("s_waitcnt lgkmcnt(0)")
a("s_barrier")
stamp(30)
for k in range(8):
    for ct in range(2):
        for jj in range(2):
            a("ds_read_b64_tr_b16 %s, %s offset:%d" % (v(WOF + 8 * k + 4 * ct + 2 * jj, 2), v(vWo + 2 * (k & 1) + ct),
                                                     (28 * (k >> 1) + 14 * (k & 1) + 4 * jj) * 128))
    if k in (2, 4, 6):
        a("s_waitcnt lgkmcnt(4)")
srd(rOUT, pOUT, 2048 * 896)
a("v_and_b32 v240, 31, %s" % v(vLane))
a("s_lshl_b32 s14, s14, 5")
a("v_add_u32 v240, s14, v240")
a("v_mul_u32_u24 v240, 896, v240")
a("v_lshrrev_b32 v243, 5, %s" % v(vLane))
a("v_lshlrev_b32 v243, 4, v243")
a("s_lshl_b32 s13, %s, 7" % s(sT))
a("s_lshl_b32 s14, s12, 5")
a("s_add_u32 s13, s13, s14")
a("v_add3_u32 v249, v240, v243, s13")
a("s_mul_i32 s15, %s, 24576" % s(sHalf))
for o in range(1, 4):
    a("s_add_u32 s11, s12, %d" % o)
    a("s_and_b32 s11, s11, 3")
    a("s_mul_i32 s11, s11, 6144")
    a("s_add_u32 s11, s11, s15")
    a("s_add_u32 s11, s11, %d" % (PB + 2048 * (o - 1)))
    a("v_add_u32 %s, s11, %s" % (v(232 + o), v(vL16)))
a("s_mul_i32 s11, s12, 6144")
a("s_add_u32 s11, s11, s15")
a("v_add_u32 v232, s11, %s" % v(vL16))
a("v_and_b32 v240, 3, %s" % v(vLane))
a("v_lshlrev_b32 v240, 11, v240")
a("v_add_u32 %s, %d, v240" % (v(vFA), 2044))
a("s_and_b32 s15, %s, 0xffff0000" % s(sNON))
a("s_cmp_eq_u32 %s, 0" % s(sHalf))
a("s_cbranch_scc1 Lo_wait")
a("s_waitcnt lgkmcnt(0)")
for k in range(4):
    for q in range(2):
        a("ds_read_b128 %s, %s offset:%d" % (v((0 if k == 0 else RR + 8 * k) + 4 * q, 4), v(236 + k), 1024 * q))
for i in range(8, 32):
    a("v_mov_b32 %s, 0" % v(i))
a("s_waitcnt lgkmcnt(0)")
for k in range(1, 4):
    for p in range(4):
        a("v_pk_add_f32 %s, %s, %s" % (v(2 * p, 2), v(2 * p, 2), v(RR + 8 * k + 2 * p, 2)))
a.label("Lo_wait")
a("s_mov_b32 %s, %d" % (s(sSpin), SPIN_MAX))
a.label("Lo_hint")
a("buffer_load_dword %s, %s, %s, %s offen sc1" % (v(vFT), v(vFA), s(rWS, 4), s(sOA)))
a("s_sub_u32 %s, %s, 1" % (s(sSpin), s(sSpin)))
a("s_cbranch_scc1 Lo_go")
a("s_waitcnt vmcnt(0)")
a("v_xor_b32 %s, s15, %s" % (v(vFT), v(vFT)))
a("v_cmp_lt_u32 vcc, 0xffff, %s" % v(vFT))
a("s_nop 1")
a("s_cbranch_vccnz Lo_hint")
stamp(9)
a.label("Lo_load")
for k in range(8):
    a("buffer_load_dwordx4 %s, %s, %s, %s offen offset:%d sc1" % (v(OF + 4 * k, 4), v(vL16), s(rWS, 4), s((sOA, sOB)[k >> 2]), 1024 * (k & 3)))
a("s_sub_u32 %s, %s, 1" % (s(sSpin), s(sSpin)))
a("s_cbranch_scc1 Lo_go")
a("s_waitcnt vmcnt(0)")
for k in range(8):
    a("v_xor_b32 %s, s15, %s" % (v(OF + 4 * k + 3), v(OF + 4 * k + 3)))
a("v_or3_b32 v240, %s, %s, %s" % (v(OF + 3), v(OF + 7), v(OF + 11)))
a("v_or3_b32 v241, %s, %s, %s" % (v(OF + 15), v(OF + 19), v(OF + 23)))
a("v_or3_b32 v240, %s, %s, v240" % (v(OF + 27), v(OF + 31)))
a("v_or_b32 v240, v240, v241")
a("v_cmp_lt_u32 vcc, 0xffff, v240")
a("s_nop 1")
a("s_cbranch_vccnz Lo_load")
a.label("Lo_go")
a("s_waitcnt vmcnt(0) lgkmcnt(0)")
for k in range(8):
    for ct in range(2):
        mfma(16 * ct, WOF + 8 * k + 4 * ct, OF + 4 * k)
stamp(10)
a("s_nop 11")
for o in range(1, 4):
    for q in range(2):
        a("ds_write_b128 %s, %s offset:%d" % (v(232 + o), v(8 * o + 4 * q, 4), 1024 * q))
a("s_waitcnt lgkmcnt(0)")
a("s_barrier")
for u in range(3):
    for q in range(2):
        a("ds_read_b128 %s, v232 offset:%d" % (v(RR + 8 * u + 4 * q, 4), PB + 2048 * u + 1024 * q))
a.label("Lfin_sum")
a("s_waitcnt lgkmcnt(0)")
for u in range(3):
    for p in range(4):
        a("v_pk_add_f32 %s, %s, %s" % (v(2 * p, 2), v(2 * p, 2), v(RR + 8 * u + 2 * p, 2)))
for p in range(4):
    a("v_cvt_pk_bf16_f32 %s, %s, %s" % (v(8 + p), v(2 * p), v(2 * p + 1)))
a("s_nop 1")
a("v_permlane32_swap_b32 v8, v10")
a("v_permlane32_swap_b32 v9, v11")
if LEAK:
    a("s_memrealtime s[100:101]")
    a("s_waitcnt lgkmcnt(0)")
    a("v_sub_u32 v240, s100, v253")
    a("v_cmp_lt_u32 vcc, %d, v240" % LEAK)
    a("v_mov_b32 v241, 0x7fc07fc0")
    srd(rT, pDBG, 256)
    a("buffer_load_dword v242, %s, %s, 0 offen offset:8 sc1" % (v(vZero), s(rT, 4)))
    a("s_waitcnt vmcnt(0)")
    a("v_readfirstlane_b32 s12, v242")
    a("s_nop 1")
    a("s_cmp_eq_u32 s12, 0")
    a("s_cselect_b64 vcc, vcc, 0")
    a("s_nop 1")
    a("v_cndmask_b32 v8, v8, v241, vcc")
a("buffer_store_dwordx4 v[8:11], v249, %s, 0 offen %s" % (s(rOUT, 4), opt("outf", "").replace("+", " ")))
a.label("Lexit")
if PROF:
    stamp(11)
    a("s_memrealtime %s" % s(sStamp, 2))
    a("s_waitcnt lgkmcnt(0)")
    a("v_writelane_b32 %s, %s, 17" % (v(vProf), s(sStamp)))
    a("s_lshl_b32 s11, s2, 3")
    a("s_add_u32 s11, s11, %s" % s(sW))
    a("s_lshl_b32 s11, s11, 8")
    a("s_add_u32 s11, s11, 0x1000000")
    a("v_lshl_add_u32 v240, %s, 2, s11" % v(vLane))
    a("s_mov_b64 exec, -1")
    a("buffer_store_dword %s, v240, %s, 0 offen" % (v(vProf), s(rWS, 4)))
if DBGT:
    a("s_waitcnt vmcnt(0)")
    a("s_memrealtime s[100:101]")
    a("s_memtime s[98:99]")
    srd(rT, pDBG, 256)
    a("s_waitcnt lgkmcnt(0)")
    a("s_and_b32 s11, s2, 31")
    a("s_add_u32 s11, s11, %s" % s(sW))
    a("s_cmp_lg_u32 s11, 0")
    a("s_cbranch_scc1 Lend")
    a("s_cmp_ge_u32 s2, 160")
    a("s_cbranch_scc1 Lend")
    a("s_lshr_b32 s11, s2, 5")
    a("s_mul_i32 s11, s11, 12")
    a("v_mov_b32 v240, v253")
    a("v_sub_u32 v241, s100, v253")
    a("v_sub_u32 v242, s98, v254")
    a("s_mov_b64 exec, 1")
    a("buffer_store_dwordx3 v[240:242], %s, %s, s11 offen offset:4" % (v(vZero), s(rT, 4)))
a.label("Lend")
a("s_endpgm")

if opt("kvf", "sc1") != "sc1":
    a.L = [(l[:-4] + " " + opt("kvf", "sc1").replace("none", "")) if l.startswith("buffer_load_dwordx4") and l.endswith(" sc1") and "v231" in l else l for l in a.L]
if STF != "sc1":
    a.L = [l for l in a.L]
    a.L = [(l[:-4] + (" " + STF.replace("+", " ") if STF != "none" else "")) if l.startswith("buffer_store_dwordx4") and l.endswith(" sc1") else l for l in a.L]
bad = check(a.L)
if bad:
    print("%d hazards" % len(bad))

head = open("cdna_kernels/%s.s.ref" % NAME).read().split("; Override launch")[0]
txt = head + "; @launch grid=(256,1,1) block=(512,1,1) lds=%d\n" % LDS_BYTES
txt += '.amdgcn_target "amdgcn-amd-amdhsa--gfx950"\n.text\n.globl %s_kernel\n.p2align 8\n.type %s_kernel,@function\n' % (NAME, NAME)
txt += a.text()
txt += """.section .rodata,"a"
.p2align 6
.amdhsa_kernel %s_kernel
  .amdhsa_next_free_vgpr 256
  .amdhsa_next_free_sgpr 102
  .amdhsa_accum_offset 256
  .amdhsa_group_segment_fixed_size 0
  .amdhsa_kernarg_size 88
  .amdhsa_user_sgpr_count 2
  .amdhsa_user_sgpr_kernarg_segment_ptr 1
  .amdhsa_system_sgpr_workgroup_id_x 1
.end_amdhsa_kernel
""" % NAME
open(OUT, "w").write(txt)
print("wrote", OUT, len(a.L), "lines")
```

```python
import sys, struct, math
from asmlib import Asm, v, s, check

NAME = "gated_mix__mha_block__glu_gated_geglu__prompt"
PROF = "--prof" in sys.argv
FORCE_FB = "--force-fallback" in sys.argv
def opt(name, default):
    for x in sys.argv:
        if x.startswith("--%s=" % name):
            return type(default)(x.split("=")[1])
    return default
SLEEP = opt("sleep", 1)
STF = opt("stf", "sc1")
PFMODE = opt("pf", 1)
ROT = opt("rot", 7)
RN = opt("rn", 7)
KPRIO = opt("kprio", 0)
NC = opt("nc", 2)
WARM = opt("warm", 0)
GOPOS = opt("go", 1)
DIL = opt("dil", 1)
EARLY = opt("early", 1)
TOUCH = opt("touch", 0)
DYN = opt("dyn", 0)
SWIN = opt("swin", 8)
NP = opt("np", 13)
HD = opt("hd", 8)
WD = opt("wd", 13)
DPOS_LO = [int(x) for x in opt("dlo", "1,3,4,6").split(",")]
DPOS_HI = [int(x) for x in opt("dhi", "2,4,6").split(",")]
CODEPF = opt("codepf", 1)
DBGT = "--dbgt" in sys.argv
LEAK = opt("leak", 0)
OUT = [a for a in sys.argv[1:] if not a.startswith("--")]
OUT = OUT[0] if OUT else "cdna_kernels/%s.s" % NAME


def f2u(x):
    return struct.unpack("<I", struct.pack("<f", x))[0]


KV_OFF, Q_OFF, H_OFF, O_OFF = 0, 0x400000, 0x600000, 0xD00000
FQ_OFF, FH_OFF, FO_OFF, E_OFF, PROF_OFF = 0xF00000, 0xF40000, 0xF80000, 0xFA0000, 0xFC0000
WS_BYTES = 0x1100000 if PROF else 0x1000000
R0, TB, CNT = 114688, 159744, 160768
EXG_OFF = 0xF80000
PB, DB, DREG = 0, 49152, 26624
LDS_BYTES = 163840
SPIN_MAX = 1 << 18

sB, sW, sM, sJ, sH, sMA, sR, sT, sNON = 2, 3, 4, 5, 6, 7, 8, 9, 10
t0, t1, t2, t3, t4 = 11, 12, 13, 14, 15
pX, pQKV, pWO, pWG, pWU, pWD, pGW, pOUT, pDBG, pWS = 16, 18, 20, 24, 26, 28, 30, 32, 34, 36
t5, t6 = 38, 39
rA, rB, rC, rWS, rWD, rWO, rOUT, rT = 40, 44, 48, 52, 56, 60, 64, 68
sIt, sOA, sOB, sOC, sSA, sSB, sSC = 72, 73, 74, 75, 76, 77, 78
sWr, sWd, sXs, sXp, sXo, sTr, sX0 = 79, 80, 81, 82, 83, 84, 85
sHalf, sCg, sFin, sSpin = 86, 87, 88, 89
mHI, mT, kG, kS = 90, 92, 94, 96
sP = 98
sStamp = 100
sTj, sWB = 97, 89
vL16, vLane, vZero = 250, 251, 252
vProf = 230

a = Asm()
nstamp = [0]


STAMPS = [int(x) for x in opt("stamps", "3,12,6,7,8,30,9,10,4,5").split(",")] + [14, 11]
LOOPST = "--loopst" in sys.argv


def stamp(k):
    if not PROF or (k not in STAMPS and not LOOPST):
        return
    a("s_memtime %s" % s(sStamp, 2))
    a("s_waitcnt lgkmcnt(0)")
    a("v_writelane_b32 %s, %s, %d" % (v(vProf), s(sStamp), k))


def srd(r, p, nbytes):
    a("s_mov_b32 %s, %s" % (s(r), s(p)))
    a("s_mov_b32 %s, %s" % (s(r + 1), s(p + 1)))
    a("s_mov_b32 %s, 0x%x" % (s(r + 2), nbytes))
    a("s_mov_b32 %s, 0x20000" % s(r + 3))


def mfma(d, A, B, C=None):
    c = v(d, 16) if C is None else C
    a("v_mfma_f32_32x32x16_bf16 %s, %s, %s, %s" % (v(d, 16), v(A, 4), v(B, 4), c))


def dma(vo, r, so, m0src, m0add=0):
    if m0add:
        a("s_add_u32 m0, %s, %d" % (s(m0src), m0add))
    else:
        a("s_mov_b32 m0, %s" % s(m0src))
    a("s_nop 0")
    a("buffer_load_dwordx4 %s, %s, %s offen lds" % (v(vo), s(r, 4), s(so)))


uid = [0]


def L(p):
    uid[0] += 1
    return "L%s_%d" % (p, uid[0])


def poll(vaddr, vtmp):
    lp, done = L("poll"), L("pdone")
    a("s_mov_b32 %s, %d" % (s(sSpin), SPIN_MAX))
    a.label(lp)
    a("buffer_load_dword %s, %s, %s, 0 offen sc1" % (v(vtmp), v(vaddr), s(rWS, 4)))
    a("s_waitcnt vmcnt(0)")
    a("v_cmp_ne_u32 vcc, %s, %s" % (s(sNON), v(vtmp)))
    a("s_nop 1")
    a("s_cbranch_vccz %s" % done)
    a("s_sub_u32 %s, %s, 1" % (s(sSpin), s(sSpin)))
    a("s_cbranch_scc1 %s" % done)
    a("s_sleep %d" % SLEEP)
    a("s_branch %s" % lp)
    a.label(done)


def get_nonce(vn, vtmp):
    lp, done = L("non"), L("ndone")
    a("s_mov_b32 %s, %d" % (s(sSpin), SPIN_MAX))
    a.label(lp)
    a("v_readfirstlane_b32 %s, %s" % (s(sNON), v(vn)))
    a("s_nop 1")
    a("s_cmp_lg_u32 %s, 0" % s(sNON))
    a("s_cbranch_scc1 %s" % done)
    a("s_sub_u32 %s, %s, 1" % (s(sSpin), s(sSpin)))
    a("s_cbranch_scc1 %s" % done)
    a("buffer_load_dword %s, %s, %s, 0 offen sc1" % (v(vn), v(vZero), s(rT, 4)))
    a("s_waitcnt vmcnt(0)")
    a("s_branch %s" % lp)
    a.label(done)


def flag_store(vaddr, vtmp, nlanes=1):
    a("v_mov_b32 %s, %s" % (v(vtmp), s(sNON)))
    a("s_mov_b64 exec, %d" % ((1 << nlanes) - 1))
    a("buffer_store_dword %s, %s, %s, 0 offen sc1" % (v(vtmp), v(vaddr), s(rWS, 4)))
    a("s_mov_b64 exec, -1")


a.label(NAME + "_kernel")
a("s_cmp_ge_u32 s2, 256")
a("s_cbranch_scc1 Lend")
if "--badmap" in sys.argv:
    a("s_lshr_b32 s11, s2, 5")
    a("s_and_b32 s2, s2, 31")
    a("s_lshl_b32 s2, s2, 3")
    a("s_or_b32 s2, s2, s11")
a("s_load_dwordx16 s[16:31], s[0:1], 0")
a("s_load_dwordx4 s[32:35], s[0:1], 64")
a("s_load_dwordx2 s[36:37], s[0:1], 80")
if PROF:
    a("v_mov_b32 %s, 0" % v(vProf))
    a("s_memrealtime %s" % s(sStamp, 2))
    a("s_waitcnt lgkmcnt(0)")
    a("v_writelane_b32 %s, %s, 16" % (v(vProf), s(sStamp)))
    stamp(14)
if DBGT or LEAK:
    a("s_memrealtime s[100:101]")
    a("s_memtime s[98:99]")
    a("s_waitcnt lgkmcnt(0)")
    a("v_mov_b32 v253, s100")
    a("v_mov_b32 v254, s98")
a("v_lshrrev_b32 v1, 6, v0")
a("v_and_b32 %s, 63, v0" % v(vLane))
a("v_readfirstlane_b32 %s, v1" % s(sW))
a("v_lshlrev_b32 %s, 4, %s" % (v(vL16), v(vLane)))
a("v_mov_b32 %s, 0" % v(vZero))
sCol, sSpec = 5, 39
sRot, sSeq = 82, 92
a("""
s_and_b32 s11, s2, 7
s_lshr_b32 s12, s2, 3
s_and_b32 s13, s11, 1
s_lshl_b32 s13, s13, 3
s_and_b32 s14, s12, 7
s_add_u32 s4, s13, s14
s_lshr_b32 s13, s11, 1
s_lshr_b32 s38, s12, 3
s_mul_i32 s15, s13, 3
s_add_u32 s15, s15, s38
s_add_u32 s13, s13, 12
s_cmp_eq_u32 s38, 3
s_cselect_b32 s5, s13, s15
s_cselect_b32 s39, 1, 0
s_lshl_b32 s38, s38, 1
s_add_u32 s38, s38, s14
s_sub_u32 s13, s38, 7
s_cselect_b32 s82, s38, s13
""")
if not ROT & 1:
    a("s_mov_b32 %s, 0" % s(sRot))
a("s_and_b32 %s, %s, 1" % (s(sHalf), s(sW)))
a("s_bfe_u32 %s, %s, 0x10001" % (s(sCg), s(sW)))
a("s_and_b32 s12, %s, 3" % s(sW))
a("s_lshl_b32 s15, s12, 10")
a("s_lshl_b32 s13, %s, 1" % s(sCol))
a("s_add_u32 s38, %s, 12" % s(sCol))
a("s_cmp_eq_u32 %s, 1" % s(sSpec))
sUnit = 85
a("s_cselect_b32 %s, s38, s13" % s(sUnit))
a("""
v_lshrrev_b32 v16, 3, v251
v_and_b32 v17, 7, v251
v_bfe_u32 v25, v16, 1, 1
v_lshlrev_b32 v25, 2, v25
v_xor_b32 v25, v25, v17
v_lshlrev_b32 v25, 4, v25
""")
a("s_lshl_b32 s13, s12, 3")
a("v_add_u32 v26, s13, v16")
vG, vU = 236, 237
a("v_mul_u32_u24 v27, 3584, v26")
a("s_lshl_b32 s13, %s, 7" % s(sUnit))
a("v_add3_u32 %s, v27, v25, s13" % v(vG))
a("v_xor_b32 %s, 32, %s" % (v(vU), v(vG)))
a("s_cmp_lt_u32 %s, 4" % s(sW))
a("s_cbranch_scc1 Lsetup_lo")

WG_BYTES, QKV_BYTES, X_BYTES = 448 * 3584, 448 * 2688, 2048 * 896
rX, rQ, rG, rU = rA, rB, rC, rWO
vTb = 10
vX0, vX1, vH = 11, 12, 13
vNon, vFA, vFT = 240, 241, 242
sGo, sGd = sOC, sWd


def dma_lines(vo, r, so, m0src, m0add):
    return ["s_add_u32 m0, %s, %d" % (s(m0src), m0add), "s_nop 0",
            "buffer_load_dwordx4 %s, %s, %s offen lds" % (v(vo), s(r, 4), s(so))]


def wrap(x, step, total):
    return ["s_add_u32 %s, %s, %d" % (s(x), s(x), step), "s_cmp_eq_u32 %s, %d" % (s(x), total),
            "s_cselect_b32 %s, 0, %s" % (s(x), s(x))]


def emit(lines):
    for x in lines:
        a(x)


def spread(lines, steps):
    out, n = [], -(-len(lines) // steps)
    while lines:
        k = min(n, len(lines))
        while k < len(lines) and (lines[k].startswith("s_cselect") or lines[k].startswith("s_cbranch") or lines[k].endswith(":")
                                  or lines[k - 1].startswith("s_mov_b64 exec") and not lines[k - 1].endswith("-1")):
            k += 1
        out.append(lines[:k])
        lines = lines[k:]
    return out


NOPK = opt("nopk", 7)


def unpack(lines):
    import re
    out = []
    for l in lines:
        m = re.match(r"v_pk_(add|mul|fma)_f32 (.*)", l)
        if not m:
            out.append(l)
            continue
        body = m.group(2)
        mods = {k: [int(x) for x in val.split(",")] for k, val in re.findall(r"(op_sel(?:_hi)?):\[([0-9,]+)\]", body)}
        ops = [o.strip() for o in re.sub(r" op_sel.*", "", body).split(", ")]
        n = len(ops) - 1
        sel = (mods.get("op_sel", [0] * n), mods.get("op_sel_hi", [1] * n))
        def half(o, k):
            mm_ = re.match(r"([vs])\[(\d+):(\d+)\]", o)
            return o if not mm_ else "%s%d" % (mm_.group(1), int(mm_.group(2)) + k)
        for h in range(2):
            src = [half(o, sel[h][i]) for i, o in enumerate(ops[1:])]
            if m.group(1) != "fma" and not src[1].startswith("v"):
                src = src[::-1]
            out.append("v_%s_f32 %s, %s" % (m.group(1), half(ops[0], h), ", ".join(src)))
    return out


def capture(fn):
    global a
    keep, a = a, Asm()
    fn()
    out, a = a.L, keep
    return out


def late_ids():
    a("""
s_and_b32 s11, s2, 7
s_lshr_b32 s12, s2, 3
s_lshl_b32 s13, s11, 1
s_lshr_b32 s38, s12, 4
s_add_u32 s6, s13, s38
s_and_b32 s7, s12, 15
s_mul_i32 s13, s12, 37
s_lshr_b32 s13, s13, 8
s_mul_i32 s38, s13, 7
s_sub_u32 s9, s12, s38
s_lshl_b32 s38, s11, 2
s_add_u32 s8, s38, s13
s_cmp_lt_u32 s12, 28
""")
    a("s_cselect_b32 %s, 1, 0" % s(sFin))


def frag_setup(vXb):
    a("s_mov_b32 %s, 0xffff0000" % s(sP))
    a("s_mov_b32 %s, 0xffff0000" % s(sP + 1))
    a("""
v_bfe_u32 v18, v251, 2, 2
v_and_b32 v19, 3, v251
v_lshlrev_b32 v19, 3, v19
v_lshrrev_b32 v20, 5, v251
v_and_b32 v21, 31, v251
v_lshl_add_u32 v22, v20, 3, v18
v_lshlrev_b32 v22, 7, v22
v_lshrrev_b32 v23, 1, v18
v_lshlrev_b32 v23, 6, v23
v_bfe_u32 v24, v21, 1, 3
v_xor_b32 v24, v24, v20
v_lshlrev_b32 v24, 4, v24
""")
    a("s_lshl_b32 s11, %s, 13" % s(sHalf))
    a("v_lshl_add_u32 %s, v21, 7, v24" % v(vXb))
    a("v_add_u32 %s, s11, %s" % (v(vXb), v(vXb)))
    a("s_lshl_b32 %s, %s, 14" % (s(sXs), s(sRot)))


def tile_base(vd):
    a("v_mov_b32 v27, s11")
    a("v_mov_b32 v28, s12")
    a("v_cndmask_b32 v27, v27, v28, %s" % s(sP, 2))
    a("v_add_u32 v27, v27, v19")
    a("v_xor_b32 v27, v27, v23")
    a("v_add_u32 %s, v27, v22" % v(vd))


class Kind:
    def __init__(self, acc, sets, vor, regs):
        self.acc, self.sets, self.vor = acc, sets, vor
        self.n = len(vor)
        self.wb, self.wa, self.xb, self.xa = regs

    def fr(self, st, ks):
        b = self.sets[st] + ks * (8 + 4 * self.n)
        return b, b + 8

    def reads(self, st):
        r = []
        for ks in range(2):
            X, W = self.fr(st, ks)
            rx = lambda rt: "ds_read_b128 %s, %s offset:%d" % (v(X + 4 * rt, 4), v(self.xa + ks), 4096 * rt)
            rw = lambda c, jj: "ds_read_b64_tr_b16 %s, %s offset:%d" % (v(W + 4 * c + 2 * jj, 2), v(self.wa + c),
                                                                      (2048 * ks + 512 * jj) * (2 if self.vor[c] else 1))
            r += [rx(0), rx(1)]
            for c in range(self.n):
                r += [rw(c, 0), rw(c, 1)]
        return r

    def mm(self, st, first=False, acc=None):
        acc = self.acc if acc is None else acc
        out = []
        for ks in range(2):
            X0, W0 = self.fr(st, ks)
            for c, vo in enumerate(self.vor):
                for rt in range(2):
                    d = acc + 32 * c + 16 * rt
                    W, X = W0 + 4 * c, X0 + 4 * rt
                    A, B = (X, W) if vo else (W, X)
                    out.append("v_mfma_f32_32x32x16_bf16 %s, %s, %s, %s" % (v(d, 16), v(A, 4), v(B, 4), "0" if first and ks == 0 else v(d, 16)))
        return out

    def x_addr(self, par):
        return ["s_or_b32 s11, %s, %d" % (s(sXs), 64 * par), "v_xor_b32 %s, s11, %s" % (v(self.xa), v(self.xb)),
                "v_xor_b32 %s, 32, %s" % (v(self.xa + 1), v(self.xa))]


def x_next():
    return wrap(sXs, 16384, 7 * 16384)


def step(ms, reads, extra, per=3, need=None):
    issued = 0
    for i, m in enumerate(ms):
        if need and i in need:
            a("s_waitcnt lgkmcnt(%d)" % (len(reads) - need[i] + issued))
        a(m)
        emit(reads[issued:issued + per])
        issued = min(len(reads), issued + per)
        emit(extra.get(i, []))
    assert issued == len(reads)


a("s_lshl_b32 s11, %s, 7" % s(sM))
a("s_lshl_b32 s13, s12, 5")
a("s_add_u32 s11, s11, s13")
a("v_add_u32 v27, s11, v16")
a("v_mul_u32_u24 v27, 896, v27")
a("v_lshrrev_b32 v28, 1, v16")
a("v_xor_b32 v28, v28, v17")
a("v_lshl_add_u32 %s, v28, 4, v27" % v(vX0))
a("v_xor_b32 v28, 4, v28")
a("v_lshl_add_u32 %s, v28, 4, v27" % v(vX1))
a("v_add_u32 %s, %d, %s" % (v(vX1), 8 * 896, v(vX1)))
a("v_mul_u32_u24 v28, 2688, v26")
a("s_mul_i32 s13, %s, 112" % s(sCol))
a("v_add3_u32 %s, v28, v25, s13" % v(vH))
a("s_mul_i32 s13, %s, 224" % s(sCol))
a("s_sub_u32 s13, s13, %d" % (12 * 224 - 1792))
a("s_cmp_eq_u32 %s, 15" % s(sCol))
a("s_cselect_b32 s13, 2432, s13")
a("v_lshrrev_b32 v27, 4, %s" % v(vLane))
a("v_lshlrev_b32 v28, 2, v27")
a("v_xor_b32 v28, v28, %s" % v(vLane))
a("v_and_b32 v28, 15, v28")
a("v_lshlrev_b32 v28, 4, v28")
a("s_lshl_b32 s11, s12, 3")
a("v_add_u32 v27, s11, v27")
a("v_mul_u32_u24 v27, 2688, v27")
a("v_add3_u32 %s, v27, v28, s13" % v(vH + 1))
a("v_add_u32 %s, %d, %s" % (v(vH + 2), 4 * 2688, v(vH + 1)))
a("s_lshl_b32 %s, s12, 11" % s(sSA))
a("s_lshl_b32 s14, s12, 12")
a("s_lshl_b32 %s, %s, 7" % (s(sXo), s(sRot)))
a("s_mul_i32 %s, %s, %d" % (s(sOB), s(sRot), 64 * 2688))
a("s_mul_i32 %s, %s, %d" % (s(sGo), s(sRot), 64 * 3584))
a("v_mov_b32 v32, %d" % E_OFF)
a("s_waitcnt lgkmcnt(0)")
stamp(15)
srd(rQ, pQKV, QKV_BYTES)
srd(rX, pX, X_BYTES)
srd(rWS, pWS, WS_BYTES)
stamp(0)


def op_x(n):
    g = ["s_lshl_b32 s12, %s, 7" % s(sXo), "s_add_u32 s12, s12, s14", "s_add_u32 s13, %s, 14336" % s(sXo)]
    out = [g + dma_lines(vX0, rX, sXo, 12, 0), dma_lines(vX1, rX, sXo, 12, 1024),
           dma_lines(vX0, rX, 13, 12, 2048), dma_lines(vX1, rX, 13, 12, 3072) + wrap(sXo, 128, 896)]
    return [(("x", n), o) for o in out]


HB_REG = [8, 9, 10, 0, 1, 2, 3, 4, 5, 6, 7, 8, 9, 10]
HB_SPE = [4 * ((n + 1) % 3) for n in range(14)]


def op_h(n, spec):
    blk = (HB_SPE if spec else HB_REG)[n]
    k = 3 if spec else 1
    out = [dma_lines(vH, rQ, sOB, 15, R0 + 4096 * blk)]
    out += [dma_lines(vH + i, rQ, sOB, sSA, R0 + 4096 * (blk + 1) + 1024 * (i - 1)) for i in range(1, k)]
    out[-1] = out[-1] + (wrap(sOB, 32 * 2688, QKV_BYTES) if n & 1 else ["s_add_u32 %s, %s, %d" % (s(sOB), s(sOB), 32 * 2688)])
    return [(("h", n), o) for o in out]


def op_w(n, base=15, off=None):
    off = R0 + 8192 * (n % 6) if off is None else off
    return [(("w", n), dma_lines(vG, rG, sGo, base, off)),
            (("w", n), dma_lines(vU, rU, sGo, base, off + 4096) + wrap(sGo, 32 * 3584, WG_BYTES))]


def hi_side_setup():
    srd(rG, pWG, WG_BYTES)
    srd(rU, pWU, WG_BYTES)
    srd(rT, pDBG, 256)


def nonce_part(k):
    nn = L("nonce")
    a("s_lshl_b32 s38, s2, 3")
    a("s_add_u32 s38, s38, %s" % s(sW))
    a("s_cmp_lg_u32 s38, 7")
    a("s_cbranch_scc1 %s" % nn)
    if k == 0:
        a("buffer_load_dword v33, v32, %s, 0 offen sc1" % s(rWS, 4))
    else:
        a("v_add_u32 v33, 0x10000, v33")
        a("v_or_b32 v33, 1, v33")
        a("s_mov_b64 exec, 1")
        a("buffer_store_dword v33, v32, %s, 0 offen sc1" % s(rWS, 4))
        a("buffer_store_dword v33, %s, %s, 0 offen sc1" % (v(vZero), s(rT, 4)))
        a("s_mov_b64 exec, -1")
    a.label(nn)


def op_touch():
    g = ["s_bitcmp1_b32 %s, 0" % s(sW),
         "s_cselect_b32 %s, %s, %s" % (s(rOUT), s(pWU), s(pWG)), "s_cselect_b32 %s, %s, %s" % (s(rOUT + 1), s(pWU + 1), s(pWG + 1)),
         "s_mov_b32 %s, %d" % (s(rOUT + 2), WG_BYTES), "s_mov_b32 %s, 0x20000" % s(rOUT + 3),
         "s_bfe_u32 s12, s2, 0x30003", "v_lshl_add_u32 v27, %s, 3, s12" % v(vLane), "v_mul_u32_u24 v27, 3584, v27",
         "s_andn2_b32 s12, %s, %s" % (s(sCg), s(sSpec)), "s_add_u32 s12, s12, %s" % s(sUnit), "s_lshl_b32 s12, s12, 7",
         "buffer_load_dword v238, v27, %s, s12 offen" % s(rOUT, 4)]
    return [(("t", 0), g)]


def op_warm():
    ld = lambda r, so: "buffer_load_dword v238, v239, %s, %s offen" % (s(r, 4), so)
    g0 = ["s_mov_b32 %s, %s" % (s(rWD), s(pWD)), "s_mov_b32 %s, %s" % (s(rWD + 1), s(pWD + 1)),
          "s_mov_b32 %s, %d" % (s(rWD + 2), 1792 * 896), "s_mov_b32 %s, 0x20000" % s(rWD + 3),
          "s_lshr_b32 s38, s2, 3", "s_lshl_b32 s38, s38, 15", "s_lshl_b32 %s, s15, 3" % s(sSC), "s_add_u32 s38, s38, %s" % s(sSC),
          "v_lshl_add_u32 v239, %s, 7, s38" % v(vLane), ld(rWD, "0")]
    g1 = ["s_mov_b32 s38, %d" % (6144 * 128), ld(rWD, "s38")]
    g2 = ["s_mov_b32 s38, %d" % (2 * 6144 * 128), ld(rWD, "s38")]
    g3 = ["s_mov_b32 %s, %s" % (s(rOUT), s(pWO)), "s_mov_b32 %s, %s" % (s(rOUT + 1), s(pWO + 1)),
          "s_mov_b32 %s, %d" % (s(rOUT + 2), 448 * 896), "s_mov_b32 %s, 0x20000" % s(rOUT + 3),
          "v_subrev_u32 v239, %d, v239" % (256 * 128), ld(rOUT, "0")]
    return [(("t", 1), g) for g in (g0, g1, g2, g3)]


def op_mall():
    g = ["s_lshl_b32 s38, s2, 12", "s_add_u32 s38, s38, s15", "s_lshr_b32 s38, s38, 10", "s_mul_i32 s38, s38, %d" % (21 * 128),
         "s_sub_u32 %s, s38, %d" % (s(sSC), 1792 * 896),
         "s_cselect_b32 s38, s38, %s" % s(sSC),
         "s_cselect_b32 %s, %s, %s" % (s(rOUT), s(pWD), s(pWO)), "s_cselect_b32 %s, %s, %s" % (s(rOUT + 1), s(pWD + 1), s(pWO + 1)),
         "s_mov_b32 %s, %d" % (s(sSC), 448 * 896), "s_cselect_b32 %s, %d, %s" % (s(rOUT + 2), 1792 * 896, s(sSC)),
         "s_mov_b32 %s, 0x20000" % s(rOUT + 3),
         "v_min_u32 v239, 20, %s" % v(vLane), "v_lshlrev_b32 v239, 7, v239",
         "buffer_load_dword v238, v239, %s, s38 offen" % s(rOUT, 4)]
    return [(("t", 2), g)]


def op_vunit():
    g = ["s_lshr_b32 s38, s2, 3", "s_lshl_b32 s38, s38, 1", "s_add_u32 s38, s38, %s" % s(sCg), "s_mul_i32 s38, s38, 10",
         "v_min_u32 v239, 9, %s" % v(vLane), "v_add_u32 v239, s38, v239", "v_mul_u32_u24 v239, 3584, v239",
         "s_bfe_u32 s38, s2, 0x20001", "s_lshl_b32 s38, s38, 7", "s_add_u32 s38, s38, 3072",
         "s_bitcmp1_b32 %s, 0" % s(sW),
         "s_cselect_b32 %s, %s, %s" % (s(rOUT), s(pWU), s(pWG)), "s_cselect_b32 %s, %s, %s" % (s(rOUT + 1), s(pWU + 1), s(pWG + 1)),
         "s_mov_b32 %s, %d" % (s(rOUT + 2), WG_BYTES), "s_mov_b32 %s, 0x20000" % s(rOUT + 3),
         "buffer_load_dword v238, v239, %s, s38 offen" % s(rOUT, 4)]
    return [(("t", 3), g)]


def op_unit2():
    g = ["s_mul_i32 s38, %s, 224" % s(sCg), "s_bfe_u32 %s, s2, 0x30003" % s(sSC), "s_add_u32 s38, s38, %s" % s(sSC),
         "v_min_u32 v239, 27, %s" % v(vLane), "v_lshl_add_u32 v239, v239, 3, s38", "v_mul_u32_u24 v239, 3584, v239",
         "s_add_u32 s38, %s, 1" % s(sUnit), "s_lshl_b32 s38, s38, 7",
         "s_bitcmp1_b32 %s, 0" % s(sW),
         "s_cselect_b32 %s, %s, %s" % (s(rOUT), s(pWU), s(pWG)), "s_cselect_b32 %s, %s, %s" % (s(rOUT + 1), s(pWU + 1), s(pWG + 1)),
         "s_mov_b32 %s, %d" % (s(rOUT + 2), WG_BYTES), "s_mov_b32 %s, 0x20000" % s(rOUT + 3),
         "buffer_load_dword v238, v239, %s, s38 offen" % s(rOUT, 4)]
    return [(("t", 4), g)]


KH = Kind(64, (0, 32), (False, False), (221, 223, 232, 233))
KH1 = Kind(64, (0, 32), (False, False), (221, 244, 232, 246))
KHP = (KH, KH1)
ACCB = 128


def hi_valu_setup():
    L_ = Asm()
    global a
    keep, a = a, L_
    late_ids()
    frag_setup(KH.xb)
    for c in range(2):
        a("s_lshl_b32 s11, %s, 6" % s(sCg))
        a("s_add_u32 s11, s11, %d" % (32 * c))
        a("s_xor_b32 s12, s11, %d" % (4096 + 32))
        tile_base(KH.wb + c)
    K1 = -2.0 * math.sqrt(2.0 / math.pi) * math.log2(math.e)
    a("s_mov_b32 %s, 0x%x" % (s(kG), f2u(K1 * 0.044715)))
    a("s_mov_b32 %s, 0x%x" % (s(kG + 1), f2u(K1)))
    a("v_mov_b32 v235, %s" % s(kG + 1))
    for i in list(range(32, 128)):
        a("v_mov_b32 %s, 0" % v(i))
    a("s_mov_b32 %s, %d" % (s(sWr), R0))
    a("s_add_u32 %s, s15, %d" % (s(sGd), R0 + 4 * 8192))
    a("s_mov_b32 %s, 0" % s(sIt))
    a("s_lshl_b32 s11, s2, 1")
    a("s_add_u32 s11, s11, %s" % s(sHalf))
    a("s_lshl_b32 s11, s11, 8")
    a("s_add_u32 s11, s11, 0x%x" % EXG_OFF)
    a("v_lshl_add_u32 v220, v21, 2, s11")
    for c in range(2):
        a("v_add_u32 %s, %s, %s" % (v(KH.wa + c), s(sWr), v(KH.wb + c)))
    emit(KH.x_addr(0))
    a = keep
    return L_.L


TCH = opt("tch", 0)


def loader(spec):
    q = []
    if not spec:
        order = []
        for n in range(7):
            if 2 * n <= 10:
                order += op_h(2 * n, False)
            if 2 * n + 1 <= 10:
                order += op_h(2 * n + 1, False)
            order += op_x(n)
        first = opt("first", 18)
        nbar = 7
        needs = lambda n: {("h", 2 * n), ("h", 2 * n + 1), ("x", n)}
        late = {1: op_h(11, False) + op_h(12, False), 2: op_h(13, False), 4: op_w(0) + op_w(1), 6: op_w(2) + op_w(3)}
        if opt("mall", 4):
            late[opt("mall", 4)] = late.get(opt("mall", 4), []) + op_mall()
        if opt("vun", 1):
            late[4] = late[4] + op_vunit()
        if opt("un2", 0):
            late[opt("un2", 0)] = late.get(opt("un2", 0), []) + op_unit2()
        per = opt("per", 6)
    else:
        order = op_h(0, True) + op_x(0) + op_h(1, True) + op_x(1) + op_h(2, True)
        for n in range(2, 7):
            order += op_x(n)
        first = opt("first_s", 17)
        nbar = 14
        needs = lambda n: {("h", n), ("x", n >> 1)}
        late = {n + 1: op_h(n + 3, True) for n in range(11)}
        late[12] = op_w(0) + op_w(1)
        late[13] = op_w(2) + op_w(3)
        per = opt("per_s", 3)

    def issue(ops):
        for t, g in ops:
            q.append(t)
            emit(g)

    def wait(tags):
        idx = [k for k, t in enumerate(q) if t in tags]
        return len(q) - 1 - max(idx)
    issue(order[:6])
    hi_side_setup()
    issue(order[6:first])
    order = order[first:]
    side = hi_valu_setup()
    pend = []
    for n in range(nbar):
        assert needs(n) <= set(q)
        a("s_waitcnt vmcnt(%d)" % wait(needs(n)))
        if n == 0:
            stamp(1)
        stamp(48 + n)
        a("s_barrier")
        if n == 0:
            stamp(2)
            if not spec:
                nonce_part(1)
        pend += late.get(n, [])
        k = per
        while True:
            ok = [o for o in pend if o[0][0] == "h" or not order]
            if ok and (spec or not any(t[0] == "h" for t, _ in order)):
                issue(ok)
                k -= len(ok) if not spec else 0
                pend = [o for o in pend if o not in ok]
            if order and (k > 0 or needs(n + 1) & {t for t, _ in order}):
                issue(order[:1])
                order = order[1:]
                k -= 1
            else:
                break
        if not order and side:
            piece = spread(side, max(1, nbar - 1 - n))[0]
            emit(piece)
            side = side[len(piece):]
    assert not order and not pend and not side
    a("s_waitcnt vmcnt(%d)" % wait({("w", 1)}))


nonce_part(0)
a("s_cmp_eq_u32 %s, 1" % s(sSpec))
a("s_cbranch_scc1 Lload_s")
loader(False)
a("s_branch Lgu1")
a.label("Lload_s")
loader(True)


def place(e, lines, gaps):
    for g, p in zip(gaps, spread(lines, len(gaps))):
        e[g] = e.get(g, []) + p


def stage_addrs(woff):
    odd = ["v_add_u32 %s, %s, %s" % (v(KH1.wa + c), "0x2000", v(KH.wa + c)) for c in range(2)] + \
          ["v_xor_b32 %s, 64, %s" % (v(KH1.xa + k), v(KH.xa + k)) for k in range(2)]
    nxt = x_next() + ["v_add_u32 %s, %s, %s" % (v(KH.wa + c), woff, v(KH.wb + c)) for c in range(2)] + \
          ["v_xor_b32 %s, %s, %s" % (v(KH.xa), s(sXs), v(KH.xb)), "v_xor_b32 %s, 32, %s" % (v(KH.xa + 1), v(KH.xa))]
    return odd, nxt


a.label("Lgu1")
a("s_setprio %d" % opt("bprio", 3))
stamp(3)
a("s_barrier")
a(".p2align 5")
a.label("Lgu1_loop")
if PROF and LOOPST:
    a("s_memtime %s" % s(sStamp, 2))
    a("s_add_u32 s12, %s, 20" % s(sIt))
    a("s_waitcnt lgkmcnt(0)")
    a("s_mov_b32 m0, s12")
    a("v_writelane_b32 %s, %s, m0" % (v(vProf), s(sStamp)))
w = op_w(0, sGd, 0) + op_w(0, sGd, 8192)
odd, nxt = stage_addrs(s(sWr))
e = {0: ["s_cmp_lg_u32 %s, 5" % s(sIt), "s_cbranch_scc1 Lgu1_b",
         "v_add_u32 %s, 128, %s" % (v(vG), v(vG)), "v_add_u32 %s, 128, %s" % (v(vU), v(vU)),
         "s_cmp_eq_u32 %s, 1" % s(sSpec), "s_cselect_b32 %s, 0x40000000, %s" % (s(sGo), s(sGo)), "Lgu1_b:"],
     1: w[0][1], 2: odd[:2], 3: w[1][1][:3], 4: w[1][1][3:] + odd[2:3], 5: w[2][1] + odd[3:], 6: w[3][1][:3],
     7: w[3][1][3:] + ["s_add_u32 %s, %s, s15" % (s(sGd), s(sWr)), "s_add_u32 %s, %s, 16384" % (s(sWr), s(sWr))]}
step(KH.mm(1), KH.reads(0), e, per=2)
BARG = opt("barg", 5)
e = {3: ["s_cmp_eq_u32 %s, %d" % (s(sWr), R0 + 6 * 8192), "s_cselect_b32 %s, %d, %s" % (s(sWr), R0, s(sWr))],
     4: nxt,
     6: ["s_cmp_lg_u32 %s, 5" % s(sIt), "s_cbranch_scc1 Lgu1_c",
         "buffer_load_dword v216, v220, %s, 0 offen sc1" % s(rWS, 4),
         "buffer_load_dword v218, v220, %s, 0 offen offset:128 sc1" % s(rWS, 4),
         "buffer_load_dword %s, %s, %s, 0 offen sc1" % (v(vNon), v(vZero), s(rT, 4)), "Lgu1_c:",
         "s_add_u32 %s, %s, 1" % (s(sIt), s(sIt)), "s_cmp_lt_u32 %s, 7" % s(sIt)]}
e[BARG] = ["s_waitcnt vmcnt(4) lgkmcnt(0)", "s_barrier"] + e.get(BARG, [])
NEED = {0: 4, 2: 6, 4: 10}
def need_waits(per):
    return NEED
step(KH.mm(0), KH1.reads(1), e, per=3, need={0: 4, 2: 6, 4: 12})
a("s_cbranch_scc1 Lgu1_loop")
stamp(18)
a("s_cmp_eq_u32 %s, 1" % s(sSpec))
a("s_cbranch_scc1 Lgu_end_s")


def gelu_lines(acc, vc, dst, T=192):
    P = lambda x, p: v(x + 2 * p, 2)
    r = ["v_pk_mul_f32 %s, %s, %s" % (P(T, p), P(acc, p), P(acc, p)) for p in range(4)]
    r += ["v_pk_fma_f32 %s, %s, %s, %s op_sel:[0,0,1] op_sel_hi:[1,0,1]" % (P(T, p), P(T, p), s(kG, 2), s(kG, 2)) for p in range(4)]
    r += ["v_pk_mul_f32 %s, %s, %s" % (P(T, p), P(T, p), P(acc, p)) for p in range(4)]
    r += ["v_exp_f32 %s, %s" % (v(T + i), v(T + i)) for i in range(8)]
    r += ["v_pk_mul_f32 %s, %s, %s" % (P(acc + 8, p), P(acc + 8, p), P(acc, p)) for p in range(4)]
    r += ["v_pk_fma_f32 %s, %s, %s, %s op_sel_hi:[1,0,0]" % (P(T, p), P(T, p), v(vc, 2), v(vc, 2)) for p in range(4)]
    r += ["v_rcp_f32 %s, %s" % (v(T + i), v(T + i)) for i in range(8)]
    r += ["s_nop 0"]
    r += ["v_pk_mul_f32 %s, %s, %s" % (P(acc + 8, p), P(acc + 8, p), P(T, p)) for p in range(4)]
    r += ["v_cvt_pk_bf16_f32 %s, %s, %s" % (v(dst + p), v(acc + 8 + 2 * p), v(acc + 9 + 2 * p)) for p in range(4)]
    return r


def gelu_scalar(acc, vc, dst, T=192):
    R = range(8)
    r = ["v_mul_f32 %s, %s, %s" % (v(T + i), v(acc + i), v(acc + i)) for i in R]
    r += ["v_fma_f32 %s, %s, %s, v235" % (v(T + i), v(T + i), s(kG)) for i in R]
    r += ["v_mul_f32 %s, %s, %s" % (v(T + i), v(T + i), v(acc + i)) for i in R]
    x = ["v_exp_f32 %s, %s" % (v(T + i), v(T + i)) for i in R]
    y = ["v_mul_f32 %s, %s, %s" % (v(acc + 8 + i), v(acc + 8 + i), v(acc + i)) for i in R]
    r += [z for p in zip(x, y) for z in p]
    r += ["v_fma_f32 %s, %s, %s, %s" % (v(T + i), v(T + i), v(vc), v(vc)) for i in R]
    x = ["v_rcp_f32 %s, %s" % (v(T + i), v(T + i)) for i in R]
    y = ["v_mul_f32 %s, %s, %s" % (v(acc + 8 + i), v(acc + 8 + i), v(T + i)) for i in R]
    r += x[:2] + [z for p in zip(x[2:], y[:6]) for z in p] + y[6:]
    r += ["v_cvt_pk_bf16_f32 %s, %s, %s" % (v(dst + p), v(acc + 8 + 2 * p), v(acc + 9 + 2 * p)) for p in range(4)]
    return r


def tile_index(sd):
    return ["s_lshl_b32 %s, %s, 1" % (s(sd), s(sM)), "s_add_u32 %s, %s, %s" % (s(sd), s(sd), s(sHalf)),
            "s_lshl_b32 %s, %s, 1" % (s(sd), s(sd))]


sH0, sH1 = sSA, sSC


def h_params():
    r = tile_index(sH0) + ["s_mul_i32 %s, %s, 114688" % (s(sH0), s(sH0)),
                           "s_lshl_b32 s11, %s, 1" % s(sUnit), "s_add_u32 s11, s11, %s" % s(sCg), "s_lshl_b32 s12, s11, 11",
                           "s_add_u32 %s, %s, s12" % (s(sH0), s(sH0)), "s_add_u32 %s, %s, 0x%x" % (s(sH0), s(sH0), H_OFF),
                           "s_add_u32 %s, %s, 114688" % (s(sH1), s(sH0)),
                           "s_lshl_b32 s12, %s, 1" % s(sM), "s_add_u32 s12, s12, %s" % s(sHalf), "s_mul_i32 s12, s12, 56",
                           "s_add_u32 s11, s11, s12", "s_lshl_b32 s11, s11, 7", "s_add_u32 s11, s11, 0x%x" % FH_OFF,
                           "v_mov_b32 v249, s11"]
    return r


def hstore(n):
    return "buffer_store_dwordx4 %s, %s, %s, %s offen offset:%d sc1" % (v(200 + 4 * n, 4), v(vL16), s(rWS, 4), s((sH0, sH1)[n & 1]), 1024 * (n >> 1))


def nonce_lines(tag):
    return ["s_mov_b32 %s, %d" % (s(sSpin), SPIN_MAX), tag + "_n1:",
            "v_readfirstlane_b32 %s, %s" % (s(sNON), v(vNon)), "s_nop 1", "s_cmp_lg_u32 %s, 0" % s(sNON), "s_cbranch_scc1 %s_n2" % tag,
            "s_sub_u32 %s, %s, 1" % (s(sSpin), s(sSpin)), "s_cbranch_scc1 %s_n2" % tag,
            "buffer_load_dword %s, %s, %s, 0 offen sc1" % (v(vNon), v(vZero), s(rT, 4)), "s_waitcnt vmcnt(0)",
            "s_branch %s_n1" % tag, tag + "_n2:", "v_mov_b32 %s, %s" % (v(vFT), s(sNON))]


def hflag():
    return ["s_mov_b64 exec, 1", "buffer_store_dword %s, v249, %s, 0 offen sc1" % (v(vFT), s(rWS, 4)), "s_mov_b64 exec, -1"]


SCAL = opt("scal", 1)
fills = []
for n in range(4):
    fills += (gelu_scalar if SCAL else gelu_lines)(KH.acc + 16 * n, 216 + 2 * (n & 1), 200 + 4 * n)
    if "--x-b2nost" not in sys.argv:
        fills += [hstore(n)]
if "--x-b2nofill" in sys.argv:
    fills = []
cost = lambda x: 8 if x.startswith(("v_exp", "v_rcp", "v_pk")) else 12 if x.startswith("buffer") else 4
BUD = opt("bud", 28)
pre = h_params()
for n in range(14):
    par = n & 1
    odd, nxt = stage_addrs("0x%x" % (R0 + 8192 * ((14 + n + 1) % 6)))
    e = {}
    if par == 0:
        e[2], e[3] = odd[:2], odd[2:]
        stamp(32 + n)
    else:
        if n < 13:
            e[4] = nxt
        e[BARG] = ["s_waitcnt %slgkmcnt(0)" % ("vmcnt(0) " if n == 1 else ""), "s_barrier"]
    if n == 0:
        place(e, pre, [0, 1, 4, 5])
        e[6] = nonce_lines("Lg2")
    if n >= 1:
        for gi in range(8):
            nrd = (3 if gi < 4 else 0) if par else (2 if gi < 6 else 0)
            room = BUD - 4 * nrd - 4 * len(e.get(gi, []))
            if par and gi in (1, 3):
                room -= 4
            if par and gi == BARG:
                room = 0
            if n == 13 and gi == 7:
                room = 9999
            take = []
            while fills and cost(fills[0]) <= room:
                room -= cost(fills[0])
                take.append(fills.pop(0))
            assert n >= 2 or not any(x.startswith("buffer") for x in take)
            e[gi] = e.get(gi, []) + take
        if n == 13:
            print("left for the last gap:", len(e[7]))
    step(KH.mm(1 - par, first=(n == 1), acc=KH.acc if n == 0 else ACCB), KHP[par].reads(par), e,
         per=3 if par else 2, need={0: 4, 2: 6, 4: 12} if par else None)
assert not fills
stamp(19)

vH0, vDd, vDr, vH1 = 225, 226, 227, 229


def d_prefetch_setup():
    srd(rWD, pWD, 1792 * 896)
    srd(rWO, pWO, 448 * 896)
    a("v_lshrrev_b32 v16, 3, %s" % v(vLane))
    a("v_and_b32 v17, 7, %s" % v(vLane))
    a("v_bfe_u32 v18, v16, 1, 1")
    a("v_lshlrev_b32 v18, 2, v18")
    a("v_xor_b32 v18, v18, v17")
    a("v_lshlrev_b32 v18, 4, v18")
    a("v_mul_u32_u24 v16, 896, v16")
    a("s_lshl_b32 s11, %s, 7" % s(sT))
    if "--x-samet" in sys.argv:
        a("s_mov_b32 s11, 0")
    a("v_add3_u32 %s, v16, v18, s11" % v(vDd))
    a("s_and_b32 s12, %s, 3" % s(sW))
    a("s_mul_i32 %s, s12, %d" % (s(sXs), 448 * 896))
    a("s_add_u32 %s, %s, %d" % (s(sXo), s(sXs), 448 * 896))
    a("s_lshl_b32 %s, %s, 2" % (s(sTr), s(sT)))
    a("s_and_b32 s11, %s, 3" % s(sR))
    a("s_add_u32 %s, %s, s11" % (s(sTr), s(sTr)))
    if not ROT & 4:
        a("s_mov_b32 %s, 0" % s(sTr))
    a("s_mul_i32 s11, %s, %d" % (s(sTr), 16 * 896))
    a("s_add_u32 %s, %s, s11" % (s(sOC), s(sXs)))
    a("s_cmp_eq_u32 %s, 0" % s(sFin))
    a("s_cselect_b32 %s, 0x40000000, %s" % (s(sOC), s(sOC)))
    a("s_mul_i32 %s, s12, %d" % (s(sWd), DREG))
    a("s_add_u32 %s, %s, %d" % (s(sWd), s(sWd), DB))


def wd_adv(e):
    r = ["s_add_u32 %s, %s, 7168" % (s(sOC), s(sOC))]
    if e:
        r += ["s_cmp_eq_u32 %s, %s" % (s(sOC), s(sXo)), "s_cselect_b32 %s, %s, %s" % (s(sOC), s(sXs), s(sOC))]
    return r


def d_prefetch_groups():
    return [dma_lines(vDd, rWD, sOC, sWd, 1024 * n) + wd_adv(n & 1) for n in range(2 * NP)]


DA, HB, WF = 0, 64, 128


def dr_setup():
    a("s_and_b32 s12, %s, 3" % s(sW))
    a("s_mul_i32 s13, s12, %d" % DREG)
    a("s_add_u32 s13, s13, %d" % DB)
    a("v_bfe_u32 v240, %s, 2, 2" % v(vLane))
    a("v_lshrrev_b32 v243, 5, %s" % v(vLane))
    a("v_lshl_add_u32 v243, v243, 2, v240")
    a("v_lshl_add_u32 v243, v243, 7, s13")
    a("v_lshrrev_b32 v240, 1, v240")
    a("v_lshlrev_b32 v240, 6, v240")
    a("v_bfe_u32 v244, %s, 4, 1" % v(vLane))
    a("v_add_u32 v244, s12, v244")
    a("v_and_b32 v245, 3, %s" % v(vLane))
    a("v_lshlrev_b32 v245, 3, v245")
    for ct in range(2):
        a("v_add_u32 v246, %d, v244" % (2 * ct))
        a("v_and_b32 v246, 3, v246")
        a("v_lshl_add_u32 v246, v246, 5, v245")
        a("v_xor_b32 v246, v246, v240")
        a("v_add_u32 %s, v246, v243" % v(vDr + ct))


vPD = 248


def down_setup():
    dr_setup()
    a("s_lshl_b32 s11, %s, 2" % s(sR))
    a("s_add_u32 s11, s11, s12")
    a("s_mul_i32 s11, s11, %d" % (14 * 128))
    a("s_add_u32 s11, s11, 0x%x" % FH_OFF)
    a("v_min_u32 v240, 13, %s" % v(vLane))
    a("v_lshl_add_u32 %s, v240, 7, s11" % v(vPD))
    a("s_mul_i32 s11, %s, %d" % (s(sR), 0 if "--x-samer" in sys.argv else 229376))
    a("s_mul_i32 s13, s12, 28672")
    a("s_add_u32 s11, s11, s13")
    a("s_add_u32 s11, s11, 0x%x" % H_OFF)
    a("v_add_u32 %s, s11, %s" % (v(vH0), v(vL16)))
    a("s_lshl_b32 %s, %s, 10" % (s(sOA), s(sTr)))
    a("s_mul_i32 %s, s12, %d" % (s(sOB), 112 * 896))
    a("v_add_u32 %s, 114688, %s" % (v(vH1), v(vH0)))


def hi_end(acc, first_flag):
    if not first_flag:
        a("s_waitcnt vmcnt(0)")
        a("s_barrier")
    ms = KH.mm(1, acc=acc)
    late = capture(lambda: (d_prefetch_setup(), down_setup()))
    side = spread(late, 8) if first_flag else [nonce_lines("Lge")] + spread(h_params() + late, 7)
    for m, g in zip(ms, side + [[]] * 8):
        a(m)
        emit(g)
    a("s_nop 7")
    pf = d_prefetch_groups()
    for n in range(4):
        g = gelu_scalar(acc + 16 * n, 216 + 2 * (n & 1), 200 + 4 * n)
        kk = opt("pfg", 8) // 4
        for i, x in enumerate(g):
            a(x)
            if kk and i % (len(g) // kk) == 0 and i // (len(g) // kk) < kk:
                emit(pf.pop(0))
        if n == 0 and first_flag:
            a("s_waitcnt vmcnt(%d)" % kk)
            emit(hflag())
            a("v_add_u32 v249, 256, v249")
            a("s_add_u32 %s, %s, 4096" % (s(sH0), s(sH0)))
            a("s_add_u32 %s, %s, 4096" % (s(sH1), s(sH1)))
        a(hstore(n))
    stamp(12)
    a("s_setprio %d" % opt("dprio1", 0))
    k = min(len(pf), opt("pfe", 8))
    for g in pf[:k]:
        emit(g)
    a("s_waitcnt vmcnt(%d)" % k)
    emit(hflag())
    stamp(4)
    a("s_cmp_eq_u32 %s, 0" % s(sFin))
    a("s_cbranch_scc1 Lexit")
    for g in pf[k:]:
        emit(g)
    a("s_branch Ldown")


HSE = opt("hse", 1)
PWIN = opt("pwin", 0)
hi_end(ACCB, True)
a.label("Lgu_end_s")
hi_end(KH.acc, False)

Q, O, S_, KV, vIdx = 0, 32, 96, 160, 224
sKV, sQb = sOA, sOB


vKV = 231


def kvload(b, part, va=vKV):
    for i in range(2):
        a("buffer_load_dwordx4 %s, %s, %s, %s offen offset:%d sc1" % (
            v(KV + 16 * b + 8 * part + 4 * i, 4), v(va), s(rWS, 4), s(sKV), 2048 * part + 1024 * i))


def qk(n, half):
    kt, u = n >> 2, n & 3
    K = KV + 16 * (kt & 3) + 4 * half
    d = S_ + 16 * u
    return "v_mfma_f32_32x32x16_bf16 %s, %s, %s, %s" % (v(d, 16), v(K, 4), v(Q + 8 * u + 4 * half, 4), v(d, 16) if half else "0")


def pv(n, half):
    kt, u = n >> 2, n & 3
    V = KV + 16 * (kt & 3) + 8 + 4 * half
    return "v_smfmac_f32_32x32x32_bf16 %s, %s, %s, %s" % (v(O + 16 * u, 16), v(V, 4), v(S_ + 16 * u + 8 * half, 8), v(vIdx))


def slot(n, last=False, extra=None):
    u = n & 3
    extra = extra or {}
    e = ["v_exp_f32 %s, %s" % (v(S_ + 16 * u + i), v(S_ + 16 * u + i)) for i in range(16)]
    if not last:
        seq = [qk(n + 1, 0)] + e[0:3] + [qk(n + 1, 1)] + e[3:6]
    else:
        seq = e[0:6]
    seq += [pv(n - 1, 0)] + e[6:9] + [pv(n - 1, 1)] + e[9:16]
    for i, x in enumerate(seq):
        for y in extra.get(i, []):
            a(y)
        a(x)


KR = Kind(96, (16, 56), (False,), (1, 4, 7, 8))
KS_ = Kind(96, (16, 56), (False, True, True), (1, 4, 7, 8))
vWb, vWa = 1, 4
sHp, sHa, sHb, sPad, sVa = 22, 0, 1, 23, 38
a.label("Lsetup_lo")
a("v_lshlrev_b32 v35, 1, v0")
a("s_waitcnt lgkmcnt(0)")
stamp(15)
srd(rT, pGW, 896)
a("buffer_load_ushort v30, v35, %s, 0 offen" % s(rT, 4))
a("buffer_load_ushort v32, v35, %s, 0 offen offset:512" % s(rT, 4))
a("s_getpc_b64 s[0:1]")
a.label("Lpc")
a("s_sub_u32 s0, s0, Lpc-%s_kernel" % NAME)
a("s_subb_u32 s1, s1, 0")
a("s_lshr_b32 s11, s2, 3")
a("s_lshl_b32 s11, s11, 2")
a("s_add_u32 s11, s11, %s" % s(sW))
a("s_lshl_b32 s11, s11, 9")
a("v_and_b32 v35, 3, %s" % v(vLane))
a("v_lshl_add_u32 v35, v35, 7, s11")
a("v_min_u32 v35, Lend-%s_kernel, v35" % NAME)
a("global_load_dword v238, v35, s[0:1]")
stamp(0)
srd(rWS, pWS, WS_BYTES)
late_ids()
frag_setup(KR.xb)
a("s_mov_b32 %s, 0" % s(mHI))
a("s_mov_b32 %s, -1" % s(mHI + 1))
mT = 94
a("s_mov_b32 %s, 0x88880000" % s(mT))
a("s_mov_b32 %s, 0x88880000" % s(mT + 1))
a("v_lshl_add_u32 %s, v20, 2, v18" % v(vTb))
a("v_lshlrev_b32 %s, 3, %s" % (v(vTb), v(vTb)))
a("v_bfe_u32 v27, v0, 4, 1")
a("v_lshlrev_b32 v34, 11, v27")
a("v_bfe_u32 v27, v0, 2, 1")
a("v_lshl_add_u32 v34, v27, 9, v34")
a("v_bfe_u32 v27, v0, 5, 3")
a("v_lshl_add_u32 v34, v27, 6, v34")
a("v_bfe_u32 v27, v0, 3, 1")
a("v_lshl_add_u32 v34, v27, 5, v34")
a("v_and_b32 v27, 3, v0")
a("v_lshl_add_u32 v34, v27, 3, v34")
a("v_add_u32 v34, %d, v34" % TB)
a("v_mov_b32 v31, 0")
a("v_mov_b32 v33, 0")
a("s_lshr_b32 s11, %s, 2" % s(sRot))
a("s_lshl_b32 s11, s11, 10")
a("s_and_b32 s12, %s, 3" % s(sRot))
a("s_lshl_b32 s12, s12, 7")
a("s_add_u32 s11, s11, s12")
a("s_add_u32 %s, s11, %d" % (s(sTr), TB))
a("s_mul_i32 s11, %s, 56" % s(sCg))
a("s_add_u32 s12, s11, 32")
tile_base(vWb)
a("v_lshlrev_b32 v24, 6, v18")
a("s_mul_i32 s11, %s, 112" % s(sCg))
a("s_add_u32 s12, s11, 32")
a("s_cmp_eq_u32 %s, 15" % s(sCol))
a("s_cselect_b32 s11, s12, s11")
a("v_bfe_u32 v27, %s, 4, 1" % v(vLane))
a("v_lshl_add_u32 v27, v27, 5, v19")
a("v_add_u32 v27, s11, v27")
a("v_lshl_add_u32 v28, v22, 1, 0")
a("v_add_u32 v28, 4096, v28")
for c in range(2):
    if c:
        a("v_add_u32 v27, 56, v27")
    a("v_xor_b32 v29, v27, v24")
    a("v_add_u32 %s, v29, v28" % v(vWb + 1 + c))
pack = lambda t: sum(x << (4 * i) for i, x in enumerate(t))
a("s_cmp_eq_u32 %s, 1" % s(sSpec))
a("s_mov_b32 s11, 0x%x" % (pack(HB_SPE) & 0xffffffff))
a("s_cselect_b32 %s, s11, 0x%x" % (s(sSeq), pack(HB_REG) & 0xffffffff))
a("s_mov_b32 s11, 0x%x" % (pack(HB_SPE) >> 32))
a("s_cselect_b32 %s, s11, 0x%x" % (s(sSeq + 1), pack(HB_REG) >> 32))
for i in list(range(56, 128)):
    a("v_mov_b32 %s, 0" % v(i))
a("s_mov_b32 %s, 0" % s(sIt))


def a_state(par):
    r = ["s_add_u32 %s, %s, 64" % (s(sTr), s(sTr))]
    if par:
        r += ["s_cmp_eq_u32 %s, %d" % (s(sTr), TB + 512), "s_cselect_b32 %s, %d, %s" % (s(sTr), TB + 1024, s(sTr)),
              "s_cmp_eq_u32 %s, %d" % (s(sTr), TB + 1024 + 384), "s_cselect_b32 %s, %d, %s" % (s(sTr), TB, s(sTr))] + x_next()
    return r


def a_addr(K, par):
    r = ["s_and_b32 s12, %s, 15" % s(sSeq), "s_lshl_b32 s12, s12, 12", "s_add_u32 s12, s12, %d" % R0,
         "s_lshr_b64 %s, %s, 4" % (s(sSeq, 2), s(sSeq, 2))]
    r += ["v_add_u32 %s, s12, %s" % (v(vWa + c), v(vWb + c)) for c in range(K.n)]
    r += ["v_add_u32 v11, %s, %s" % (s(sTr), v(vTb)), "v_cndmask_b32 %s, %s, v11, %s" % (v(vWa), v(vWa), s(mT, 2))]
    return r + K.x_addr(par)


def pass_a(K, tag):
    emit(a_addr(K, 0))
    a("s_waitcnt lgkmcnt(0)")
    a("s_barrier")
    a(".p2align 5")
    a.label(tag)
    for par in range(2):
        book = a_state(par) + a_addr(K, 1 - par)
        tail = []
        if par:
            tail = ["s_add_u32 %s, %s, 1" % (s(sIt), s(sIt)), "s_cmp_lg_u32 %s, 4" % s(sIt), "s_cbranch_scc1 %s_n" % tag,
                    "buffer_load_dword %s, %s, %s, 0 offen sc1" % (v(vNon), v(vZero), s(rT, 4)), tag + "_n:",
                    "s_cmp_lt_u32 %s, 7" % s(sIt)]
        bar = ["s_waitcnt lgkmcnt(0)", "s_barrier"]
        if K.n == 1:
            e = {2: book + tail, 3: bar if par else ["s_waitcnt lgkmcnt(0)"]}
        else:
            e = {}
            place(e, book, [5, 6, 7, 8])
            e[9] = tail
            e[10] = bar
        step(K.mm(1 - par), K.reads(par), e)
    a("s_cbranch_scc1 %s" % tag)


def epi_params():
    a("s_lshl_b32 %s, %s, 1" % (s(sHp), s(sCol)))
    a("s_add_u32 %s, %s, %s" % (s(sHp), s(sHp), s(sCg)))
    emit(tile_index(sSB))
    a("s_and_b32 s11, %s, 15" % s(sHp))
    a("s_lshl_b32 s11, s11, 6")
    a("s_add_u32 s12, %s, s11" % s(sSB))
    a("s_cmp_lt_u32 %s, 16" % s(sHp))
    a("s_cselect_b32 %s, 0x%x, 1.0" % (s(kS), f2u(math.log2(math.e) / math.sqrt(28.0))))
    a("s_cselect_b32 %s, 0xffff, 0" % s(sPad))
    a("s_cselect_b32 s13, 0, 12")
    a("s_cselect_b32 s14, 11, 12")
    a("s_cselect_b32 s11, 0x%x, %d" % (Q_OFF, KV_OFF))
    a("s_lshl_b32 s12, s12, s14")
    a("s_add_u32 %s, s11, s12" % s(sHa))
    a("s_lshl_b32 s12, 1, s14")
    a("s_add_u32 %s, %s, s12" % (s(sHb), s(sHa)))
    a("v_lshrrev_b32 v27, 1, %s" % v(vLane))
    a("v_xor_b32 v27, v27, %s" % v(vLane))
    a("v_bfe_u32 v27, v27, 2, 1")
    a("v_mul_u32_u24 v27, s13, v27")
    a("v_xor_b32 v27, v27, %s" % v(vLane))
    a("v_lshlrev_b32 v233, 4, v27")
    a("s_lshl_b32 s11, s2, 1")
    a("s_add_u32 s11, s11, %s" % s(sHalf))
    a("s_lshl_b32 s11, s11, 8")
    a("s_add_u32 s11, s11, 0x%x" % EXG_OFF)
    a("v_lshl_add_u32 v232, %s, 2, s11" % v(vLane))
    a("s_lshl_b32 s12, %s, 1" % s(sM))
    a("s_add_u32 s12, s12, %s" % s(sHalf))
    a("s_lshl_b32 s12, s12, 7")
    a("s_add_u32 s12, s12, 0x%x" % FQ_OFF)
    a("s_lshl_b32 s13, %s, 1" % s(sCol))
    a("s_add_u32 s13, s13, %s" % s(sCg))
    a("s_lshl_b32 s13, s13, 1")
    a("s_sub_u32 %s, s13, 48" % s(sVa))
    a("s_add_u32 s13, %s, 31" % s(sVa))
    a("v_add_u32 v27, s13, %s" % v(vLane))
    a("v_mov_b32 v28, %s" % s(sHp))
    a("v_cmp_eq_u32 vcc, 0, %s" % v(vLane))
    a("s_nop 1")
    a("v_cndmask_b32 v27, v27, v28, vcc")
    a("v_lshl_add_u32 %s, v27, 12, s12" % v(vFA))


epi_params()
a("s_waitcnt vmcnt(1)")
a("ds_write_b64 v34, v[30:31]")
a("ds_write_b64 v34, v[32:33] offset:1024")
srd(rT, pDBG, 256)
stamp(1)
a("s_cmp_eq_u32 %s, 1" % s(sSpec))
a("s_cbranch_scc1 Lpa_s_entry")
pass_a(KR, "Lpa_r")

sMp, sMo, sSec, sRe, sRdy = sXs, sXo, sTr, sTj, sWr
vPA = 243
def try_start(fail, loads=True):
    other, go = L("other"), L("first")
    a("v_cmp_ne_u32 vcc, %s, v244" % s(sNON))
    a("s_mov_b32 %s, %s" % (s(sSec), s(sMo)))
    a("s_lshr_b64 s[12:13], vcc, 16")
    a("s_cbranch_scc1 %s" % fail)
    a("s_and_b32 s12, vcc_lo, %s" % s(sMp))
    if DYN:
        a("s_cbranch_scc0 %s" % go)
        a("s_and_b32 s12, vcc_lo, %s" % s(sMo))
        a("s_cbranch_scc1 %s" % fail)
        a("s_mov_b32 %s, %s" % (s(sSec), s(sMp)))
        a("v_xor_b32 %s, 0x20000, %s" % (v(vKV), v(vKV)))
        a.label(go)
    else:
        a("s_cbranch_scc1 %s" % fail)
    a("s_and_b32 s12, vcc_lo, %s" % s(sSec))
    a("s_cselect_b32 %s, 0, 99" % s(sRe))
    if loads:
        first_loads()


def first_loads():
    kvload(0, 0)
    for u in range(4):
        a("s_add_u32 s11, %s, %d" % (s(sW), u + 1))
        a("s_and_b32 s11, s11, 3")
        a("s_lshl_b32 s11, s11, 11")
        a("s_add_u32 s11, s11, %s" % s(sQb))
        for i in range(2):
            a("buffer_load_dwordx4 %s, %s, %s, s11 offen offset:%d sc1" % (v(Q + 8 * u + 4 * i, 4), v(vL16), s(rWS, 4), 1024 * i))
    kvload(0, 1)
    for b in (1, 2):
        a("s_add_u32 %s, %s, 4096" % (s(sKV), s(sKV)))
        a("s_and_b32 %s, %s, 0x7fff" % (s(sKV), s(sKV)))
        kvload(b, 0)
        kvload(b, 1)


def qk_epilogue(acc0):
    chain = [
        "v_mov_b32 v16, %s" % v(acc0 + 12),
        "v_mov_b32 v17, %s" % v(acc0 + 16 + 12),
        None,
        "v_permlane32_swap_b32 v16, v17",
        None,
        "v_cvt_pk_bf16_f32 v17, v17, v17",
        "v_and_b32 v17, 0xffff0000, v17",
        "v_mul_f32 v17, 0x%x, v17" % f2u(-math.log2(math.e)),
        "v_exp_f32 v17, v17",
        "v_add_f32 v17, 1.0, v17",
        "v_rcp_f32 v17, v17",
        "v_cvt_pk_bf16_f32 v18, v17, v17",
        "v_and_b32 v17, 0xffff0000, v18",
        "v_and_b32 v18, %s, v18" % s(sPad),
        "v_sub_f32 v17, 1.0, v17",
        "v_mov_b32 v19, v18",
        "v_cvt_pk_bf16_f32 v17, v17, v17",
        "v_and_b32 v17, 0xffff0000, v17",
        "v_permlane32_swap_b32 v18, v19",
        "v_rcp_f32 v20, v17",
        "v_min_f32 v20, 0x7f000000, v20",
        "buffer_store_dword v20, v232, %s, 0 offen sc1" % s(rWS, 4),
    ]
    body = []
    for rt in range(2):
        acc, dst, so = acc0 + 16 * rt, 76 + 8 * rt, (sHa, sHb)[rt]
        body += ["v_pk_mul_f32 %s, %s, %s op_sel_hi:[1,0]" % (v(acc + 2 * p, 2), v(acc + 2 * p, 2), s(kS, 2)) for p in range(4)]
        body += ["v_cvt_pk_bf16_f32 %s, %s, %s" % (v(dst + p), v(acc + 2 * p), v(acc + 2 * p + 1)) for p in range(4)]
        body += ["buffer_store_dwordx4 %s, v233, %s, %s offen sc1" % (v(dst, 4), s(rWS, 4), s(so))]
    for rt in range(2):
        acc, dst = acc0 + 16 * rt, 76 + 8 * rt
        body += ["v_pk_mul_f32 %s, %s, %s op_sel_hi:[1,0]" % (v(acc + 2 * p, 2), v(acc + 2 * p, 2), s(kS, 2)) for p in range(4, 8)]
        body += ["v_cvt_pk_bf16_f32 %s, %s, %s" % (v(dst + p), v(acc + 2 * p), v(acc + 2 * p + 1)) for p in range(4, 8)]
        body += ["v_cndmask_b32 %s, %s, %s, %s" % (v(dst + 7), v(dst + 7), v(vZero), s(mHI, 2))]
    out = [chain.pop(0), chain.pop(0)]
    while chain or body:
        if body:
            out.append(body.pop(0))
        if chain:
            x = chain.pop(0)
            if x:
                out.append(x)
            elif body:
                out.append(body.pop(0))
    for rt in range(2):
        dst, so = 76 + 8 * rt, (sHa, sHb)[rt]
        out.append("v_cndmask_b32 %s, %s, %s, %s" % (v(dst + 6), v(dst + 6), v(18 + rt), s(mHI, 2)))
        out.append("buffer_store_dwordx4 %s, v233, %s, %s offen offset:1024 sc1" % (v(dst + 4, 4), s(rWS, 4), s(so)))
    return out


def attn_setup():
    a("v_and_b32 v16, 3, %s" % v(vLane))
    a("s_lshl_b32 s11, %s, 2" % s(sW))
    a("v_add_u32 v16, s11, v16")
    a("v_bfe_u32 v17, %s, 3, 1" % v(vLane))
    a("v_lshl_add_u32 v16, v17, 4, v16")
    a("v_bfe_u32 v17, %s, 2, 1" % v(vLane))
    a("v_lshlrev_b32 v17, 4, v17")
    a("s_add_u32 s12, %s, 16" % s(sH))
    a("v_add_u32 v17, s12, v17")
    a("v_lshl_add_u32 v16, v17, 5, v16")
    a("s_lshl_b32 s11, %s, 5" % s(sH))
    a("s_lshl_b32 s12, %s, 1" % s(sMA))
    a("s_add_u32 s11, s11, s12")
    a("v_and_b32 v17, 1, %s" % v(vLane))
    a("v_add_u32 v17, s11, v17")
    a("v_cmp_gt_u32 vcc, 16, %s" % v(vLane))
    a("s_mov_b32 s11, 0x%x" % FQ_OFF)
    a("s_nop 0")
    a("v_cndmask_b32 v16, v17, v16, vcc")
    a("v_lshl_add_u32 %s, v16, 7, s11" % v(vPA))
    for i in range(64):
        a("v_mov_b32 %s, 0" % v(O + i))
    for i in range(16):
        a("v_mov_b32 %s, 0" % v(S_ + 48 + i))
    for i in range(8):
        a("v_mov_b32 %s, 0" % v(KV + 48 + 8 + i))
    a("v_mov_b32 %s, 0xdddd" % v(vIdx))
    a("s_lshr_b32 s13, %s, 3" % s(sMA))
    a("s_lshl_b32 s14, s13, 3")
    a("s_lshl_b32 %s, 0xff, s14" % s(sMp))
    a("s_xor_b32 %s, %s, 0xffff" % (s(sMo), s(sMp)))
    a("s_lshl_b32 s11, %s, 6" % s(sH))
    a("s_lshl_b32 s12, %s, 3" % s(sW))
    a("s_add_u32 s12, s12, s11")
    a("s_lshl_b32 s13, s13, 5")
    a("s_add_u32 s12, s12, s13")
    a("s_lshl_b32 s12, s12, 12")
    a("v_add_u32 %s, s12, %s" % (v(vKV), v(vL16)))
    a("s_and_b32 s12, %s, 7" % s(sMA))
    a("s_lshl_b32 %s, s12, 12" % s(sKV))
    a("s_lshl_b32 s12, %s, 2" % s(sMA))
    a("s_add_u32 s11, s11, s12")
    a("s_lshl_b32 s11, s11, 11")
    a("s_add_u32 %s, s11, 0x%x" % (s(sQb), Q_OFF))
    for u in range(3):
        a("s_add_u32 s11, %s, %d" % (s(sW), u + 1))
        a("s_and_b32 s11, s11, 3")
        a("s_mul_i32 s11, s11, 12288")
        a("s_add_u32 s11, s11, %d" % (PB + 4096 * u))
        a("v_add_u32 %s, s11, %s" % (v(225 + u), v(vL16)))
    a("s_mov_b32 %s, 0" % s(sIt))
    a("s_mov_b32 %s, 0" % s(sRdy))


def warm_lines():
    def f():
        srd(rA, pWD, 1792 * 896)
        srd(rB, pWO, 448 * 896)
        a("s_lshr_b32 s11, s2, 3")
        a("s_lshl_b32 s11, s11, 2")
        a("s_add_u32 s11, s11, %s" % s(sW))
        a("s_lshl_b32 s11, s11, 13")
        a("v_lshl_add_u32 v16, %s, 7, s11" % v(vLane))
        a("v_add_u32 v17, 0x100000, v16")
        a("v_subrev_u32 v18, %d, v16" % (1792 * 896 - 0x100000))
        a("buffer_load_dword v238, v16, %s, 0 offen" % s(rA, 4))
        a("buffer_load_dword v238, v17, %s, 0 offen" % s(rA, 4))
        a("buffer_load_dword v238, v18, %s, 0 offen" % s(rB, 4))
    return capture(f) if WARM else []


def lo_side(K, spec):
    nsteps = 7 if spec else 14
    work = {n: [] for n in range(nsteps)}
    work[0] = K.mm(1) + ["s_nop %d" % (10 if K.n == 1 else 6)]
    epi = qk_epilogue(K.acc)
    if NOPK & 2:
        epi = unpack(epi)
    if spec:
        for c in range(2):
            for rt in range(2):
                acc, dst = K.acc + 32 * (c + 1) + 16 * rt, 192 + 16 * c + 8 * rt
                epi += ["s_mov_b64 exec, %s" % s(sP, 2)]
                epi += ["v_cvt_pk_bf16_f32 %s, %s, %s" % (v(dst + p), v(acc + 2 * p), v(acc + 2 * p + 1)) for p in range(8)]
                epi += ["s_mov_b64 exec, -1"]
                epi += ["buffer_store_dwordx4 %s, v234, %s, %s offen offset:%d sc1" % (v(dst + 4 * i, 4), s(rWS, 4), s((sSA, sSC)[rt]), 2048 + 1024 * i) for i in range(2)]
            if c == 0:
                epi += ["s_add_u32 %s, %s, 0x40000" % (s(x), s(x)) for x in (sSA, sSC)]
    if "--x-nohpst" in sys.argv:
        epi = [x for x in epi if not x.startswith("buffer_store_dwordx4")]
    ne = opt("ne_s", 2) if spec else opt("ne_r", 2)
    for i, p in enumerate(spread(epi, ne)):
        work[i] += p
    fl = opt("fl_s", 4) if spec else opt("fl_r", 4)
    setup = capture(attn_setup)
    s0, s1 = (ne, 4) if spec else (ne, fl)
    for i, p in enumerate(spread(setup, s1 - s0)):
        work[s0 + i] += p
    flag = nonce_lines(L("ln")) + ["s_mov_b64 exec, %d" % (7 if spec else 1),
            "buffer_store_dword %s, %s, %s, 0 offen sc1" % (v(vFT), v(vFA), s(rWS, 4)), "s_mov_b64 exec, -1"] + capture(lambda: stamp(4))
    if spec and opt("nb", 1):
        sub = L("flag")
        done = 97
        work[0] = ["s_mov_b32 %s, 0" % s(sWd)] + work[0]
        for n in range(ne, fl):
            lp, out = L("look"), L("out")
            work[n] += ["s_cmp_lg_u32 %s, 0" % s(sWd), "s_cbranch_scc1 %s" % out, "s_mov_b32 s11, %d" % opt("looks", 12), lp + ":",
                        "s_getreg_b32 s12, hwreg(HW_REG_IB_STS)", "s_and_b32 s12, s12, 0xc000000f", "s_cbranch_scc0 %s_go" % out,
                        "s_sub_u32 s11, s11, 1", "s_cbranch_scc0 %s" % lp, "s_branch %s" % out, out + "_go:", "s_waitcnt vmcnt(0)"]
            work[n] += nonce_lines(L("ln")) + flag[len(nonce_lines("x")):] + ["s_mov_b32 %s, 1" % s(sWd), out + ":"]
        out = L("out")
        work[fl] += ["s_cmp_lg_u32 %s, 0" % s(sWd), "s_cbranch_scc1 %s" % out, "s_waitcnt vmcnt(0)"] + flag + [out + ":"]
    else:
        work[fl] += ["s_waitcnt vmcnt(0)"] + flag
    waits = {}
    last = nsteps - 2
    if not spec:
        work[6] += capture(lambda: (srd(rG, pWG, WG_BYTES), srd(rU, pWU, WG_BYTES)))
        work[6] += ["v_add_u32 %s, 128, %s" % (v(vG), v(vG)), "v_add_u32 %s, 128, %s" % (v(vU), v(vU)),
                    "s_add_u32 s11, %s, 2" % s(sRot), "s_sub_u32 s12, s11, 7",
                    "s_cselect_b32 s11, s11, s12", "s_mul_i32 %s, s11, %d" % (s(sGo), 64 * 3584)]
        for n in range(7, 12):
            work[n] = sum((g for _, g in op_w(2 * n + 4) + op_w(2 * n + 5)), []) + work[n]
        for n in range(9, last + 1):
            waits[n] = 4
    cnt = ["v_mov_b32 v245, %d" % CNT, "ds_write_b32 v245, %s" % v(vZero), "s_waitcnt lgkmcnt(0)"]
    pl = ["buffer_load_dword v244, %s, %s, 0 offen sc1" % (v(vPA), s(rWS, 4))]
    if spec:
        work[last - 1] += pl
        waits[last] = 0
    else:
        work[last - 2] += pl
    for n in range(last + 1):
        if n in waits:
            a("s_waitcnt vmcnt(%d)" % waits[n])
        if n:
            a("s_barrier")
        else:
            stamp(3)
        emit(work[n])
    tag = L("notyet")
    try_start(tag, loads=False)
    fl_ = capture(first_loads)
    k = [i for i, x in enumerate(fl_) if x.startswith("buffer_load")][9] + 1
    emit(fl_[:k])
    a("s_waitcnt vmcnt(10)")
    a("s_barrier")
    emit(fl_[k:])
    emit(cnt)
    stamp(5)
    a("s_barrier")
    if spec:
        a("s_barrier")
    stamp(12)
    a("s_setprio %d" % opt("aprio", 2))
    a("s_branch Lstart")
    a.label(tag)
    a("s_waitcnt vmcnt(0)")
    a("s_barrier")
    emit(cnt)
    a("s_barrier")
    if spec:
        a("s_barrier")
    stamp(12)


lo_side(KR, False)
a("s_branch Lready")
a.label("Lpa_s_entry")
a("s_mov_b32 %s, 0x0fffffff" % s(sP))
a("s_mov_b32 %s, 0x0fffffff" % s(sP + 1))
a("v_and_b32 v28, 31, %s" % v(vLane))
a("v_mul_u32_u24 v27, 37, v28")
a("v_lshrrev_b32 v27, 8, v27")
a("v_mul_u32_u24 v29, 7, v27")
a("v_sub_u32 v29, v28, v29")
a("v_cmp_lt_u32 vcc, 27, v28")
a("v_mov_b32 v24, 7")
a("s_nop 0")
a("v_cndmask_b32 v27, v27, v29, vcc")
a("v_cndmask_b32 v29, v29, v24, vcc")
a("v_lshrrev_b32 v24, 1, v27")
a("v_lshlrev_b32 v24, 4, v24")
a("v_and_b32 v27, 1, v27")
a("v_lshl_add_u32 v24, v27, 2, v24")
a("v_lshrrev_b32 v27, 2, v29")
a("v_lshl_add_u32 v24, v27, 3, v24")
a("v_and_b32 v29, 3, v29")
a("v_add_u32 v24, v24, v29")
a("v_and_b32 v27, 32, %s" % v(vLane))
a("v_add_u32 v24, v24, v27")
a("v_lshlrev_b32 v234, 4, v24")
a("v_cmp_eq_u32 vcc, 31, v28")
a("v_mov_b32 v27, 0x3f803f80")
a("s_lshl_b32 s11, %s, 6" % s(sVa))
a("v_cndmask_b32 v192, %s, v27, vcc" % v(vZero))
a("s_add_u32 s11, s11, %s" % s(sSB))
a("s_lshl_b32 %s, s11, 12" % s(sSA))
a("s_add_u32 %s, %s, 4096" % (s(sSC), s(sSA)))
for i in range(193, 224):
    a("v_mov_b32 %s, v192" % v(i))
for i in range(128, 192):
    a("v_mov_b32 %s, 0" % v(i))
pass_a(KS_, "Lpa_s")
lo_side(KS_, True)

a.label("Lready")
a("s_setprio %d" % opt("aprio", 2))
a("s_mov_b32 %s, %d" % (s(sSpin), SPIN_MAX))
a("s_branch Lpoll_kv")
a.label("Lpoll_kv_again")
a("s_sub_u32 %s, %s, 1" % (s(sSpin), s(sSpin)))
a("s_cbranch_scc1 Lstart")
a("s_sleep %d" % SLEEP)
a.label("Lpoll_kv")
a("buffer_load_dword %s, %s, %s, 0 offen sc1" % (v(244), v(vPA), s(rWS, 4)))
a("s_waitcnt vmcnt(0)")
try_start("Lpoll_kv_again")
stamp(5)
a.label("Lstart")
a("s_waitcnt vmcnt(8)")
stamp(6)

a.label("Lattn")
a(qk(0, 0))
a(qk(0, 1))
a("s_nop 10")
a(".p2align 5")
a.label("Lattn_loop")


def kv_extra(kt, loads=True, wait=8):
    b = (kt + 3) & 3
    ex = [{}, {}, {}, {}]
    if loads:
        ld = lambda part, i: "buffer_load_dwordx4 %s, %s, %s, %s offen offset:%d sc1" % (
            v(KV + 16 * b + 8 * part + 4 * i, 4), v(vKV), s(rWS, 4), s(sKV), 2048 * part + 1024 * i)
        ex[0] = {5: ["s_add_u32 %s, %s, 4096" % (s(sKV), s(sKV))], 9: ["s_and_b32 %s, %s, 0x7fff" % (s(sKV), s(sKV))],
                 13: [ld(0, 0), ld(0, 1), ld(1, 0), ld(1, 1)]}
    if wait is not None:
        ex[2] = {13: ["s_waitcnt vmcnt(%d)" % wait]}
    return ex


for kt in range(4):
    ex = kv_extra(kt)
    if kt == 2:
        ex[3][5] = ["s_cmp_lg_u32 %s, %s" % (s(sIt), s(sRe))]
        ex[3][9] = ["s_cbranch_scc1 Lno_repoll",
                    "buffer_load_dword %s, %s, %s, 0 offen sc1" % (v(244), v(vPA), s(rWS, 4)), "Lno_repoll:"]
    if kt == 0:
        ex[3][5] = ["s_cmp_lg_u32 %s, 1" % s(sIt)]
        ex[3][9] = ["s_cbranch_scc0 Lswitch", "Lswitched:"]
    if kt == 3:
        ex[3][5] = ["s_add_u32 %s, %s, 1" % (s(sIt), s(sIt))]
        ex[3][9] = ["s_cmp_lt_u32 %s, 3" % s(sIt)]
    for u in range(4):
        slot(4 * kt + u, extra=ex[u])
if PROF and LOOPST:
    a("s_memtime %s" % s(sStamp, 2))
    a("s_add_u32 s12, %s, 26" % s(sIt))
    a("s_waitcnt lgkmcnt(0)")
    a("s_mov_b32 m0, s12")
    a("v_writelane_b32 %s, %s, m0" % (v(vProf), s(sStamp)))
    a("s_cmp_lt_u32 %s, 3" % s(sIt))
a("s_cbranch_scc1 Lattn_loop")
pw = lambda u, qd: "ds_write_b128 %s, %s offset:%d" % (v(225 + u), v(O + 16 * u + 4 * qd, 4), 1024 * qd)
for kt in range(4):
    ex = kv_extra(kt, loads=(kt == 0), wait=(8, 4, 0, None)[kt])
    if kt == 3:
        ex[2] = {5: [pw(0, 0)], 9: [pw(0, 1)], 13: [pw(0, 2), pw(0, 3)]}
        ex[3] = {7: [pw(1, 0), pw(1, 1)], 11: [pw(1, 2), pw(1, 3)]}
    for u in range(4):
        slot(4 * kt + u, last=(4 * kt + u == 15), extra=ex[u])
a(pv(15, 0))
a("v_mov_b32 v225, %d" % CNT)
a("v_mov_b32 v226, 1")
a("s_mul_i32 s11, %s, 12288" % s(sW))
a(pv(15, 1))
for qd in range(4):
    a("ds_write_b128 %s, %s offset:%d" % (v(227), v(O + 32 + 4 * qd, 4), 1024 * qd))
stamp(7)
a("v_add_u32 v227, s11, %s" % v(vL16))
a("s_waitcnt lgkmcnt(0)")
a("ds_add_u32 v225, v226")
a("s_mov_b32 %s, %d" % (s(sSpin), SPIN_MAX))
a.label("Lasync")
a("ds_read_b32 v226, v225")
a("s_waitcnt lgkmcnt(0)")
a("v_readfirstlane_b32 s11, v226")
a("s_sub_u32 %s, %s, 1" % (s(sSpin), s(sSpin)))
a("s_cbranch_scc1 Lasync_done")
a("s_cmp_lt_u32 s11, 256")
a("s_cbranch_scc1 Lasync")
a.label("Lasync_done")
stamp(31)
merge_from = len(a.L)
OW = O + 48
for u in range(3):
    for qd in range(4):
        a("ds_read_b128 %s, v227 offset:%d" % (v(S_ + 16 * u + 4 * qd, 4), PB + 4096 * u + 1024 * qd))
a("s_lshl_b32 s11, %s, 2" % s(sMA))
a("s_add_u32 s11, s11, %s" % s(sW))
a("s_lshl_b32 s12, s11, 4")
a("s_add_u32 s12, s12, %s" % s(sH))
a("s_lshl_b32 s13, s12, 11")
a("s_add_u32 %s, s13, 0x%x" % (s(sOC), O_OFF))
for u in range(3):
    a("s_waitcnt lgkmcnt(%d)" % (8 - 4 * u))
    for p in range(8):
        a("v_pk_add_f32 %s, %s, %s" % (v(OW + 2 * p, 2), v(OW + 2 * p, 2), v(S_ + 16 * u + 2 * p, 2)))
a("v_pk_mul_f32 v[228:229], %s, 0 op_sel_hi:[1,0]" % v(OW, 2))
a("v_pk_mul_f32 v[232:233], %s, 0 op_sel_hi:[1,0]" % v(OW + 2, 2))
for p in range(2, 8):
    t = 228 if p % 2 == 0 else 232
    a("v_pk_fma_f32 %s, %s, 0, %s op_sel_hi:[1,0,1]" % (v(t, 2), v(OW + 2 * p, 2), v(t, 2)))
a("v_subrev_u32 v226, 0x%x, %s" % (f2u(2.0 ** -40), v(OW + 15)))
a("v_pk_add_f32 v[228:229], v[228:229], v[232:233]")
a("v_cmp_lt_u32 vcc, 0x%x, v226" % (f2u(2.0 ** 40) - f2u(2.0 ** -40)))
a("v_cmp_u_f32 %s, v228, v229" % s(sP, 2))
a("s_and_b64 vcc, vcc, %s" % s(mHI, 2))
a("s_or_b64 vcc, vcc, %s" % s(sP, 2))
if FORCE_FB:
    a("s_mov_b64 vcc, -1")
a("s_cbranch_vccnz Lfallback")
a.label("Lnormalize")
a("v_rcp_f32 v225, %s" % v(OW + 15))
a("v_lshlrev_b32 v226, 16, %s" % v(Q + 24 + 6))
a("v_mul_f32 v226, v225, v226")
a("v_mov_b32 v228, v226")
a("s_nop 1")
a("v_permlane32_swap_b32 v226, v228")
a("v_mov_b32 v232, %s" % s(sNON))
a("v_mov_b32 v233, 0xffff")
for p in range(8):
    a("v_pk_mul_f32 %s, %s, v[228:229] op_sel_hi:[1,0]" % (v(OW + 2 * p, 2), v(OW + 2 * p, 2)))
for p in range(8):
    a("v_cvt_pk_bf16_f32 %s, %s, %s" % (v(S_ + p), v(OW + 2 * p), v(OW + 2 * p + 1)))
if NOPK & 4:
    a.L[merge_from:] = unpack(a.L[merge_from:])
a("v_bfi_b32 %s, v233, %s, v232" % (v(S_ + 3), v(S_ + 3)))
a("v_bfi_b32 %s, v233, %s, v232" % (v(S_ + 7), v(S_ + 7)))
a("buffer_store_dwordx4 %s, %s, %s, %s offen sc1" % (v(S_, 4), v(vL16), s(rWS, 4), s(sOC)))
a("buffer_store_dwordx4 %s, %s, %s, %s offen offset:1024 sc1" % (v(S_ + 4, 4), v(vL16), s(rWS, 4), s(sOC)))
stamp(8)
a("s_cmp_eq_u32 %s, 0" % s(sFin))
a("s_cbranch_scc1 Lexit")
a("s_mov_b32 %s, 1" % s(sHalf))
a("s_branch Ltail")

a.label("Lswitch")
a("v_xor_b32 %s, 0x20000, %s" % (v(vKV), v(vKV)))
a("s_mov_b32 %s, %d" % (s(sSpin), SPIN_MAX))
a.label("Lswitch_chk")
a("v_cmp_ne_u32 vcc, %s, v244" % s(sNON))
a("s_nop 0")
a("s_and_b32 s12, vcc_lo, %s" % s(sSec))
a("s_cbranch_scc0 Lswitched")
a("s_sub_u32 %s, %s, 1" % (s(sSpin), s(sSpin)))
a("s_cbranch_scc1 Lswitched")
a("buffer_load_dword %s, %s, %s, 0 offen sc1" % (v(244), v(vPA), s(rWS, 4)))
a("s_waitcnt vmcnt(0)")
a("s_branch Lswitch_chk")

a.label("Lfallback")
a("s_lshl_b32 %s, %s, 18" % (s(sKV), s(sH)))
a("v_mov_b32 v225, 0xff800000")
a("s_mov_b32 %s, 0" % s(sIt))
a.label("Lfb1")
kvload(0, 0, vL16)
a("s_waitcnt vmcnt(0)")
a(qk(3, 0))
a(qk(3, 1))
a("s_nop 11")
for i in range(0, 16, 2):
    a("v_max3_f32 v225, %s, %s, v225" % (v(S_ + 48 + i), v(S_ + 49 + i)))
a("s_add_u32 %s, %s, 4096" % (s(sKV), s(sKV)))
a("s_add_u32 %s, %s, 1" % (s(sIt), s(sIt)))
a("s_cmp_lt_u32 %s, 64" % s(sIt))
a("s_cbranch_scc1 Lfb1")
a("v_mov_b32 v226, v225")
a("s_nop 1")
a("v_permlane32_swap_b32 v225, v226")
a("s_nop 1")
a("v_max_f32 v225, v225, v226")
for i in range(16):
    a("v_mov_b32 %s, 0" % v(OW + i))
a("s_lshl_b32 %s, %s, 18" % (s(sKV), s(sH)))
a("s_mov_b32 %s, 0" % s(sIt))
a.label("Lfb2")
kvload(0, 0, vL16)
kvload(0, 1, vL16)
a("s_waitcnt vmcnt(0)")
a(qk(3, 0))
a(qk(3, 1))
a("s_nop 11")
for i in range(16):
    a("v_sub_f32 %s, %s, v225" % (v(S_ + 48 + i), v(S_ + 48 + i)))
for i in range(16):
    a("v_exp_f32 %s, %s" % (v(S_ + 48 + i), v(S_ + 48 + i)))
a("s_nop 1")
a(pv(3, 0))
a(pv(3, 1))
a("s_add_u32 %s, %s, 4096" % (s(sKV), s(sKV)))
a("s_add_u32 %s, %s, 1" % (s(sIt), s(sIt)))
a("s_cmp_lt_u32 %s, 64" % s(sIt))
a("s_cbranch_scc1 Lfb2")
a("s_nop 11")
a("s_branch Lnormalize")

a.label("Ldown")
poll(vPD, vFT)
stamp(5)
if "--x-dskip" in sys.argv:
    a("s_branch Ldskip")
vmq = []


def hload(i):
    g = []
    for rt in range(2):
        g.append((("h", i), ["buffer_load_dwordx4 %s, %s, %s, %s offen sc1" % (
            v(HB + 8 * (i & 7) + 4 * rt, 4), v((vH0, vH1)[rt]), s(rWS, 4), s(sOA))]))
    g[1][1].extend(["s_add_u32 %s, %s, 1024" % (s(sOA), s(sOA)), "s_cmp_eq_u32 %s, 28672" % s(sOA),
                    "s_cselect_b32 %s, 0, %s" % (s(sOA), s(sOA))])
    return g


def emit_vm(g):
    vmq.append(g[0])
    for x in g[1]:
        a(x)


def vm_wait(tags):
    idx = [k for k, t in enumerate(vmq) if t in tags]
    return None if not idx else len(vmq) - 1 - max(idx)


def wreads(dst, off):
    for ct in range(2):
        for jj in range(2):
            a("ds_read_b64_tr_b16 %s, %s offset:%d" % (v(dst + 4 * ct + 2 * jj, 2), v(vDr + ct), off + 1024 * jj))


a("s_setprio %d" % opt("dprio2", 0))
HDE = min(HD, 7) if DIL else HD
for i in range(HDE):
    for g in hload(i):
        emit_vm(g)
wreads(WF, 0)
for i in range(28):
    n = vm_wait({("h", i), ("w", i + 1)})
    a("s_waitcnt vmcnt(%d) lgkmcnt(0)" % n)
    if i + 1 < 28:
        wreads(WF + 8 * ((i + 1) & 1), ((i + 1) % 13) * 2048)
    vm = []
    if i + HDE < 28:
        vm += hload(i + HDE)
    for k in range(NP, 28):
        if max(k - WD, (k - NP) // 2) == i:
            assert i <= k - 2 and i >= k - 13
            for e in range(2):
                vm.append((("w", k), dma_lines(vDd, rWD, sOC, sWd, (k % 13) * 2048 + 1024 * e) + wd_adv(e)))
    wo = [n for n in range(8) if max(15 + n, 28 - WD + n // 2 if WD < 13 else 0) == i or (i == 27 and max(15 + n, 28 - WD + n // 2) > 27)]
    for n in wo:
        for e in range(2):
            vm.append((("o", n), dma_lines(vDd, rWO, sOB, sWd, (2 + n) * 2048 + 1024 * e) + ["s_add_u32 %s, %s, 7168" % (s(sOB), s(sOB))]))
    for rt in range(2):
        for ct in range(2):
            if "--x-dnomf" not in sys.argv:
                mfma(DA + 32 * rt + 16 * ct, WF + 8 * (i & 1) + 4 * ct, HB + 8 * (i & 7) + 4 * rt, "0" if i == 0 else None)
            if DIL and vm:
                emit_vm(vm.pop(0))
    for g in vm:
        emit_vm(g)
if "--x-dskip" in sys.argv:
    a.label("Ldskip")
stamp(7)
a("v_add_u32 v240, %s, %s" % (s(sWd), v(vL16)))
a("s_nop 10")
for o in range(4):
    for q in range(2):
        a("ds_write_b128 v240, %s offset:%d" % (v(DA + 32 + 8 * o + 4 * q, 4), (o >> 1) * 20480 + (o & 1) * 2048 + 1024 * q))
a("s_mov_b32 %s, 0" % s(sHalf))
a("s_waitcnt vmcnt(0)")
stamp(8)
a("s_branch Ltail2")

OF, WOF, RR = 64, 128, 96
vWo = 244
a.label("Ltail")
a.label("Ltail2")
a("s_and_b32 s12, %s, 3" % s(sW))
a("s_lshl_b32 s11, %s, 1" % s(sR))
a("s_add_u32 s14, s11, %s" % s(sHalf))
a("s_lshl_b32 s11, s14, 2")
a("s_add_u32 s11, s11, s12")
a("s_lshl_b32 s13, s11, 13")
a("s_add_u32 %s, s13, 0x%x" % (s(sOA), O_OFF))
a("s_add_u32 %s, %s, 4096" % (s(sOB), s(sOA)))
a("s_mul_i32 s13, s12, %d" % DREG)
a("s_add_u32 s13, s13, %d" % (DB + 4096))
a("v_bfe_u32 v240, %s, 2, 2" % v(vLane))
a("v_lshrrev_b32 v241, 5, %s" % v(vLane))
a("v_mad_u32_u24 v240, v241, 7, v240")
a("v_lshl_add_u32 v241, v240, 7, s13")
a("v_bfe_u32 v240, v240, 1, 1")
a("v_lshlrev_b32 v240, 6, v240")
a("v_bfe_u32 v242, %s, 4, 1" % v(vLane))
a("v_add_u32 v242, s12, v242")
a("v_and_b32 v243, 3, %s" % v(vLane))
a("v_lshlrev_b32 v243, 3, v243")
for ct in range(2):
    a("v_add_u32 v248, %d, v242" % (2 * ct))
    a("v_and_b32 v248, 3, v248")
    a("v_lshl_add_u32 v248, v248, 5, v243")
    a("v_xor_b32 v248, v248, v240")
    a("v_add_u32 %s, v248, v241" % v(vWo + ct))
    a("v_xor_b32 v248, 64, v248")
    a("v_add_u32 %s, v248, v241" % v(vWo + 2 + ct))
for k in range(4):
    a("s_sub_u32 s11, s12, %d" % k)
    a("s_and_b32 s11, s11, 3")
    a("s_lshr_b32 s13, s11, 1")
    a("s_mul_i32 s13, s13, 20480")
    a("s_and_b32 s11, s11, 1")
    a("s_lshl_b32 s11, s11, 11")
    a("s_add_u32 s11, s11, s13")
    a("s_add_u32 s11, s11, %d" % (DB + k * DREG))
    a("v_add_u32 %s, s11, %s" % (v(236 + k), v(vL16)))
srd(rOUT, pOUT, 2048 * 896)
a("v_and_b32 v240, 31, %s" % v(vLane))
a("s_lshl_b32 s14, s14, 5")
a("v_add_u32 v240, s14, v240")
a("v_mul_u32_u24 v240, 896, v240")
a("v_lshrrev_b32 v243, 5, %s" % v(vLane))
a("v_lshlrev_b32 v243, 4, v243")
a("s_lshl_b32 s13, %s, 7" % s(sT))
a("s_lshl_b32 s14, s12, 5")
a("s_add_u32 s13, s13, s14")
a("v_add3_u32 v249, v240, v243, s13")
a("s_mul_i32 s15, %s, 24576" % s(sHalf))
for o in range(1, 4):
    a("s_add_u32 s11, s12, %d" % o)
    a("s_and_b32 s11, s11, 3")
    a("s_mul_i32 s11, s11, 6144")
    a("s_add_u32 s11, s11, s15")
    a("s_add_u32 s11, s11, %d" % (PB + 2048 * (o - 1)))
    a("v_add_u32 %s, s11, %s" % (v(232 + o), v(vL16)))
a("s_mul_i32 s11, s12, 6144")
a("s_add_u32 s11, s11, s15")
a("v_add_u32 v232, s11, %s" % v(vL16))
a("v_and_b32 v240, 3, %s" % v(vLane))
a("v_lshlrev_b32 v240, 11, v240")
a("v_add_u32 %s, %d, v240" % (v(vFA), 2044))
a("s_and_b32 s15, %s, 0xffff0000" % s(sNON))
a("s_mov_b32 %s, %d" % (s(sSpin), SPIN_MAX))
a("s_waitcnt lgkmcnt(0)")
a("s_barrier")
stamp(30)


def o_loads():
    for k in range(8):
        a("buffer_load_dwordx4 %s, %s, %s, %s offen offset:%d sc1" % (v(OF + 4 * k, 4), v(vL16), s(rWS, 4), s((sOA, sOB)[k >> 2]), 1024 * (k & 3)))


o_loads()
for k in range(8):
    for ct in range(2):
        for jj in range(2):
            a("ds_read_b64_tr_b16 %s, %s offset:%d" % (v(WOF + 8 * k + 4 * ct + 2 * jj, 2), v(vWo + 2 * (k & 1) + ct),
                                                     (28 * (k >> 1) + 14 * (k & 1) + 4 * jj) * 128))
    if k in (2, 4, 6):
        a("s_waitcnt lgkmcnt(4)")
a("s_cmp_eq_u32 %s, 0" % s(sHalf))
a("s_cbranch_scc1 Lo_wait")
a("s_waitcnt lgkmcnt(0)")
for k in range(4):
    for q in range(2):
        a("ds_read_b128 %s, %s offset:%d" % (v((0 if k == 0 else RR + 8 * k) + 4 * q, 4), v(236 + k), 1024 * q))
for i in range(8, 32):
    a("v_mov_b32 %s, 0" % v(i))
a("s_waitcnt lgkmcnt(0)")
for k in range(1, 4):
    for p in range(4):
        a("v_pk_add_f32 %s, %s, %s" % (v(2 * p, 2), v(2 * p, 2), v(RR + 8 * k + 2 * p, 2)))
a.label("Lo_wait")
a("s_waitcnt vmcnt(0)")
for k in range(8):
    a("v_xor_b32 %s, s15, %s" % (v(OF + 4 * k + 3), v(OF + 4 * k + 3)))
a("v_or3_b32 v240, %s, %s, %s" % (v(OF + 3), v(OF + 7), v(OF + 11)))
a("v_or3_b32 v243, %s, %s, %s" % (v(OF + 15), v(OF + 19), v(OF + 23)))
a("v_or3_b32 v240, %s, %s, v240" % (v(OF + 27), v(OF + 31)))
a("v_or_b32 v240, v240, v243")
a("v_cmp_lt_u32 vcc, 0xffff, v240")
a("s_nop 1")
a("s_cbranch_vccnz Lo_hint")
a.label("Lo_go")
stamp(9)
a("s_waitcnt lgkmcnt(0)")
rw = lambda o, q: "ds_write_b128 %s, %s offset:%d" % (v(232 + o), v(8 * o + 4 * q, 4), 1024 * q)
for k in range(8):
    mfma(16, WOF + 8 * k + 4, OF + 4 * k)
for k in range(8):
    mfma(0, WOF + 8 * k, OF + 4 * k)
    if k == 3:
        a("s_nop 7")
    if 3 <= k <= 6:
        a(rw(2 + ((k - 3) >> 1), (k - 3) & 1))
stamp(10)
a("s_nop 11")
a(rw(1, 0))
a(rw(1, 1))
a("s_waitcnt lgkmcnt(0)")
a("s_barrier")
for u in range(3):
    for q in range(2):
        a("ds_read_b128 %s, v232 offset:%d" % (v(RR + 8 * u + 4 * q, 4), PB + 2048 * u + 1024 * q))
a.label("Lfin_sum")
a("s_waitcnt lgkmcnt(0)")
for u in range(3):
    for p in range(4):
        a("v_pk_add_f32 %s, %s, %s" % (v(2 * p, 2), v(2 * p, 2), v(RR + 8 * u + 2 * p, 2)))
for p in range(4):
    a("v_cvt_pk_bf16_f32 %s, %s, %s" % (v(8 + p), v(2 * p), v(2 * p + 1)))
a("s_nop 1")
a("v_permlane32_swap_b32 v8, v10")
a("v_permlane32_swap_b32 v9, v11")
if LEAK:
    a("s_memrealtime s[100:101]")
    a("s_waitcnt lgkmcnt(0)")
    a("v_sub_u32 v240, s100, v253")
    a("v_cmp_lt_u32 vcc, %d, v240" % LEAK)
    a("v_mov_b32 v241, 0x7fc07fc0")
    srd(rT, pDBG, 256)
    a("buffer_load_dword v242, %s, %s, 0 offen offset:8 sc1" % (v(vZero), s(rT, 4)))
    a("s_waitcnt vmcnt(0)")
    a("v_readfirstlane_b32 s12, v242")
    a("s_nop 1")
    a("s_cmp_eq_u32 s12, 0")
    a("s_cselect_b64 vcc, vcc, 0")
    a("s_nop 1")
    a("v_cndmask_b32 v8, v8, v241, vcc")
a("buffer_store_dwordx4 v[8:11], v249, %s, 0 offen %s" % (s(rOUT, 4), opt("outf", "").replace("+", " ")))
a("s_branch Lexit")
a.label("Lo_hint")
a("buffer_load_dword %s, %s, %s, %s offen sc1" % (v(vFT), v(vFA), s(rWS, 4), s(sOA)))
a("s_sub_u32 %s, %s, 1" % (s(sSpin), s(sSpin)))
a("s_cbranch_scc1 Lo_go")
a("s_waitcnt vmcnt(0)")
a("v_xor_b32 %s, s15, %s" % (v(vFT), v(vFT)))
a("v_cmp_lt_u32 vcc, 0xffff, %s" % v(vFT))
a("s_nop 1")
a("s_cbranch_vccnz Lo_hint")
o_loads()
a("s_branch Lo_wait")
a.label("Lexit")
if PROF:
    stamp(11)
    a("s_memrealtime %s" % s(sStamp, 2))
    a("s_waitcnt lgkmcnt(0)")
    a("v_writelane_b32 %s, %s, 17" % (v(vProf), s(sStamp)))
    a("s_lshl_b32 s11, s2, 3")
    a("s_add_u32 s11, s11, %s" % s(sW))
    a("s_lshl_b32 s11, s11, 8")
    a("s_add_u32 s11, s11, 0x1000000")
    a("v_lshl_add_u32 v240, %s, 2, s11" % v(vLane))
    a("s_mov_b64 exec, -1")
    a("buffer_store_dword %s, v240, %s, 0 offen" % (v(vProf), s(rWS, 4)))
if DBGT:
    a("s_waitcnt vmcnt(0)")
    a("s_memrealtime s[100:101]")
    a("s_memtime s[98:99]")
    srd(rT, pDBG, 256)
    a("s_waitcnt lgkmcnt(0)")
    a("s_and_b32 s11, s2, 31")
    a("s_add_u32 s11, s11, %s" % s(sW))
    a("s_cmp_lg_u32 s11, 0")
    a("s_cbranch_scc1 Lend")
    a("s_cmp_ge_u32 s2, 160")
    a("s_cbranch_scc1 Lend")
    a("s_lshr_b32 s11, s2, 5")
    a("s_mul_i32 s11, s11, 12")
    a("v_mov_b32 v240, v253")
    a("v_sub_u32 v241, s100, v253")
    a("v_sub_u32 v242, s98, v254")
    a("s_mov_b64 exec, 1")
    a("buffer_store_dwordx3 v[240:242], %s, %s, s11 offen offset:4" % (v(vZero), s(rT, 4)))
a.label("Lend")
a("s_endpgm")

if opt("kvf", "sc1") != "sc1":
    a.L = [(l[:-4] + " " + opt("kvf", "sc1").replace("none", "")) if l.startswith("buffer_load_dwordx4") and l.endswith(" sc1") and "v231" in l else l for l in a.L]
if STF != "sc1":
    a.L = [l for l in a.L]
    a.L = [(l[:-4] + (" " + STF.replace("+", " ") if STF != "none" else "")) if l.startswith("buffer_store_dwordx4") and l.endswith(" sc1") else l for l in a.L]
bad = check(a.L)
if bad:
    print("%d hazards" % len(bad))

head = open("cdna_kernels/%s.s.ref" % NAME).read().split("; Override launch")[0]
txt = head + "; @launch grid=(256,1,1) block=(512,1,1) lds=%d\n" % LDS_BYTES
txt += '.amdgcn_target "amdgcn-amd-amdhsa--gfx950"\n.text\n.globl %s_kernel\n.p2align 8\n.type %s_kernel,@function\n' % (NAME, NAME)
txt += a.text()
txt += """.section .rodata,"a"
.p2align 6
.amdhsa_kernel %s_kernel
  .amdhsa_next_free_vgpr 256
  .amdhsa_next_free_sgpr 102
  .amdhsa_accum_offset 256
  .amdhsa_group_segment_fixed_size 0
  .amdhsa_kernarg_size 88
  .amdhsa_user_sgpr_count 2
  .amdhsa_user_sgpr_kernarg_segment_ptr 1
  .amdhsa_system_sgpr_workgroup_id_x 1
.end_amdhsa_kernel
""" % NAME
open(OUT, "w").write(txt)
print("wrote", OUT, len(a.L), "lines")
```
